```python
import torch

def _softmax(x, axis=-1):
    return torch.softmax(x, dim=axis)

def _gelu(x):
    return torch.nn.functional.gelu(x, approximate='tanh')

def _silu(x):
    return torch.nn.functional.silu(x)

def _sigmoid(x):
    return torch.sigmoid(x)

def _layernorm(x, axis=-1, eps=1e-05):
    m = x.mean(dim=axis, keepdim=True)
    v = x.var(dim=axis, keepdim=True, unbiased=False)
    return (x - m) / torch.sqrt(v + eps)

def _scatter_add(tgt, idx, src, axis=0):
    return tgt.clone().index_add_(axis, idx, src)

def _segment_sum(src, seg, n):
    out = torch.zeros((n,) + src.shape[1:], dtype=src.dtype)
    return out.index_add_(0, seg, src)

def _pad(x, pw):
    flat = tuple((v for pair in reversed(pw) for v in pair))
    return torch.nn.functional.pad(x, flat)
kernel_name = 'sequential_preLN__memory_aug_recurrent_mem_tr__mixer_s_mlp__prompt'

def setup_inputs():

    _w = lambda a: (lambda t: t.to(torch.bfloat16) if t.is_floating_point() else t)(torch.as_tensor(a))

    def _A_setup():
        B, S, Dm = (1, 2048, 576)
        H, Dh = (32, 128)
        M, seg = (8, 32)
        seg = min(seg, S)
        S = S // seg * seg
        return {'x': _w((lambda *s: torch.randn(*s, dtype=torch.bfloat16) * 0.05)(B, S, Dm)), 'mem0': _w((lambda *s: torch.randn(*s, dtype=torch.bfloat16) * 0.2)(B, M, Dm)), 'Wq': _w((lambda *s: torch.randn(*s, dtype=torch.bfloat16) * 1.6)(Dm, H, Dh) * Dm ** (-0.5)), 'Wk': _w((lambda *s: torch.randn(*s, dtype=torch.bfloat16) * 1.6)(Dm, H, Dh) * Dm ** (-0.5)), 'Wv': _w((lambda *s: torch.randn(*s, dtype=torch.bfloat16) * 0.2)(Dm, H, Dh) * Dm ** (-0.5)), 'Wo': _w((lambda *s: torch.randn(*s, dtype=torch.bfloat16) * 0.2)(H, Dh, Dm) * (H * Dh) ** (-0.5)), 'seg_len': seg}
    _A_in = _A_setup()

    def _B_setup():
        B, S, D, F = (1, 2048, 576, 4608)
        return {'x': _w((lambda *s: torch.randn(*s, dtype=torch.bfloat16) * 0.05)(B, S, D)), 'w1': _w((lambda *s: torch.randn(*s, dtype=torch.bfloat16) * 0.8)(D, D) * D ** (-0.5)), 'w2': _w((lambda *s: torch.randn(*s, dtype=torch.bfloat16) * 0.8)(D, D) * D ** (-0.5)), 'w3': _w((lambda *s: torch.randn(*s, dtype=torch.bfloat16) * 0.8)(D, F) * D ** (-0.5)), 'w4': _w((lambda *s: torch.randn(*s, dtype=torch.bfloat16) * 0.8)(F, D) * F ** (-0.5))}
    _B_in = _B_setup()
    return {'A_x': _A_in['x'], 'A_mem0': _A_in['mem0'], 'A_Wq': _A_in['Wq'], 'A_Wk': _A_in['Wk'], 'A_Wv': _A_in['Wv'], 'A_Wo': _A_in['Wo'], 'A_seg_len': _A_in['seg_len'], 'B_x': _B_in['x'], 'B_w1': _B_in['w1'], 'B_w2': _B_in['w2'], 'B_w3': _B_in['w3'], 'B_w4': _B_in['w4']}

def reference(A_x, A_mem0, A_Wq, A_Wk, A_Wv, A_Wo, A_seg_len, B_x, B_w1, B_w2, B_w3, B_w4):

    def _A_ref(x, mem0, Wq, Wk, Wv, Wo, seg_len):
        B, S, Dm = x.shape
        H, Dh = (Wq.shape[1], Wq.shape[2])
        M = mem0.shape[1]
        scale = Dh ** (-0.5)
        n_seg = S // seg_len
        L = M + seg_len
        idx = torch.arange(L)
        mask = (idx[:, None] < M) | (idx[:, None] >= idx[None, :])
        mem = mem0
        outs = []
        for s in range(n_seg):
            xs = x[:, s * seg_len:(s + 1) * seg_len, :].clone()
            h = torch.concatenate([mem, xs], axis=1)
            q = torch.einsum('btd,dhe->bhte', h, Wq)
            k = torch.einsum('btd,dhe->bhte', h, Wk)
            v = torch.einsum('btd,dhe->bhte', h, Wv)
            scores = torch.einsum('bhqe,bhke->bhqk', q, k) * scale
            scores = torch.where(mask[None, None], scores, -1000000000.0)
            p = _softmax(scores, axis=-1)
            o = torch.einsum('bhqk,bhke->bhqe', p, v)
            o = torch.einsum('bhte,hed->btd', o, Wo)
            mem = o[:, :M, :].clone()
            outs.append(o[:, M:, :])
        return torch.concatenate(outs, axis=1)

    def _B_ref(x, w1, w2, w3, w4):
        B, S, D = x.shape
        h = _gelu(_layernorm(x, axis=-1) @ w1)
        c = D // 4
        g0 = _pad(h[:, :, 0 * c:1 * c], ((0, 0), (1, 0), (0, 0)))[:, :S, :]
        g1 = _pad(h[:, :, 1 * c:2 * c], ((0, 0), (0, 1), (0, 0)))[:, 1:, :]
        g2 = _pad(h[:, :, 2 * c:3 * c], ((0, 0), (2, 0), (0, 0)))[:, :S, :]
        g3 = _pad(h[:, :, 3 * c:], ((0, 0), (0, 2), (0, 0)))[:, 2:, :]
        hs = torch.concatenate([g0, g1, g2, g3], axis=-1) @ w2
        x1 = x + hs
        h2 = _gelu(_layernorm(x1, axis=-1) @ w3) @ w4
        return x1 + h2
    x = A_x
    h = x + _A_ref(_layernorm(x, axis=-1), A_mem0, A_Wq, A_Wk, A_Wv, A_Wo, A_seg_len)
    h2 = h + _B_ref(_layernorm(h, axis=-1), B_w1, B_w2, B_w3, B_w4)
    return h2
```

```python
import re

class Asm:
    def __init__(self):
        self.lines = []
        self._lab = 0
    def __call__(self, s):
        for ln in s.split("\n"):
            ln = ln.strip()
            if ln: self.lines.append(ln)
    def c(self, s):
        self.lines.append("; " + s)
    def label(self, name):
        self.lines.append(name + ":")
    _glab = [0]
    def newlab(self, base):
        Asm._glab[0] += 1
        return "L_%s_%d" % (base, Asm._glab[0])
    def text(self):
        out = []
        for ln in self.lines:
            if ln.endswith(":") or ln.startswith("."): out.append(ln)
            else: out.append("  " + ln)
        return "\n".join(out) + "\n"
    def mark(self): return len(self.lines)

def v(n, cnt=1):
    return "v%d" % n if cnt == 1 else "v[%d:%d]" % (n, n + cnt - 1)
def a(n, cnt=1):
    return "a%d" % n if cnt == 1 else "a[%d:%d]" % (n, n + cnt - 1)
def s(n, cnt=1):
    return "s%d" % n if cnt == 1 else "s[%d:%d]" % (n, n + cnt - 1)
def R(spec, cnt=None):
    k, n = spec
    return (v if k == 'v' else a)(n, cnt or 1)

_reg_re = re.compile(r"\b([vas])(\d+)\b|\b([vas])\[(\d+):(\d+)\]")
def regs_of(op):
    op = op.strip()
    out = set()
    m = re.fullmatch(r"-?\|?(?:abs\()?([vas])(\d+)\)?\|?", op)
    if m: return {(m.group(1), int(m.group(2)))}
    m = re.fullmatch(r"-?([vas])\[(\d+):(\d+)\]", op)
    if m: return {(m.group(1), i) for i in range(int(m.group(2)), int(m.group(3)) + 1)}
    if op == "vcc": return {('s', 'vcc')}
    if op in ("vcc_lo", "vcc_hi"): return {('s', 'vcc')}
    if op in ("exec", "exec_lo", "exec_hi"): return {('s', 'exec')}
    if op == "m0": return {('s', 'm0')}
    return out

TRANS = ("v_exp_f32", "v_log_f32", "v_rcp_f32", "v_rsq_f32", "v_sqrt_f32", "v_sin_f32", "v_cos_f32", "v_rcp_iflag_f32")

class Ins:
    __slots__ = ("text", "mn", "ops", "mods", "dst", "src", "kind", "passes", "srcC", "lineno", "states", "dpp", "wide_store_data", "sdst", "srcAB")
    def __repr__(self): return self.text

def split_ops(rest):
    ops = []; depth = 0; cur = ""
    for ch in rest:
        if ch == "[": depth += 1
        if ch == "]": depth -= 1
        if ch == "," and depth == 0:
            ops.append(cur.strip()); cur = ""
        else: cur += ch
    if cur.strip(): ops.append(cur.strip())
    return ops

def parse(text, lineno=0):
    t = text.split(";")[0].strip()
    if not t or t.endswith(":") or t.startswith("."): return None
    I = Ins(); I.text = t; I.lineno = lineno
    parts = t.split(None, 1)
    mn = parts[0]; rest = parts[1] if len(parts) > 1 else ""
    for suf in ("_e32", "_e64"):
        if mn.endswith(suf): mn = mn[:-len(suf)]
    I.mn = mn
    ops = split_ops(rest)
    mods = ""
    if ops:
        last = ops[-1].split(None, 1)
        if len(last) > 1 and not last[0].startswith("hwreg"):
            ops[-1] = last[0]; mods = last[1]
    I.ops = ops; I.mods = mods
    I.dst = set(); I.src = set(); I.kind = "other"; I.passes = 0; I.srcC = set(); I.srcAB = set()
    I.states = 1; I.dpp = ("dpp" in mn) or ("quad_perm" in mods) or ("row_" in mods); I.wide_store_data = set(); I.sdst = set()
    r = [regs_of(o) for o in ops]
    def U(lst):
        o = set()
        for x in lst: o |= x
        return o
    if mn == "s_nop":
        I.kind = "nop"; I.states = int(ops[0], 0) + 1
    elif mn == "s_waitcnt":
        I.kind = "wait"; I.mods = rest
    elif mn in ("s_barrier", "s_endpgm", "s_sleep", "s_setprio", "s_branch") or mn.startswith("s_cbranch"):
        I.kind = "salu"
        if mn in ("s_cbranch_vccz", "s_cbranch_vccnz"): I.src = {('s', 'vcc')}
        if mn in ("s_cbranch_execz", "s_cbranch_execnz"): I.src = {('s', 'exec')}
    elif mn.startswith("v_smfmac"):
        I.kind = "mfma"; I.passes = 4 if "16x16" in mn else 8
        I.dst = r[0]; I.srcC = r[0]; I.srcAB = r[1] | r[2] | r[3]; I.src = I.srcC | I.srcAB
    elif mn.startswith("v_mfma"):
        I.kind = "mfma"; I.passes = 4 if "16x16" in mn else 8
        I.dst = r[0]; I.srcAB = r[1] | r[2]; I.srcC = r[3]; I.src = I.srcAB | I.srcC
    elif mn.startswith("v_cmp"):
        I.kind = "valu"; I.dst = r[0]; I.sdst = r[0]; I.src = U(r[1:])
    elif mn in ("v_readfirstlane_b32", "v_readlane_b32"):
        I.kind = "valu"; I.dst = r[0]; I.sdst = r[0]; I.src = U(r[1:])
    elif mn.startswith("v_permlane"):
        I.kind = "valu"; I.dst = r[0] | r[1]; I.src = r[0] | r[1]
    elif mn in ("v_add_co_u32", "v_sub_co_u32", "v_addc_co_u32", "v_subb_co_u32"):
        I.kind = "valu"; I.dst = r[0] | r[1]; I.sdst = r[1]; I.src = U(r[2:])
    elif mn.startswith("v_"):
        I.kind = "valu"; I.dst = r[0]; I.src = U(r[1:])
        if mn.startswith("v_fmac") or mn.startswith("v_dot2c") or mn in ("v_writelane_b32",) or "pk_fmac" in mn: I.src |= r[0]
        if mn.startswith("v_cndmask") and len(ops) == 3: I.src |= {('s', 'vcc')}
        if I.dpp: I.src |= r[0]
        if mn in TRANS: I.kind = "trans"
    elif mn.startswith("ds_read") or mn.startswith("ds_bpermute") or mn.startswith("ds_permute") or mn.startswith("ds_swizzle"):
        I.kind = "dsr"; I.dst = r[0]; I.src = U(r[1:])
    elif mn.startswith("ds_"):
        I.kind = "dsw"; I.src = U(r)
    elif mn.startswith("global_load_lds") :
        I.kind = "vmld"; I.src = U(r) | {('s', 'm0')}
    elif mn.startswith("global_load"):
        I.kind = "vmld"; I.dst = r[0]; I.src = U(r[1:])
    elif mn.startswith("buffer_load"):
        if " lds" in (" " + mods) or mods.endswith("lds"):
            I.kind = "vmld"; I.src = U(r) | {('s', 'm0')}
        else:
            I.kind = "vmld"; I.dst = r[0]; I.src = U(r[1:])
    elif mn.startswith("global_store"):
        I.kind = "vmst"; I.src = U(r)
        if "x3" in mn or "x4" in mn: I.wide_store_data = r[1]
    elif mn.startswith("buffer_store"):
        I.kind = "vmst"; I.src = U(r)
        if "x3" in mn or "x4" in mn: I.wide_store_data = r[0]
    elif mn.startswith("global_atomic"):
        if "sc0" in mods:
            I.kind = "vmld"; I.dst = r[0]; I.src = U(r[1:])
        else:
            I.kind = "vmst"; I.src = U(r)
    elif mn.startswith("buffer_atomic"):
        I.kind = "vmld" if "sc0" in mods else "vmst"; I.src = U(r)
        if "sc0" in mods: I.dst = r[0]
    elif mn.startswith("buffer_wbl2") or mn.startswith("buffer_inv"):
        I.kind = "vmst"
    elif mn.startswith("s_load") or mn in ("s_memtime", "s_memrealtime"):
        I.kind = "smem"; I.dst = r[0]; I.src = U(r[1:])
    elif mn.startswith("s_cmp") or mn.startswith("s_bitcmp"):
        I.kind = "salu"; I.src = U(r); I.dst = {('s', 'scc')}
    elif mn.startswith("s_"):
        I.kind = "salu"; I.dst = r[0] if r else set(); I.src = U(r[1:])
        if mn.endswith("saveexec_b64"): I.dst |= {('s', 'exec')}; I.src |= {('s', 'exec')}
        if mn in ("s_getreg_b32",): I.src = set()
    else:
        raise ValueError("unknown instr: " + t)
    return I

def isv(x): return x[0] in ('v', 'a')

def lint(lines, name="", verbose=True, assume_clean_start=True):
    ins = []
    skip = False
    for n, ln in enumerate(lines):
        if ln.startswith("; lint-skip-begin"): skip = True
        if ln.startswith("; lint-skip-end"): skip = False
        if skip: continue
        I = parse(ln, n)
        if I is not None: ins.append(I)
    probs = []
    vm = []
    lg = []
    hist = []
    def dist_check(I):
        d = 0
        for P in reversed(hist):
            need = 0; why = ""
            Pd = P.dst
            valuP = P.kind in ("valu", "trans")
            vI = {x for x in I.src if isv(x)}
            if valuP and I.kind == "mfma":
                if {x for x in Pd if isv(x)} & I.src: need, why = 2, "VALU->MFMA"
            if P.kind == "mfma":
                n_use = 8 if P.passes == 4 else 12
                D = P.dst
                if I.kind == "mfma":
                    if D & I.srcAB: need, why = n_use, "MFMA D->MFMA A/B"
                    elif D & I.srcC:
                        if not (I.srcC == D and I.passes == P.passes and I.mn == P.mn): need, why = (6 if P.passes == 4 else 10), "MFMA D->overlap C"
                elif I.kind in ("valu", "trans"):
                    if D & (I.src | I.dst): need, why = n_use, "MFMA D->VALU"
                    elif P.srcC & I.dst: need, why = (3 if P.passes == 4 else 7), "MFMA C WAR"
                elif I.kind in ("dsr", "dsw", "vmld", "vmst"):
                    if D & (I.src | I.dst): need, why = n_use, "MFMA D->MEM"
            if valuP:
                pv = {x for x in Pd if isv(x)}
                ps = P.sdst
                if I.mn.startswith("v_permlane") and pv & I.src: need, why = max(need, 2), "VALU->permlane"
                if I.dpp and I.kind in ("valu", "trans") and pv & I.src: need, why = max(need, 2), "VALU->DPP"
                if I.mn in ("v_readfirstlane_b32", "v_readlane_b32") and pv & I.src: need, why = max(need, 1), "VALU->readlane"
                if P.kind == "trans" and I.kind == "valu" and pv & I.src: need, why = max(need, 1), "trans->VALU"
                if P.kind == "trans" and I.kind in ("mfma",) and pv & I.src: need, why = max(need, 2), "trans->MFMA"
                if ps:
                    if I.kind in ("valu", "trans") and ps & I.src: need, why = max(need, 2), "VALU sgpr->VALU"
                    if I.kind in ("vmld", "vmst") and ps & I.src: need, why = max(need, 5), "VALU sgpr->VMEM"
                    if I.kind == "salu" and (ps & I.src) and not I.mn.startswith("s_cbranch"): need, why = max(need, 1), "VALU sgpr->SALU(pad)"
            if P.kind == "vmst" and P.wide_store_data and (P.wide_store_data & I.dst):
                need, why = max(need, 2 if I.kind in ("valu", "trans") else 1), "wide store WAR"
            if P.kind == "salu" and ('s', 'm0') in P.dst and ('s', 'm0') in I.src and I.kind == "vmld": need, why = max(need, 1), "m0->DMA"
            if need > d:
                probs.append("%s HAZARD %s need %d have %d:\n    [%d] %s\n    [%d] %s" % (name, why, need, d, P.lineno, P.text, I.lineno, I.text))
            d += P.states
            if d > 20: break
    for I in ins:
        if I.kind == "wait":
            m = re.search(r"vmcnt\((\d+)\)", I.mods)
            if m:
                n = int(m.group(1))
                while len(vm) > n: vm.pop(0)
            m = re.search(r"lgkmcnt\((\d+)\)", I.mods)
            if m:
                n = int(m.group(1))
                if any(x.kind == "smem" for x in lg) and n > 0:
                    probs.append("%s lgkmcnt(%d) with SMEM outstanding [%d]" % (name, n, I.lineno))
                while len(lg) > n: lg.pop(0)
            hist.append(I); continue
        touched = (I.src | I.dst)
        for P in vm + lg:
            ov = P.dst & touched
            if ov and not (P.kind == I.kind and I.kind in ("vmld",) and not (P.dst & I.src)) and not (P.kind == "dsr" and I.kind == "dsr" and not (P.dst & I.src)):
                probs.append("%s PENDING reg %s:\n    [%d] %s\n    [%d] %s" % (name, sorted(ov)[:3], P.lineno, P.text, I.lineno, I.text))
        dist_check(I)
        if I.kind in ("vmld", "vmst"):
            vm.append(I)
            if len(vm) > 63: probs.append("%s vmcnt overflow at [%d]" % (name, I.lineno))
        if I.kind in ("dsr", "dsw", "smem"):
            lg.append(I)
            if I.kind == "smem" and (I.mn != "s_load_dword"): lg.append(I)
        hist.append(I)
        if len(hist) > 40: hist.pop(0)
    if verbose:
        for p in probs[:50]: print(p)
        print("lint %s: %d instrs, %d problems" % (name, len(ins), len(probs)))
    return probs
```

```python
from asmlib import *
from layout import *

HDR = '.amdgcn_target "amdgcn-amd-amdhsa--gfx950"\n.text\n'

KA = dict(x=0, mem0=8, Wq=16, Wk=24, Wv=32, Wo=40, seg=48, Bx=56, w1=64, w2=72, w3=80, w4=88, out=96, dbg=104, ws=112)
SZ = dict(x=2048*576*2, mem0=8*576*2, Wq=576*4096*2, Wk=576*4096*2, Wv=576*4096*2, Wo=4096*576*2,
          w1=576*576*2, w2=576*576*2, w3=576*4608*2, w4=4608*576*2, out=2048*576*2, dbg=256, ws=WS_BYTES)

def kdesc(name, vgpr=512, acc=256, sgpr=102):
    return r'''.p2align 6
.amdhsa_kernel {name}
  .amdhsa_next_free_vgpr {vgpr}
  .amdhsa_next_free_sgpr {sgpr}
  .amdhsa_accum_offset {acc}
  .amdhsa_group_segment_fixed_size 0
  .amdhsa_kernarg_size 120
  .amdhsa_user_sgpr_count 2
  .amdhsa_user_sgpr_kernarg_segment_ptr 1
  .amdhsa_system_sgpr_workgroup_id_x 1
.end_amdhsa_kernel
'''.format(name=name, vgpr=vgpr, acc=acc, sgpr=sgpr)

def kstart(A, name):
    A(".globl %s" % name)
    A(".p2align 8")
    A(".type %s,@function" % name)
    A.label(name)

def load_srd(A, sreg, what):
    A("s_load_dwordx2 %s, s[0:1], %d" % (s(sreg, 2), KA[what]))
    A("s_mov_b32 %s, 0x%x" % (s(sreg + 2), SZ[what]))
    A("s_mov_b32 %s, 0x00020000" % s(sreg + 3))
    A("s_waitcnt lgkmcnt(0)")
    A("s_and_b32 %s, %s, 0xffff" % (s(sreg + 1), s(sreg + 1)))

SPIN_MAX = 1 << 18

def emit_election(A, sDBG, sVX, sVT, sFAST, sBYTE, tmp, fail_label, nwg=256):
    t = tmp
    A("s_getreg_b32 %s, hwreg(HW_REG_XCC_ID, 0, 4)" % s(sBYTE))
    A("s_or_b32 %s, %s, 0x80" % (s(sBYTE), s(sBYTE)))
    A("v_mov_b32 v1, s2")
    A("v_mov_b32 v2, %s" % s(sBYTE))
    A("v_cmp_eq_u32 vcc, 0, v0")
    A("s_mov_b64 %s, exec" % s(t, 2))
    A("s_and_b64 exec, exec, vcc")
    skip = A.newlab("el_st")
    A("s_cbranch_execz %s" % skip)
    A("buffer_store_byte v2, v1, %s, 0 offen sc1" % s(sDBG, 4))
    A.label(skip)
    A("s_mov_b64 exec, %s" % s(t, 2))
    A("v_and_b32 v3, 63, v0")
    A("v_lshlrev_b32 v4, 2, v3")
    A("s_mov_b32 %s, %d" % (s(t + 2), SPIN_MAX))
    lp = A.newlab("el_poll"); ok = A.newlab("el_ok")
    A.label(lp)
    A("buffer_load_dword v5, v4, %s, 0 offen sc1" % s(sDBG, 4))
    A("s_waitcnt vmcnt(0)")
    A("v_and_b32 v6, 0x80808080, v5")
    A("v_cmp_ne_u32 vcc, 0x80808080, v6")
    A("s_cbranch_vccz %s" % ok)
    A("s_sleep 2")
    A("s_sub_u32 %s, %s, 1" % (s(t + 2), s(t + 2)))
    A("s_cmp_lg_u32 %s, 0" % s(t + 2))
    A("s_cbranch_scc1 %s" % lp)
    A("s_branch %s" % fail_label)
    A.label(ok)
    A("s_and_b32 %s, %s, 15" % (s(t + 3), s(sBYTE)))
    A("s_mov_b32 %s, 0" % s(t + 4))
    A("s_mov_b32 %s, 1" % s(sFAST))
    for b in range(4):
        A("v_bfe_u32 v6, v5, %d, 4" % (8 * b))
        A("v_lshl_add_u32 v7, v3, 2, %d" % b)
        A("v_cmp_eq_u32 %s, %s, v6" % (s(t + 6, 2), s(t + 3)))
        A("v_cmp_gt_u32 vcc, s2, v7")
        A("s_nop 1")
        A("s_and_b64 %s, %s, vcc" % (s(t + 6, 2), s(t + 6, 2)))
        A("s_bcnt1_i32_b64 %s, %s" % (s(t + 8), s(t + 6, 2)))
        A("s_add_u32 %s, %s, %s" % (s(t + 4), s(t + 4), s(t + 8)))
    for x in range(8):
        A("s_mov_b32 %s, 0" % s(t + 9))
        for b in range(4):
            A("v_bfe_u32 v6, v5, %d, 4" % (8 * b))
            A("v_cmp_eq_u32 vcc, %d, v6" % x)
            A("s_nop 1")
            A("s_bcnt1_i32_b64 %s, vcc" % s(t + 8))
            A("s_add_u32 %s, %s, %s" % (s(t + 9), s(t + 9), s(t + 8)))
        A("s_cmp_eq_u32 %s, 32" % s(t + 9))
        A("s_cselect_b32 %s, %s, 0" % (s(sFAST), s(sFAST)))
    A("s_lshr_b32 %s, s2, 5" % s(t + 8))
    A("s_cmp_eq_u32 %s, 1" % s(sFAST))
    A("s_cselect_b32 %s, %s, %s" % (s(sVX), s(t + 3), s(t + 8)))
    A("s_and_b32 %s, s2, 31" % s(t + 8))
    A("s_cmp_eq_u32 %s, 1" % s(sFAST))
    A("s_cselect_b32 %s, %s, %s" % (s(sVT), s(t + 4), s(t + 8)))
```

```python
from gen_common import *
import struct
def f2u(x): return struct.unpack("<I", struct.pack("<f", x))[0]

gWS, gX, gDBG = 4, 8, 12
gSRD = dict(Wk=64, Wv=68, Wq=72)
gTG, gWV, gCG, gBYTE = 16, 17, 18, 22
gT = 24
gI, gU, gKIND, gOUT, gCOL = 40, 41, 42, 43, 44
gW = 76
def xf(tt, ks):
    i = tt * 18 + ks
    return ('a', 4 * i) if i < 64 else ('v', 224 + 4 * (i - 64))
ACC = 96
WF = [160, 176]
vGL16, vGX, vGD0, vGD1, vGT = 1, 2, 3, 4, 5
STG = [64, 136]
def RX(spec, cnt=4): return R(spec, cnt)
SLAB = 73728

def ln_scalars(A, vsum, vsq, n, vrs, vnm):
    A("v_mul_f32 v%d, 0x%x, v%d" % (vsum, f2u(1.0 / n), vsum))
    A("v_mul_f32 v%d, 0x%x, v%d" % (vsq, f2u(1.0 / n), vsq))
    A("v_fma_f32 v%d, -v%d, v%d, v%d" % (vsq, vsum, vsum, vsq))
    A("v_max_f32 v%d, 0, v%d" % (vsq, vsq))
    def rb(r):
        A("v_cvt_pk_bf16_f32 v%d, v%d, v%d" % (r, r, r)); A("v_lshlrev_b32 v%d, 16, v%d" % (r, r))
    rb(vsum); rb(vsq)
    A("v_add_f32 v%d, 0x%x, v%d" % (vsq, f2u(1e-5), vsq)); rb(vsq)
    A("v_sqrt_f32 v%d, v%d" % (vsq, vsq)); A("s_nop 0"); rb(vsq)
    A("v_rcp_f32 v%d, v%d" % (vrs, vsq)); A("s_nop 0")
    A("v_mul_f32 v%d, v%d, v%d" % (vnm, vsum, vrs))
    A("v_sub_f32 v%d, 0, v%d" % (vnm, vnm))
    A("v_mov_b32 v%d, v%d" % (vrs + 1, vrs)); A("v_mov_b32 v%d, v%d" % (vnm + 1, vnm))

def emit_g_ln(A):
    A.c("=== G: load x fragments + LayerNorm")
    load_srd(A, gX, "x")
    A("v_and_b32 v6, 63, v0")
    A("v_lshlrev_b32 v%d, 4, v6" % vGL16)
    A("v_and_b32 v9, 15, v6")
    A("v_lshrrev_b32 v8, 4, v6")
    A("v_mul_u32_u24 v7, 1152, v9")
    A("v_lshl_add_u32 v%d, v8, 4, v7" % vGX)
    A("s_lshl_b32 %s, %s, 8" % (s(gT), s(gTG)))
    A("s_lshl_b32 %s, %s, 6" % (s(gT + 1), s(gWV)))
    A("s_add_u32 %s, %s, %s" % (s(gT), s(gT), s(gT + 1)))
    A("s_mul_i32 %s, %s, 1152" % (s(gT), s(gT)))
    def ldtile(tt):
        A("s_add_u32 %s, %s, %d" % (s(gT + 2), s(gT), tt * 16 * 1152))
        for ks in range(18):
            A("buffer_load_dwordx4 %s, v%d, %s, %s offen offset:%d" % (v(STG[tt & 1] + 4 * ks, 4), vGX, s(gX, 4), s(gT + 2), ks * 64))
    ldtile(0); ldtile(1)
    for i in range(4): A("v_mov_b32 v%d, 0x3f803f80" % (16 + i))
    A("v_lshrrev_b32 v10, 2, v9")
    A("v_and_b32 v11, 3, v9")
    for tt in range(4):
        A("s_waitcnt vmcnt(%d)" % (18 if tt < 3 else 0))
        st = STG[tt & 1]
        for ks in range(18):
            x = v(st + 4 * ks, 4)
            A("v_mfma_f32_16x16x32_bf16 v[20:23], v[16:19], %s, %s" % (x, "0" if ks == 0 else "v[20:23]"))
            A("v_mfma_f32_16x16x32_bf16 v[24:27], %s, %s, %s" % (x, x, "0" if ks == 0 else "v[24:27]"))
        A("s_nop 7")
        A("v_cmp_eq_u32 vcc, 1, v11"); A("s_nop 1"); A("v_cndmask_b32 v28, v24, v25, vcc")
        A("v_cmp_eq_u32 vcc, 2, v11"); A("s_nop 1"); A("v_cndmask_b32 v28, v28, v26, vcc")
        A("v_cmp_eq_u32 vcc, 3, v11"); A("s_nop 1"); A("v_cndmask_b32 v28, v28, v27, vcc")
        A("v_cmp_eq_u32 vcc, v8, v10"); A("s_nop 1"); A("v_cndmask_b32 v28, 0, v28, vcc")
        A("v_mov_b32 v29, v28"); A("s_nop 1"); A("v_permlane16_swap_b32 v28, v29"); A("v_add_f32 v28, v28, v29")
        A("v_mov_b32 v29, v28"); A("s_nop 1"); A("v_permlane32_swap_b32 v28, v29"); A("v_add_f32 v28, v28, v29")
        ln_scalars(A, 20, 28, 576, 30, 32)
        for ks in range(18):
            sp = xf(tt, ks); src = st + 4 * ks
            for d in range(4):
                A("v_lshlrev_b32 v%d, 16, v%d" % (40 + 2 * d, src + d))
                A("v_and_b32 v%d, 0xffff0000, v%d" % (41 + 2 * d, src + d))
            for d in range(4): A("v_pk_fma_f32 v[%d:%d], v[%d:%d], v[30:31], v[32:33]" % (40 + 2 * d, 41 + 2 * d, 40 + 2 * d, 41 + 2 * d))
            if sp[0] == 'a':
                for d in range(4): A("v_cvt_pk_bf16_f32 v%d, v%d, v%d" % (36 + d, 40 + 2 * d, 41 + 2 * d))
                for d in range(4): A("v_accvgpr_write_b32 a%d, v%d" % (sp[1] + d, 36 + d))
            else:
                for d in range(4): A("v_cvt_pk_bf16_f32 v%d, v%d, v%d" % (sp[1] + d, 40 + 2 * d, 41 + 2 * d))
        if tt + 2 < 4: ldtile(tt + 2)

def emit_g_consts(A):
    A("v_and_b32 v6, 63, v0")
    A("v_lshrrev_b32 v7, 3, v6")
    A("v_and_b32 v8, 7, v6")
    A("v_bfe_u32 v9, v7, 1, 1")
    A("v_lshlrev_b32 v9, 1, v9")
    A("v_xor_b32 v8, v8, v9")
    A("v_lshlrev_b32 v8, 4, v8")
    A("v_lshlrev_b32 v7, 13, v7")
    A("v_add_u32 v%d, v7, v8" % vGD0)
    A("v_xor_b32 v%d, 64, v%d" % (vGD1, vGD0))
    A("v_lshrrev_b32 v7, 4, v6")
    A("v_bfe_u32 v8, v6, 2, 2")
    A("v_lshl_add_u32 v9, v7, 3, v8")
    A("v_lshlrev_b32 v9, 7, v9")
    A("v_lshrrev_b32 v10, 1, v8")
    A("v_and_b32 v11, 1, v7")
    A("v_lshl_or_b32 v10, v11, 1, v10")
    A("v_lshl_add_u32 v9, v10, 5, v9")
    A("v_and_b32 v10, 3, v6")
    A("v_lshl_add_u32 v%d, v10, 3, v9" % vGT)

GTRACE = None
def emit_g_gemm(A, nrounds=7, kvflag=None, fail=None):
    A.c("=== G: unit loop")
    for nm, r in gSRD.items(): load_srd(A, r, nm)
    emit_g_consts(A)
    A("s_lshl_b32 %s, %s, 10" % (s(gT + 10), s(gWV)))
    def pickW(ureg):
        A("s_lshr_b32 %s, %s, 6" % (s(gT + 4), s(ureg)))
        for d in range(4):
            A("s_cmp_eq_u32 %s, 1" % s(gT + 4))
            A("s_cselect_b32 %s, %s, %s" % (s(gW + d), s(gSRD["Wv"] + d), s(gSRD["Wk"] + d)))
            A("s_cmp_eq_u32 %s, 2" % s(gT + 4))
            A("s_cselect_b32 %s, %s, %s" % (s(gW + d), s(gSRD["Wq"] + d), s(gW + d)))
        A("s_mov_b32 %s, 0x00020000" % s(gW + 3))
        A("s_and_b32 %s, %s, 63" % (s(gT + 5), s(ureg)))
        A("s_lshl_b32 %s, %s, 7" % (s(gT + 5), s(gT + 5)))
    def dma(j, par):
        A("s_add_u32 m0, %s, %d" % (s(gT + 10), par * SLAB + j * 4096))
        A("s_lshl_b32 %s, %s, 16" % (s(gT + 6), s(gWV)))
        A("s_add_u32 %s, %s, %d" % (s(gT + 6), s(gT + 6), j * 4 * 65536))
        A("s_add_u32 %s, %s, %s" % (s(gT + 6), s(gT + 6), s(gT + 5)))
        A("buffer_load_dwordx4 v12, %s, %s offen lds" % (s(gW, 4), s(gT + 6)))
    A("s_and_b32 %s, %s, 1" % (s(gT + 4), s(gWV)))
    A("s_cmp_eq_u32 %s, 1" % s(gT + 4))
    A("s_cselect_b64 vcc, -1, 0")
    A("v_cndmask_b32 v12, v%d, v%d, vcc" % (vGD0, vGD1))
    A("s_mov_b32 %s, 0" % s(gI))
    A("s_mov_b32 %s, %s" % (s(gU), s(gCG)))
    pickW(gU)
    for j in range(18): dma(j, 0)
    A("s_waitcnt vmcnt(0)")
    top = A.newlab("g_top"); fin = A.newlab("g_fin")
    marks = []
    for par in range(2):
        if par == 0: A.label(top)
        m0 = A.mark()
        A("s_waitcnt vmcnt(8)")
        A("s_barrier")
        if GTRACE: GTRACE(A, "ready")
        A("s_add_u32 %s, %s, 28" % (s(gT + 7), s(gU)))
        nonext = A.newlab("g_nonext")
        A("s_cmp_lt_u32 %s, 192" % s(gT + 7))
        A("s_cselect_b32 %s, 1, 0" % s(gT + 8))
        A("s_cselect_b32 %s, %s, %s" % (s(gT + 9), s(gT + 7), s(gU)))
        pickW(gT + 9)
        A("s_lshr_b32 %s, %s, 6" % (s(gKIND), s(gU)))
        isv = A.newlab("g_isv"); join = A.newlab("g_join")
        def body(vorient):
            def rd1(ks, buf, idx):
                ct, half = idx >> 1, idx & 1
                A("ds_read_b64_tr_b16 %s, v%d offset:%d" % (v(buf + 4 * ct + 2 * half, 2), TR[ct], OFF(ks, half)))
            for idx in range(8): rd1(0, WF[0], idx)
            for ks in range(18):
                A("s_waitcnt lgkmcnt(0)")
                if ks == 8:
                    for ct in range(4): A("v_add_u32 v%d, %d, v%d" % (TR[ct], 9 * 4096, TR[ct]))
                wb = WF[ks & 1]
                n = 0
                for tt in range(4):
                    for ct in range(4):
                        acc = ACC + 4 * (tt * 4 + ct)
                        c_in = "0" if ks == 0 else v(acc, 4)
                        if vorient: A("v_mfma_f32_16x16x32_bf16 %s, %s, %s, %s" % (v(acc, 4), RX(xf(tt, ks)), v(wb + 4 * ct, 4), c_in))
                        else: A("v_mfma_f32_16x16x32_bf16 %s, %s, %s, %s" % (v(acc, 4), v(wb + 4 * ct, 4), RX(xf(tt, ks)), c_in))
                        if n < 8 and ks + 1 < 18: rd1(ks + 1, WF[(ks + 1) & 1], n)
                        if n == 10: dma(ks, par ^ 1)
                        n += 1
            A("s_nop 7")
            if not vorient:
                for tt in range(4):
                    for a_ in range(2):
                        t0, t1 = ACC + 4 * (tt * 4 + 2 * a_), ACC + 4 * (tt * 4 + 2 * a_ + 1)
                        d = 40 + 4 * ((tt * 2 + a_) & 3)
                        A("v_cvt_pk_bf16_f32 v%d, v%d, v%d" % (d, t0, t0 + 1)); A("v_cvt_pk_bf16_f32 v%d, v%d, v%d" % (d + 1, t0 + 2, t0 + 3))
                        A("v_cvt_pk_bf16_f32 v%d, v%d, v%d" % (d + 2, t1, t1 + 1)); A("v_cvt_pk_bf16_f32 v%d, v%d, v%d" % (d + 3, t1 + 2, t1 + 3))
                        A("s_add_u32 %s, %s, %d" % (s(gT + 6), s(gOUT), (tt >> 1) * 262144 + a_ * 2048 + (tt & 1) * 1024))
                        A("buffer_store_dwordx4 %s, v%d, %s, %s offen sc1" % (v(d, 4), vGL16, s(gWS, 4), s(gT + 6)))
            else:
                for sg in range(2):
                    for ct in range(4):
                        t0, t1 = ACC + 4 * ((2 * sg) * 4 + ct), ACC + 4 * ((2 * sg + 1) * 4 + ct)
                        d = 40 + 4 * ((sg * 4 + ct) & 3)
                        A("v_cvt_pk_bf16_f32 v%d, v%d, v%d" % (d, t0, t0 + 1)); A("v_cvt_pk_bf16_f32 v%d, v%d, v%d" % (d + 1, t0 + 2, t0 + 3))
                        A("v_cvt_pk_bf16_f32 v%d, v%d, v%d" % (d + 2, t1, t1 + 1)); A("v_cvt_pk_bf16_f32 v%d, v%d, v%d" % (d + 3, t1 + 2, t1 + 3))
                        A("s_add_u32 %s, %s, %d" % (s(gT + 6), s(gOUT), sg * 262144 + (ct >> 1) * 2048 + (ct & 1) * 1024))
                        A("buffer_store_dwordx4 %s, v%d, %s, %s offen sc1" % (v(d, 4), vGL16, s(gWS, 4), s(gT + 6)))
        A("s_and_b32 %s, %s, 63" % (s(gT + 4), s(gU)))
        A("s_lshl_b32 %s, %s, 12" % (s(gOUT), s(gT + 4)))
        A("s_lshl_b32 %s, %s, 3" % (s(gT + 4), s(gTG)))
        A("s_lshl_b32 %s, %s, 1" % (s(gT + 6), s(gWV)))
        A("s_add_u32 %s, %s, %s" % (s(gT + 4), s(gT + 4), s(gT + 6)))
        A("s_lshl_b32 %s, %s, 18" % (s(gT + 4), s(gT + 4)))
        A("s_add_u32 %s, %s, %s" % (s(gOUT), s(gOUT), s(gT + 4)))
        A("s_lshl_b32 %s, %s, 24" % (s(gT + 4), s(gKIND)))
        A("s_add_u32 %s, %s, %s" % (s(gOUT), s(gOUT), s(gT + 4)))
        TR = [13, 14, 15, 6]
        big = par * SLAB
        for ct in range(4):
            A("v_xor_b32 v%d, %d, v%d" % (TR[ct], ct << 5, vGT))
            if big: A("v_add_u32 v%d, %d, v%d" % (TR[ct], big, TR[ct]))
        def OFF(ks, half): return (ks if ks < 9 else ks - 9) * 4096 + half * 512
        A("s_cmp_eq_u32 %s, 1" % s(gKIND))
        A("s_cbranch_scc1 %s" % isv)
        body(False)
        A("s_branch %s" % join)
        A.label(isv)
        body(True)
        A.label(join)
        if GTRACE: GTRACE(A, "round")
        if kvflag is not None:
            sk = A.newlab("g_nokv")
            A("s_cmp_eq_u32 %s, 4" % s(gI))
            A("s_cbranch_scc0 %s" % sk)
            kvflag(A)
            A.label(sk)
        A("s_add_u32 %s, %s, 1" % (s(gI), s(gI)))
        A("s_cmp_eq_u32 %s, 0" % s(gT + 8))
        A("s_cbranch_scc1 %s" % fin)
        A("s_mov_b32 %s, %s" % (s(gU), s(gT + 7)))
        if par == 1: A("s_branch %s" % top)
        marks.append((m0, A.mark()))
    A.label(fin)
    A("s_waitcnt vmcnt(0)")
    return marks

def build_g_test():
    A = Asm(); name = "g_kernel"
    kstart(A, name)
    fail = "L_fail"; end = "L_end"
    A("s_cmp_ge_u32 s2, 256"); A("s_cbranch_scc1 %s" % end)
    load_srd(A, gDBG, "dbg"); load_srd(A, gWS, "ws")
    A("v_lshrrev_b32 v1, 6, v0"); A("s_nop 0"); A("v_readfirstlane_b32 %s, v1" % s(gWV))
    emit_election(A, gDBG, 20, 21, 19, gBYTE, gT, fail)
    A("s_cmp_eq_u32 s20, 0"); A("s_cbranch_scc1 %s" % end)
    A("s_and_b32 %s, s21, 7" % s(gTG))
    A("s_sub_u32 %s, s20, 1" % s(gCG)); A("s_lshl_b32 %s, %s, 2" % (s(gCG), s(gCG)))
    A("s_lshr_b32 %s, s21, 3" % s(gT)); A("s_add_u32 %s, %s, %s" % (s(gCG), s(gCG), s(gT)))
    A("s_memrealtime s[96:97]")
    emit_g_ln(A)
    A("s_memrealtime s[98:99]")
    marks = emit_g_gemm(A)
    A("s_memrealtime s[100:101]"); A("s_waitcnt lgkmcnt(0)")
    A("s_sub_u32 s98, s98, s96"); A("s_sub_u32 s100, s100, s96")
    A("v_mov_b32 v16, s98"); A("v_mov_b32 v17, s100")
    A("s_lshl_b32 %s, s2, 2" % s(gT)); A("s_add_u32 %s, %s, %s" % (s(gT), s(gT), s(gWV))); A("s_lshl_b32 %s, %s, 3" % (s(gT), s(gT)))
    A("s_add_u32 %s, %s, 0x3E00000" % (s(gT), s(gT)))
    A("v_mov_b32 v1, 0"); A("s_mov_b64 exec, 1")
    A("buffer_store_dwordx2 v[16:17], v1, %s, %s offen" % (s(gWS, 4), s(gT)))
    A("s_endpgm")
    A.label(fail); A.label(end); A("s_endpgm")
    probs = lint(A.lines, "g-linear", verbose=True)
    for m0, m1 in marks: probs += lint(A.lines[m0:m1] * 2, "g-loop", verbose=True)
    return HDR + A.text() + '.section .rodata,"a"\n' + kdesc(name), name, probs
if __name__ == "__main__":
    from hiprun import add_metadata, assemble
    txt, name, probs = build_g_test()
    open("g.s", "w").write(add_metadata(txt, [(name, 256)], 120)); assemble("g.s", "g.co")
    print("assembled", txt.count("\n"))
```

```python
from gen_common import *
import struct
def f2u(x): return struct.unpack("<I", struct.pack("<f", x))[0]
pWS, pW, pDBG = 4, 8, 12
pID, pWV, pS, pFAST = 16, 17, 18, 19
pT = 24
pSPIN = 40
pFOFF = 41
pPEND = 42
SCALE_LOG2E = 0.08838834764831845 * 1.4426950408889634

def wait_flags(A, voff, soff_expr, target, fail, tmpv, sleep=1, sc="sc1", pend_sc=None):
    lp = A.newlab("wf"); ok = A.newlab("wf_ok")
    A("s_mov_b32 %s, %d" % (s(pSPIN), SPIN_MAX))
    A("buffer_load_dword v%d, v%d, %s, %s offen %s" % (tmpv, voff, s(pWS, 4), soff_expr, sc))
    A("s_waitcnt vmcnt(0)")
    if pend_sc is not None:
        sk = A.newlab("pend")
        A("s_cmp_eq_u32 %s, 0" % s(pPEND)); A("s_cbranch_scc1 %s" % sk)
        A("s_barrier")
        sk2 = A.newlab("pend2")
        A("s_cmp_eq_u32 %s, 0" % s(pWV)); A("s_cbranch_scc0 %s" % sk2)
        A("v_mov_b32 v%d, %s" % (tmpv + 1, s(pPEND))); A("v_mov_b32 v%d, 0" % (tmpv + 2))
        A("s_mov_b64 exec, 1")
        A("buffer_store_dword v%d, v%d, %s, %s offen %s" % (tmpv + 1, tmpv + 2, s(pWS, 4), s(pFOFF), pend_sc))
        A("s_mov_b64 exec, -1")
        A.label(sk2)
        A("s_mov_b32 %s, 0" % s(pPEND))
        A.label(sk)
    A("v_cmp_gt_u32 vcc, %s, v%d" % (target, tmpv))
    A("s_cbranch_vccz %s" % ok)
    A.c("lint-skip-begin")
    A.label(lp)
    if sleep: A("s_sleep %d" % sleep)
    A("buffer_load_dword v%d, v%d, %s, %s offen %s" % (tmpv, voff, s(pWS, 4), soff_expr, sc))
    A("s_waitcnt vmcnt(0)")
    A("v_cmp_gt_u32 vcc, %s, v%d" % (target, tmpv))
    A("s_cbranch_vccz %s" % ok)
    A("s_sub_u32 %s, %s, 1" % (s(pSPIN), s(pSPIN)))
    A("s_cmp_lg_u32 %s, 0" % s(pSPIN))
    A("s_cbranch_scc1 %s" % lp)
    A("s_branch %s" % fail)
    A.c("lint-skip-end")
    A.label(ok)

def set_flag(A, soff, valreg, tmpv, sc="sc1", barrier=True):
    A("s_waitcnt vmcnt(0)")
    if barrier: A("s_barrier")
    sk = A.newlab("sf")
    if barrier:
        A("s_cmp_eq_u32 %s, 0" % s(pWV)); A("s_cbranch_scc0 %s" % sk)
    A("v_mov_b32 v%d, %s" % (tmpv, valreg))
    A("v_mov_b32 v%d, 0" % (tmpv + 1))
    A("s_mov_b64 exec, 1")
    A("buffer_store_dword v%d, v%d, %s, %s offen %s" % (tmpv, tmpv + 1, s(pWS, 4), soff, sc))
    A("s_mov_b64 exec, -1")
    A.label(sk)

def dma_linear(A, srd, sbase, nbytes, lds_base, vL16):
    n = nbytes // 4096
    A("s_lshl_b32 %s, %s, 10" % (s(pT + 9), s(pWV)))
    for i in range(n):
        A("s_add_u32 m0, %s, %d" % (s(pT + 9), lds_base + i * 4096))
        A("s_add_u32 %s, %s, %s" % (s(pT + 8), s(sbase), s(pT + 9)))
        if i: A("s_add_u32 %s, %s, %d" % (s(pT + 8), s(pT + 8), i * 4096))
        else: A("s_nop 0")
        A("buffer_load_dwordx4 v%d, %s, %s offen lds" % (vL16, s(srd, 4), s(pT + 8)))
        if i % 48 == 47: A("s_waitcnt vmcnt(16)")

def load_k128_weights(A, vtmp, WREG, rowbytes, lds_base, colbyte_sreg):
    A("v_and_b32 v%d, 63, v0" % vtmp)
    A("v_lshrrev_b32 v%d, 4, v%d" % (vtmp + 1, vtmp))
    A("v_bfe_u32 v%d, v%d, 2, 2" % (vtmp + 2, vtmp))
    A("v_lshl_add_u32 v%d, v%d, 2, v%d" % (vtmp + 1, vtmp + 1, vtmp + 2))
    A("v_mul_u32_u24 v%d, %d, v%d" % (vtmp + 1, rowbytes, vtmp + 1))
    A("v_and_b32 v%d, 3, v%d" % (vtmp + 2, vtmp))
    A("v_lshl_add_u32 v%d, v%d, 3, v%d" % (vtmp + 1, vtmp + 2, vtmp + 1))
    A("v_add_u32 v%d, %s, v%d" % (vtmp + 1, colbyte_sreg, vtmp + 1))
    cnt = 0
    for ks in range(4):
        for u in range(2):
            A("v_add_u32 v%d, %d, v%d" % (vtmp + 3, lds_base + (32 * ks + 16 * u) * rowbytes, vtmp + 1))
            for i in range(9):
                sp = WREG(i, ks)
                A("ds_read_b64_tr_b16 %s, v%d offset:%d" % (R((sp[0], sp[1] + 2 * u), 2), vtmp + 3, i * 32))
                cnt += 1
                if cnt % 12 == 0: A("s_waitcnt lgkmcnt(0)")
    A("s_waitcnt lgkmcnt(0)")

def k128_gemm(A, WREG, OB, ACC, lg_wait=None):
    for ks in range(4):
        if lg_wait: lg_wait(ks)
        for i in range(9):
            for tt in range(2):
                c = "0" if ks == 0 else v(ACC(i, tt), 4)
                A("v_mfma_f32_16x16x32_bf16 %s, %s, %s, %s" % (v(ACC(i, tt), 4), R(WREG(i, ks), 4), v(OB(tt, ks), 4), c))

def sigma_store(A, ACC, vaddr, sbase, tmp, odd_label_base, rowstride_tt, sc="sc1"):
    odd = A.newlab("ss_odd"); end = A.newlab("ss_end")
    A("s_and_b32 %s, %s, 1" % (s(pT + 8), s(pWV)))
    A("s_cmp_eq_u32 %s, 1" % s(pT + 8))
    A("s_cbranch_scc1 %s" % odd)
    def emit(par):
        n = 0
        for tt in range(2):
            A("s_add_u32 %s, %s, %d" % (s(pT + 9), s(sbase), tt * rowstride_tt))
            items = [(0, 1), (2, 3), (4, 5), (6, 7), (8, None)] if par == 0 else [(None, 0), (1, 2), (3, 4), (5, 6), (7, 8)]
            for k, (a_, b_) in enumerate(items):
                d = tmp + 4 * (n & 3); n += 1
                if a_ is not None and b_ is not None:
                    x, y = ACC(a_, tt), ACC(b_, tt)
                    A("v_cvt_pk_bf16_f32 v%d, v%d, v%d" % (d, x, x + 1)); A("v_cvt_pk_bf16_f32 v%d, v%d, v%d" % (d + 1, x + 2, x + 3))
                    A("v_cvt_pk_bf16_f32 v%d, v%d, v%d" % (d + 2, y, y + 1)); A("v_cvt_pk_bf16_f32 v%d, v%d, v%d" % (d + 3, y + 2, y + 3))
                    A("buffer_store_dwordx4 %s, v%d, %s, %s offen offset:%d %s" % (v(d, 4), vaddr, s(pWS, 4), s(pT + 9), 64 * k, sc))
                else:
                    x = ACC(a_ if a_ is not None else b_, tt)
                    A("v_cvt_pk_bf16_f32 v%d, v%d, v%d" % (d, x, x + 1)); A("v_cvt_pk_bf16_f32 v%d, v%d, v%d" % (d + 1, x + 2, x + 3))
                    A("buffer_store_dwordx2 %s, v%d, %s, %s offen offset:%d %s" % (v(d, 2), vaddr, s(pWS, 4), s(pT + 9), 64 * k + (0 if a_ is not None else 8), sc))
    emit(0)
    A("s_branch %s" % end)
    A.label(odd)
    emit(1)
    A.label(end)

def emit_r12(A, fail, nseg=64, nsets=2):
    A.c("=== R12: attention + Wo partial")
    sSET12 = 59
    A("s_lshr_b32 %s, %s, 5" % (s(sSET12), s(pID)))
    A("s_lshl_b32 %s, %s, 2" % (s(pFOFF), s(pID))); A("s_add_u32 %s, %s, 0x%x" % (s(pFOFF), s(pFOFF), F_R12))
    A("s_and_b32 %s, %s, 31" % (s(pID), s(pID)))
    vL16, vTok, vFl, vMaskT = 1, 2, 3, 4
    WREG = lambda i, ks: ('a', (i * 4 + ks) * 4)
    load_srd(A, pW, "Wo")
    A("v_and_b32 v5, 63, v0"); A("v_lshlrev_b32 v%d, 4, v5" % vL16)
    A("s_mul_i32 %s, %s, %d" % (s(pT), s(pID), 128 * 1152))
    dma_linear(A, pW, pT, 147456, 0, vL16)
    A("s_waitcnt vmcnt(0)"); A("s_barrier")
    A("s_mul_i32 %s, %s, 288" % (s(pT + 1), s(pWV)))
    load_k128_weights(A, 6, WREG, 1152, 0, s(pT + 1))
    A("s_barrier")
    A("v_and_b32 v6, 15, v5"); A("v_lshrrev_b32 v7, 4, v5")
    A("v_mul_u32_u24 v%d, %d, v6" % (vTok, 32 * 1152)); A("v_lshl_add_u32 v%d, v7, 4, v%d" % (vTok, vTok))
    A("v_min_u32 v%d, 3, v5" % vFl); A("v_lshlrev_b32 v%d, 2, v%d" % (vFl, vFl))
    sMK = 44
    for r in range(4):
        A("v_lshl_add_u32 v8, v7, 2, %d" % r); A("v_cmp_le_u32 %s, v8, v6" % s(sMK + 2 * r, 2))
    tt_, part = pT + 2, pT + 3
    sTT, sPART, sQ, sOUT, sKM, sVM, sFK = 52, 53, 54, 55, 56, 57, 58
    A("s_and_b32 %s, %s, 1" % (s(sTT), s(pWV))); A("s_lshr_b32 %s, %s, 1" % (s(sPART), s(pWV)))
    A("s_lshl_b32 %s, %s, 13" % (s(sQ), s(pID)))
    A("s_lshl_b32 %s, %s, 12" % (s(sKM), s(pID))); A("s_add_u32 %s, %s, 0x%x" % (s(sKM), s(sKM), KMEM))
    A("s_lshl_b32 %s, %s, 11" % (s(sVM), s(pID))); A("s_lshl_b32 %s, %s, 10" % (s(pT), s(sPART))); A("s_add_u32 %s, %s, %s" % (s(sVM), s(sVM), s(pT))); A("s_add_u32 %s, %s, 0x%x" % (s(sVM), s(sVM), VMEM))
    A("s_lshl_b32 %s, %s, 4" % (s(sFK), s(pID))); A("s_add_u32 %s, %s, 0x%x" % (s(sFK), s(sFK), F_KM))
    A("s_mul_i32 %s, %s, 9" % (s(pT), s(pWV))); A("s_lshr_b32 %s, %s, 1" % (s(pT), s(pT))); A("s_lshl_b32 %s, %s, 6" % (s(pT), s(pT)))
    A("s_mul_i32 %s, %s, 1152" % (s(sOUT), s(pID))); A("s_add_u32 %s, %s, %s" % (s(sOUT), s(sOUT), s(pT))); A("s_add_u32 %s, %s, 0x%x" % (s(sOUT), s(sOUT), P12))
    A("s_mov_b32 %s, %s" % (s(pS), s(sSET12)))
    Qf = 16
    Kf = 32
    Vf = 64
    Xf = 80
    PV = 96
    T0, T1, T2 = 100, 104, 108
    OT = 112
    LS = 128
    ONE = 132
    PB = 136
    OB = lambda tt, ks: 144 + 4 * (tt * 4 + ks)
    ACCf = lambda i, tt: 176 + 4 * (i * 2 + tt)
    TMP = 8
    L_O = 0
    top = A.newlab("r12_top")
    m0 = A.mark()
    A.label(top)
    A("s_lshl_b32 %s, %s, 18" % (s(pT), s(pS))); A("s_add_u32 %s, %s, %s" % (s(pT), s(pT), s(sQ)))
    A("s_lshl_b32 %s, %s, 10" % (s(pT + 1), s(sTT))); A("s_add_u32 %s, %s, %s" % (s(pT + 1), s(pT + 1), s(pT))); A("s_add_u32 %s, %s, 0x%x" % (s(pT + 1), s(pT + 1), QOP))
    for ks in range(4):
        A("s_add_u32 %s, %s, %d" % (s(pT + 2), s(pT + 1), ks * 2048))
        A("buffer_load_dwordx4 %s, v%d, %s, %s offen" % (v(Qf + 4 * ks, 4), vL16, s(pWS, 4), s(pT + 2)))
    for ks in range(4):
        A("s_add_u32 %s, %s, %d" % (s(pT + 2), s(pT), ks * 2048 + KOP))
        for kt in range(2):
            A("buffer_load_dwordx4 %s, v%d, %s, %s offen offset:%d" % (v(Kf + 16 * kt + 4 * ks, 4), vL16, s(pWS, 4), s(pT + 2), kt * 1024))
    A("s_lshl_b32 %s, %s, 12" % (s(pT + 1), s(sPART))); A("s_add_u32 %s, %s, %s" % (s(pT + 1), s(pT + 1), s(pT))); A("s_add_u32 %s, %s, 0x%x" % (s(pT + 1), s(pT + 1), VOP))
    for et in range(4):
        A("s_add_u32 %s, %s, %d" % (s(pT + 2), s(pT + 1), et * 1024))
        A("buffer_load_dwordx4 %s, v%d, %s, %s offen" % (v(Vf + 4 * et, 4), vL16, s(pWS, 4), s(pT + 2)))
    for i in range(4): A("v_mov_b32 v%d, 0x3f803f80" % (ONE + i))
    A("s_waitcnt vmcnt(4)")
    for ks in range(4):
        for kt in range(2):
            T = T1 if kt == 0 else T2
            A("v_mfma_f32_16x16x32_bf16 %s, %s, %s, %s" % (v(T, 4), v(Kf + 16 * kt + 4 * ks, 4), v(Qf + 4 * ks, 4), "0" if ks == 0 else v(T, 4)))
    A("s_add_u32 %s, %s, 1" % (s(pT + 4), s(pS)))
    wait_flags(A, vFl, s(sFK), s(pT + 4), fail, TMP, pend_sc="sc1")
    A("s_lshl_b32 %s, %s, 17" % (s(pT), s(pS))); A("s_add_u32 %s, %s, %s" % (s(pT), s(pT), s(sKM)))
    for ks in range(4):
        A("s_add_u32 %s, %s, %d" % (s(pT + 2), s(pT), ks * 1024))
        A("buffer_load_dwordx4 %s, v%d, %s, %s offen sc1" % (v(Xf + 4 * ks, 4), vL16, s(pWS, 4), s(pT + 2)))
    A("s_lshl_b32 %s, %s, 16" % (s(pT), s(pS))); A("s_add_u32 %s, %s, %s" % (s(pT), s(pT), s(sVM)))
    A("v_lshrrev_b32 v%d, 1, v%d" % (TMP, vL16))
    A("buffer_load_dwordx2 %s, v%d, %s, %s offen sc1" % (v(PV, 2), TMP, s(pWS, 4), s(pT)))
    A("buffer_load_dwordx2 %s, v%d, %s, %s offen offset:512 sc1" % (v(PV + 2, 2), TMP, s(pWS, 4), s(pT)))
    NEG = TMP + 1
    A("v_mov_b32 v%d, 0xff800000" % NEG)
    m1 = A.newlab("r12_tt1"); m2 = A.newlab("r12_msk")
    A("s_cmp_eq_u32 %s, 1" % s(sTT)); A("s_cbranch_scc1 %s" % m1)
    for r in range(4):
        A("v_cndmask_b32 v%d, v%d, v%d, %s" % (T1 + r, NEG, T1 + r, s(sMK + 2 * r, 2)))
        A("v_mov_b32 v%d, v%d" % (T2 + r, NEG))
    A("s_branch %s" % m2)
    A.label(m1)
    for r in range(4): A("v_cndmask_b32 v%d, v%d, v%d, %s" % (T2 + r, NEG, T2 + r, s(sMK + 2 * r, 2)))
    A.label(m2)
    A("s_waitcnt vmcnt(2)")
    for ks in range(4):
        A("v_mfma_f32_16x16x32_bf16 %s, %s, %s, %s" % (v(T0, 4), v(Xf + 4 * ks, 4), v(Qf + 4 * ks, 4), "0" if ks == 0 else v(T0, 4)))
    A("v_max3_f32 v%d, v%d, v%d, v%d" % (TMP + 2, T1, T1 + 1, T1 + 2))
    A("v_max3_f32 v%d, v%d, v%d, v%d" % (TMP + 3, T1 + 3, T2, T2 + 1))
    A("v_max3_f32 v%d, v%d, v%d, v%d" % (TMP + 2, TMP + 2, T2 + 2, T2 + 3))
    A("v_max_f32 v%d, v%d, v%d" % (TMP + 2, TMP + 2, TMP + 3))
    A("s_nop 3")
    A("v_max3_f32 v%d, v%d, v%d, v%d" % (TMP + 2, TMP + 2, T0, T0 + 1))
    x, y = TMP + 2, TMP + 3
    for sw in ("v_permlane16_swap_b32", "v_permlane32_swap_b32"):
        A("v_mov_b32 v%d, v%d" % (y, x)); A("s_nop 1"); A("%s v%d, v%d" % (sw, x, y)); A("v_max_f32 v%d, v%d, v%d" % (x, x, y))
    A("s_mov_b32 %s, 0x%x" % (s(pT + 6), f2u(SCALE_LOG2E)))
    A("v_mul_f32 v%d, %s, v%d" % (x, s(pT + 6), x))
    vals = [T0, T0 + 1] + [T1 + r for r in range(4)] + [T2 + r for r in range(4)]
    for r in vals: A("v_fma_f32 v%d, v%d, %s, -v%d" % (r, r, s(pT + 6), x))
    for r in vals: A("v_exp_f32 v%d, v%d" % (r, r))
    A("s_nop 0")
    A("v_cvt_pk_bf16_f32 v%d, v%d, v%d" % (PB, T1, T1 + 1)); A("v_cvt_pk_bf16_f32 v%d, v%d, v%d" % (PB + 1, T1 + 2, T1 + 3))
    A("v_cvt_pk_bf16_f32 v%d, v%d, v%d" % (PB + 2, T2, T2 + 1)); A("v_cvt_pk_bf16_f32 v%d, v%d, v%d" % (PB + 3, T2 + 2, T2 + 3))
    A("v_cvt_pk_bf16_f32 v%d, v%d, v%d" % (PB + 4, T0, T0 + 1)); A("v_mov_b32 v%d, 0" % (PB + 5))
    A("v_mov_b32 v%d, 0" % (PB + 6)); A("v_cvt_pk_bf16_f32 v%d, v%d, v%d" % (PB + 7, T0, T0 + 1))
    A("s_waitcnt vmcnt(0)")
    A("s_nop 0")
    A("v_mfma_f32_16x16x32_bf16 %s, %s, %s, 0" % (v(LS, 4), v(ONE, 4), v(PB, 4)))
    for et in range(4):
        A("v_mfma_f32_16x16x32_bf16 %s, %s, %s, 0" % (v(OT + 4 * et, 4), v(Vf + 4 * et, 4), v(PB, 4)))
    A("s_nop 1")
    A("v_mfma_f32_16x16x16_bf16 %s, %s, %s, %s" % (v(LS, 4), v(ONE, 2), v(PB + 4, 2), v(LS, 4)))
    for et in range(4):
        A("v_mfma_f32_16x16x16_bf16 %s, %s, %s, %s" % (v(OT + 4 * et, 4), v(PV + 2 * (et >> 1), 2), v(PB + 4 + 2 * (et & 1), 2), v(OT + 4 * et, 4)))
    A("s_nop 4")
    A("v_rcp_f32 v%d, v%d" % (x, LS))
    A("s_nop 2")
    for i in range(16): A("v_mul_f32 v%d, v%d, v%d" % (OT + i, OT + i, x))
    for a_ in range(2):
        d = TMP + 4 if a_ == 0 else OT
        src = OT + 8 * a_
        dd = Xf + 4 * a_
        for q in range(4): A("v_cvt_pk_bf16_f32 v%d, v%d, v%d" % (dd + q, src + 2 * q, src + 2 * q + 1))
    A("s_lshl_b32 %s, %s, 12" % (s(pT), s(sTT))); A("s_lshl_b32 %s, %s, 11" % (s(pT + 1), s(sPART))); A("s_add_u32 %s, %s, %s" % (s(pT), s(pT), s(pT + 1)))
    A("v_add_u32 v%d, %s, v%d" % (TMP, s(pT), vL16))
    A("s_barrier")
    A("ds_write_b128 v%d, %s offset:%d" % (TMP, v(Xf, 4), L_O))
    A("ds_write_b128 v%d, %s offset:%d" % (TMP, v(Xf + 4, 4), L_O + 1024))
    A("s_waitcnt lgkmcnt(0)")
    A("s_barrier")
    for ks in range(4):
        for tt in range(2):
            A("ds_read_b128 %s, v%d offset:%d" % (v(OB(tt, ks), 4), vL16, L_O + tt * 4096 + ks * 1024))
    def lw(ks): A("s_waitcnt lgkmcnt(%d)" % (6 - 2 * ks))
    k128_gemm(A, WREG, OB, ACCf, lw)
    A("s_nop 7")
    A("s_mul_i32 %s, %s, %d" % (s(pT), s(pS), 32 * 32 * 1152)); A("s_add_u32 %s, %s, %s" % (s(pT), s(pT), s(sOUT)))
    sigma_store(A, ACCf, vTok, pT, TMP, None, 16 * 32 * 1152)
    A("s_add_u32 %s, %s, 1" % (s(pPEND), s(pS)))
    A("s_add_u32 %s, %s, %d" % (s(pS), s(pS), nsets))
    A("s_cmp_lt_u32 %s, %d" % (s(pS), nseg))
    A("s_cbranch_scc1 %s" % top)
    m1 = A.mark()
    set_flag(A, s(pFOFF), s(pPEND), TMP)
    return (m0, m1)

def build_role_test(name, role_fn, idreg_expr):
    A = Asm(); kstart(A, name)
    fail = "L_fail_" + name; end = "L_end_" + name
    load_srd(A, pDBG, "dbg"); load_srd(A, pWS, "ws")
    A("v_lshrrev_b32 v1, 6, v0"); A("s_nop 0"); A("v_readfirstlane_b32 %s, v1" % s(pWV))
    A("s_mov_b32 %s, s2" % s(pID)); A("s_mov_b32 %s, 0" % s(pFAST)); A("s_mov_b32 %s, 0" % s(pPEND))
    A("s_memrealtime s[96:97]")
    mm = role_fn(A, fail)
    A("s_memrealtime s[100:101]"); A("s_waitcnt lgkmcnt(0)"); A("s_sub_u32 s100, s100, s96")
    A("v_mov_b32 v16, s100"); A("s_lshl_b32 %s, s2, 2" % s(pT)); A("s_add_u32 %s, %s, 0x%x" % (s(pT), s(pT), FLG + 0x1000))
    A("v_mov_b32 v1, 0"); A("s_mov_b64 exec, 1"); A("buffer_store_dword v16, v1, %s, %s offen" % (s(pWS, 4), s(pT)))
    A("s_endpgm")
    A.label(fail); A("v_mov_b32 v1, 0xf0"); A("v_mov_b32 v2, 0xdead"); A("s_mov_b64 exec, 1"); A("buffer_store_dword v2, v1, %s, 0 offen sc1" % s(pDBG, 4))
    A.label(end); A("s_endpgm")
    probs = lint(A.lines, name + "-linear", verbose=True)
    if mm: probs += lint(A.lines[mm[0]:mm[1]] * 2, name + "-loop", verbose=True)
    return HDR + A.text() + '.section .rodata,"a"\n' + kdesc(name), name, probs
if __name__ == "__main__":
    from hiprun import add_metadata, assemble
    txt, name, probs = build_role_test("r12_kernel", lambda A, f: emit_r12(A, f), None)
    open("r12.s", "w").write(add_metadata(txt, [(name, 256)], 120)); assemble("r12.s", "r12.co"); print("ok", txt.count("\n"))

def emit_sel(A, dst, tmp):
    A("v_and_b32 v%d, 15, v0" % tmp)
    A("v_mov_b32 v%d, 0x3f80" % (tmp + 1)); A("v_mov_b32 v%d, 0x3f800000" % (tmp + 2))
    A("v_and_b32 v%d, 1, v%d" % (dst, tmp)); A("v_cmp_eq_u32 vcc, 0, v%d" % dst); A("s_nop 1")
    A("v_cndmask_b32 v%d, v%d, v%d, vcc" % (tmp + 1, tmp + 2, tmp + 1))
    A("v_lshrrev_b32 v%d, 1, v%d" % (tmp, tmp))
    for q in range(4):
        A("v_cmp_eq_u32 vcc, %d, v%d" % (q, tmp)); A("s_nop 1"); A("v_cndmask_b32 v%d, 0, v%d, vcc" % (dst + q, tmp + 1))

def reduce_rows_consts(A, vM, vX, vX2, nprod, tmp):
    A("v_and_b32 v%d, 63, v0" % tmp); A("v_lshrrev_b32 v%d, 4, v%d" % (tmp + 1, tmp)); A("v_and_b32 v%d, 15, v%d" % (tmp + 2, tmp))
    A("v_mul_u32_u24 v%d, %d, v%d" % (vM, ROW, tmp + 1)); A("v_lshl_add_u32 v%d, v%d, 4, v%d" % (vM, tmp + 2, vM))
    A("v_lshrrev_b32 v%d, 1, v%d" % (tmp + 3, tmp + 2))
    A("v_lshl_add_u32 v%d, v%d, 2, v%d" % (vX, tmp + 3, tmp + 1)); A("v_mul_u32_u24 v%d, %d, v%d" % (vX, ROW, vX))
    A("v_and_b32 v%d, 1, v%d" % (tmp + 4, tmp + 2)); A("v_add_u32 v%d, 16, v%d" % (tmp + 4, tmp + 4))
    A("v_lshl_add_u32 v%d, v%d, 4, v%d" % (vX, tmp + 4, vX))
    if nprod > 32:
        A("v_add_u32 v%d, 32, v%d" % (vX2, tmp + 1)); A("v_mul_u32_u24 v%d, %d, v%d" % (vX2, ROW, vX2)); A("v_lshl_add_u32 v%d, v%d, 4, v%d" % (vX2, tmp + 4, vX2))
        A("v_mov_b32 v%d, 0x40000000" % (tmp + 4)); A("v_cmp_eq_u32 vcc, 0, v%d" % (tmp + 3)); A("s_nop 1")
        A("v_cndmask_b32 v%d, v%d, v%d, vcc" % (vX2, tmp + 4, vX2))

def reduce_rows(A, sbase, nprod, vM, vX, vX2, LD, SEL, DM, DX):
    nm = nprod // 4
    for n in range(nm):
        A("s_add_u32 %s, %s, %d" % (s(pT + 8), s(sbase), n * 4 * ROW))
        A("buffer_load_dwordx4 %s, v%d, %s, %s offen sc1" % (v(LD + 4 * n, 4), vM, s(pWS, 4), s(pT + 8)))
    A("buffer_load_dwordx4 %s, v%d, %s, %s offen sc1" % (v(LD + 4 * nm, 4), vX, s(pWS, 4), s(sbase)))
    nx = 1
    if nprod > 32:
        A("buffer_load_dwordx4 %s, v%d, %s, %s offen sc1" % (v(LD + 4 * nm + 4, 4), vX2, s(pWS, 4), s(sbase))); nx = 2
    for n in range(nm):
        A("s_waitcnt vmcnt(%d)" % (nm - 1 - n + nx))
        A("v_mfma_f32_16x16x32_bf16 %s, %s, %s, %s" % (v(DM, 4), v(SEL, 4), v(LD + 4 * n, 4), "0" if n == 0 else v(DM, 4)))
    for k in range(nx):
        A("s_waitcnt vmcnt(%d)" % (nx - 1 - k))
        A("v_mfma_f32_16x16x32_bf16 %s, %s, %s, %s" % (v(DX, 4), v(SEL, 4), v(LD + 4 * (nm + k), 4), "0" if k == 0 else v(DX, 4)))
    A("s_nop 7")
    for sh in (2, 4, 8):
        for r in range(4): A("v_add_f32_dpp v%d, v%d, v%d row_shl:%d row_mask:0xf bank_mask:0xf bound_ctrl:1" % (DX + r, DX + r, DX + r, sh))

def rowpos_consts(A, vSm, vSx, vNm, vNx, tmp):
    A("v_and_b32 v%d, 63, v0" % tmp); A("v_lshrrev_b32 v%d, 4, v%d" % (tmp + 1, tmp)); A("v_and_b32 v%d, 15, v%d" % (tmp + 2, tmp))
    A("s_mul_i32 %s, %s, 18" % (s(pT + 8), s(pWV)))
    for (vs, vn, add, cmax) in ((vSm, vNm, 0, 16), (vSx, vNx, 16, 2)):
        A("v_add_u32 v%d, %s, v%d" % (tmp + 3, s(pT + 8), tmp + 2))
        if add: A("v_add_u32 v%d, %d, v%d" % (tmp + 3, add, tmp + 3))
        A("v_lshlrev_b32 v%d, 4, v%d" % (vs, tmp + 3)); A("v_lshl_add_u32 v%d, v%d, 3, v%d" % (vs, tmp + 1, vs))
        A("v_lshrrev_b32 v%d, 2, v%d" % (vn, tmp + 3)); A("v_lshlrev_b32 v%d, 6, v%d" % (vn, vn))
        A("v_lshl_add_u32 v%d, v%d, 5, v%d" % (vn, tmp + 1, vn))
        A("v_and_b32 v%d, 3, v%d" % (tmp + 4, tmp + 3)); A("v_lshl_add_u32 v%d, v%d, 3, v%d" % (vn, tmp + 4, vn))
        A("v_cmp_gt_u32 vcc, %d, v%d" % (cmax, tmp + 2)); A("v_cmp_gt_u32 %s, 2, v%d" % (s(pT + 10, 2), tmp + 1)); A("s_nop 1")
        A("s_and_b64 vcc, vcc, %s" % s(pT + 10, 2)); A("v_mov_b32 v%d, 0x40000000" % (tmp + 4)); A("s_nop 0")
        A("v_cndmask_b32 v%d, v%d, v%d, vcc" % (vs, tmp + 4, vs)); A("v_cndmask_b32 v%d, v%d, v%d, vcc" % (vn, tmp + 4, vn))

def rb16(A, r):
    A("v_cvt_pk_bf16_f32 v%d, v%d, v%d" % (r, r, r)); A("v_lshlrev_b32 v%d, 16, v%d" % (r, r))

def wave_sum2(A, a_, b_, t):
    for sh in (1, 2, 4, 8):
        A("v_add_f32_dpp v%d, v%d, v%d row_ror:%d row_mask:0xf bank_mask:0xf" % (t, a_, a_, sh))
        A("v_add_f32_dpp v%d, v%d, v%d row_ror:%d row_mask:0xf bank_mask:0xf" % (t + 1, b_, b_, sh))
        A("v_mov_b32 v%d, v%d" % (a_, t)); A("v_mov_b32 v%d, v%d" % (b_, t + 1)); A("s_nop 0")
    for sw in ("v_permlane16_swap_b32", "v_permlane32_swap_b32"):
        A("v_mov_b32 v%d, v%d" % (t, a_)); A("v_mov_b32 v%d, v%d" % (t + 1, b_)); A("s_nop 0")
        A("%s v%d, v%d" % (sw, a_, t)); A("%s v%d, v%d" % (sw, b_, t + 1))
        A("v_add_f32 v%d, v%d, v%d" % (a_, a_, t)); A("v_add_f32 v%d, v%d, v%d" % (b_, b_, t + 1))

def ln_row(A, vals, vsum, vsq, t, lds_off, vLdsW, vLdsR):
    A("v_add_f32 v%d, v%d, v%d" % (vsum, vals[0], vals[1])); A("v_mul_f32 v%d, v%d, v%d" % (vsq, vals[0], vals[0]))
    A("v_fma_f32 v%d, v%d, v%d, v%d" % (vsq, vals[1], vals[1], vsq))
    for r in vals[2:]:
        A("v_add_f32 v%d, v%d, v%d" % (vsum, vsum, r)); A("v_fma_f32 v%d, v%d, v%d, v%d" % (vsq, r, r, vsq))
    A("s_nop 0")
    wave_sum2(A, vsum, vsq, t)
    A("v_mov_b32 v%d, v%d" % (t, vsum)); A("v_mov_b32 v%d, v%d" % (t + 1, vsq))
    A("s_mov_b64 exec, 1"); A("ds_write_b64 v%d, %s offset:%d" % (vLdsW, v(t, 2), lds_off)); A("s_mov_b64 exec, -1")
    A("s_waitcnt lgkmcnt(0)"); A("s_barrier")
    A("ds_read_b128 %s, v%d offset:%d" % (v(t, 4), vLdsR, lds_off)); A("ds_read_b128 %s, v%d offset:%d" % (v(t + 4, 4), vLdsR, lds_off + 16))
    A("s_waitcnt lgkmcnt(0)")
    A("v_add_f32 v%d, v%d, v%d" % (vsum, t, t + 2)); A("v_add_f32 v%d, v%d, v%d" % (vsq, t + 1, t + 3))
    A("v_add_f32 v%d, v%d, v%d" % (t, t + 4, t + 6)); A("v_add_f32 v%d, v%d, v%d" % (t + 1, t + 5, t + 7))
    A("v_add_f32 v%d, v%d, v%d" % (vsum, vsum, t)); A("v_add_f32 v%d, v%d, v%d" % (vsq, vsq, t + 1))
    A("v_mul_f32 v%d, 0x%x, v%d" % (vsum, f2u(1.0 / 576), vsum)); A("v_mul_f32 v%d, 0x%x, v%d" % (vsq, f2u(1.0 / 576), vsq))
    A("v_fma_f32 v%d, -v%d, v%d, v%d" % (vsq, vsum, vsum, vsq)); A("v_max_f32 v%d, 0, v%d" % (vsq, vsq))
    rb16(A, vsum); rb16(A, vsq)
    A("v_add_f32 v%d, 0x%x, v%d" % (vsq, f2u(1e-5), vsq)); rb16(A, vsq)
    A("v_sqrt_f32 v%d, v%d" % (vsq, vsq)); A("s_nop 0"); rb16(A, vsq)
    A("v_rcp_f32 v%d, v%d" % (vsq, vsq))
    for r in vals: A("v_sub_f32 v%d, v%d, v%d" % (r, r, vsum))
    for r in vals: rb16(A, r)
    for r in vals: A("v_mul_f32 v%d, v%d, v%d" % (r, r, vsq))
    for r in vals: rb16(A, r)

def unpack4(A, src, dst):
    A("v_lshlrev_b32 v%d, 16, v%d" % (dst, src)); A("v_and_b32 v%d, 0xffff0000, v%d" % (dst + 1, src))
    A("v_lshlrev_b32 v%d, 16, v%d" % (dst + 2, src + 1)); A("v_and_b32 v%d, 0xffff0000, v%d" % (dst + 3, src + 1))

def role_top(A, fail, vFl, sflag, target_expr_fn, tmp, first_label):
    pass

def emit_r3(A, fail, nseg=64):
    A.c("=== R3")
    vM, vX, vSm, vSx, vNm, vNx, vFl, vLW_, vLR = 1, 2, 3, 4, 5, 6, 7, 8, 9
    SEL, DM, DX, XQ, TMP, LD = 12, 16, 20, 24, 28, 48
    load_srd(A, pW, "x")
    emit_sel(A, SEL, TMP)
    reduce_rows_consts(A, vM, vX, None, 32, TMP)
    rowpos_consts(A, vSm, vSx, vNm, vNx, TMP)
    A("v_and_b32 v%d, 63, v0" % TMP); A("v_min_u32 v%d, 31, v%d" % (vFl, TMP)); A("v_lshlrev_b32 v%d, 2, v%d" % (vFl, vFl))
    A("v_mov_b32 v%d, 0" % vLR); A("s_lshl_b32 %s, %s, 3" % (s(pT), s(pWV))); A("v_mov_b32 v%d, %s" % (vLW_, s(pT)))
    A("s_lshl_b32 %s, %s, 2" % (s(pFOFF), s(pID))); A("s_add_u32 %s, %s, 0x%x" % (s(pFOFF), s(pFOFF), F_R3))
    sIN, sROW, sFL = 44, 45, 46
    A("s_mov_b32 %s, 0" % s(pS))
    top = A.newlab("r3_top"); m0 = A.mark(); A.label(top)
    A("s_lshl_b32 %s, %s, 5" % (s(sROW), s(pS))); A("s_add_u32 %s, %s, %s" % (s(sROW), s(sROW), s(pID))); A("s_mul_i32 %s, %s, %d" % (s(sROW), s(sROW), ROW))
    A("buffer_load_dwordx2 %s, v%d, %s, %s offen" % (v(XQ, 2), vNm, s(pW, 4), s(sROW)))
    A("buffer_load_dwordx2 %s, v%d, %s, %s offen" % (v(XQ + 2, 2), vNx, s(pW, 4), s(sROW)))
    A("s_and_b32 %s, %s, 1" % (s(sFL), s(pS))); A("s_lshl_b32 %s, %s, 7" % (s(sFL), s(sFL))); A("s_add_u32 %s, %s, 0x%x" % (s(sFL), s(sFL), F_R12))
    A("s_add_u32 %s, %s, 1" % (s(pT + 4), s(pS)))
    wait_flags(A, vFl, s(sFL), s(pT + 4), fail, TMP, pend_sc="sc1")
    A("s_mul_i32 %s, %s, %d" % (s(sIN), s(pS), 32 * 32 * ROW)); A("s_mul_i32 %s, %s, %d" % (s(pT), s(pID), 32 * ROW))
    A("s_add_u32 %s, %s, %s" % (s(sIN), s(sIN), s(pT))); A("s_mul_i32 %s, %s, 288" % (s(pT), s(pWV))); A("s_add_u32 %s, %s, %s" % (s(sIN), s(sIN), s(pT)))
    A("s_add_u32 %s, %s, 0x%x" % (s(sIN), s(sIN), P12))
    reduce_rows(A, sIN, 32, vM, vX, None, LD, SEL, DM, DX)
    vals = [DM + r for r in range(4)] + [DX + r for r in range(4)]
    for r in vals: rb16(A, r)
    unpack4(A, XQ, TMP); unpack4(A, XQ + 2, TMP + 4)
    for i, r in enumerate(vals): A("v_add_f32 v%d, v%d, v%d" % (r, r, TMP + i))
    for r in vals: rb16(A, r)
    A("v_cmp_gt_u32 vcc, 0x40000000, v%d" % vSx); A("s_nop 1")
    for r in range(4): A("v_cndmask_b32 v%d, 0, v%d, vcc" % (DX + r, DX + r))
    def store_row(base):
        A("v_perm_b32 v%d, v%d, v%d, %s" % (TMP, DM + 1, DM, s(pT + 14))); A("v_perm_b32 v%d, v%d, v%d, %s" % (TMP + 1, DM + 3, DM + 2, s(pT + 14)))
        A("v_perm_b32 v%d, v%d, v%d, %s" % (TMP + 2, DX + 1, DX, s(pT + 14))); A("v_perm_b32 v%d, v%d, v%d, %s" % (TMP + 3, DX + 3, DX + 2, s(pT + 14)))
        A("s_add_u32 %s, %s, 0x%x" % (s(pT + 8), s(sROW), base))
        A("buffer_store_dwordx2 %s, v%d, %s, %s offen sc1" % (v(TMP, 2), vSm, s(pWS, 4), s(pT + 8)))
        A("buffer_store_dwordx2 %s, v%d, %s, %s offen sc1" % (v(TMP + 2, 2), vSx, s(pWS, 4), s(pT + 8)))
    A("s_mov_b32 %s, 0x07060302" % s(pT + 14))
    store_row(HB)
    ln_row(A, vals, TMP + 8, TMP + 9, TMP + 10, 0, vLW_, vLR)
    A("v_cmp_gt_u32 vcc, 0x40000000, v%d" % vSx); A("v_cmp_gt_u32 %s, 0x40000000, v%d" % (s(pT + 10, 2), vSm)) if False else None
    A("s_nop 1")
    for r in range(4): A("v_cndmask_b32 v%d, 0, v%d, vcc" % (DX + r, DX + r))
    A("v_cmp_gt_u32 vcc, 0x40000000, v%d" % vSm); A("s_nop 1")
    for r in range(4): A("v_cndmask_b32 v%d, 0, v%d, vcc" % (DM + r, DM + r))
    store_row(HNB)
    ln_row(A, vals, TMP + 8, TMP + 9, TMP + 10, 64, vLW_, vLR)
    store_row(TB)
    A("s_add_u32 %s, %s, 1" % (s(pS), s(pS))); A("s_mov_b32 %s, %s" % (s(pPEND), s(pS)))
    A("s_cmp_lt_u32 %s, %d" % (s(pS), nseg)); A("s_cbranch_scc1 %s" % top)
    m1 = A.mark()
    set_flag(A, s(pFOFF), s(pPEND), TMP)
    return (m0, m1)

def stage_consts(A, VS, vB0, tmp):
    A("v_and_b32 v%d, 63, v0" % tmp)
    for i in range(9):
        A("s_lshl_b32 %s, %s, 6" % (s(pT + 8), s(pWV))); A("s_add_u32 %s, %s, %d" % (s(pT + 8), s(pT + 8), 256 * i))
        A("v_add_u32 v%d, %s, v%d" % (tmp + 1, s(pT + 8), tmp))
        A("v_mul_u32_u24 v%d, 58255, v%d" % (tmp + 2, tmp + 1)); A("v_lshrrev_b32 v%d, 22, v%d" % (tmp + 2, tmp + 2))
        A("v_mul_u32_u24 v%d, 72, v%d" % (tmp + 3, tmp + 2)); A("v_sub_u32 v%d, v%d, v%d" % (tmp + 3, tmp + 1, tmp + 3))
        A("v_bfe_u32 v%d, v%d, 1, 3" % (tmp + 4, tmp + 2)); A("v_xor_b32 v%d, v%d, v%d" % (tmp + 3, tmp + 3, tmp + 4))
        A("v_lshlrev_b32 v%d, 4, v%d" % (tmp + 3, tmp + 3))
        A("v_mul_u32_u24 v%d, %d, v%d" % (tmp + 2, ROW, tmp + 2)); A("v_add_u32 v%d, v%d, v%d" % (VS + i, tmp + 2, tmp + 3))
    A("v_and_b32 v%d, 15, v%d" % (tmp + 1, tmp)); A("v_lshrrev_b32 v%d, 4, v%d" % (tmp + 2, tmp))
    A("v_bfe_u32 v%d, v%d, 1, 3" % (tmp + 3, tmp + 1)); A("v_xor_b32 v%d, v%d, v%d" % (tmp + 3, tmp + 3, tmp + 2)); A("v_lshlrev_b32 v%d, 4, v%d" % (tmp + 3, tmp + 3))
    A("v_mul_u32_u24 v%d, %d, v%d" % (tmp + 1, ROW, tmp + 1)); A("v_add_u32 v%d, v%d, v%d" % (vB0, tmp + 1, tmp + 3)); A("v_xor_b32 v%d, 64, v%d" % (vB0 + 1, vB0))

def stage_rows(A, sbase, VS, lds_base, sc="sc1"):
    A("s_lshl_b32 %s, %s, 10" % (s(pT + 9), s(pWV)))
    for i in range(9):
        A("s_add_u32 m0, %s, %d" % (s(pT + 9), lds_base + i * 4096)); A("s_nop 0")
        A("buffer_load_dwordx4 v%d, %s, %s offen %s lds" % (VS + i, s(pWS, 4), s(sbase), sc))

def bfrag_read(A, dst, vB0, lds_base, tt, ks):
    A("ds_read_b128 %s, v%d offset:%d" % (v(dst, 4), vB0 + (ks & 1), lds_base + tt * 16 * ROW + (ks >> 1) * 128))

def load_w576(A, srd, scol, grow, rowbytes, ntile, WREG, tilebyte_sreg, tmp):
    lanes_per_row = rowbytes // 16; rows_per = 64 // lanes_per_row; ninstr = 576 // rows_per // 4
    A("v_and_b32 v%d, 63, v0" % tmp)
    A("v_lshrrev_b32 v%d, %d, v%d" % (tmp + 1, lanes_per_row.bit_length() - 1, tmp)); A("v_and_b32 v%d, %d, v%d" % (tmp + 2, lanes_per_row - 1, tmp))
    A("s_mov_b32 %s, %d" % (s(pT + 8), grow)); A("v_mul_lo_u32 v%d, v%d, %s" % (tmp + 1, tmp + 1, s(pT + 8))); A("v_lshl_add_u32 v%d, v%d, 4, v%d" % (tmp + 1, tmp + 2, tmp + 1))
    A("s_mul_i32 %s, %s, %d" % (s(pT + 10), s(pWV), rows_per * grow)); A("s_add_u32 %s, %s, %s" % (s(pT + 10), s(pT + 10), s(scol)))
    A("s_lshl_b32 %s, %s, 10" % (s(pT + 9), s(pWV)))
    for i in range(ninstr):
        A("s_add_u32 m0, %s, %d" % (s(pT + 9), i * 4096))
        A("s_add_u32 %s, %s, %d" % (s(pT + 8), s(pT + 10), i * 4 * rows_per * grow))
        A("buffer_load_dwordx4 v%d, %s, %s offen lds" % (tmp + 1, s(srd, 4), s(pT + 8)))
    A("s_waitcnt vmcnt(0)"); A("s_barrier")
    A("v_lshrrev_b32 v%d, 4, v%d" % (tmp + 1, tmp)); A("v_bfe_u32 v%d, v%d, 2, 2" % (tmp + 2, tmp)); A("v_lshl_add_u32 v%d, v%d, 2, v%d" % (tmp + 1, tmp + 1, tmp + 2))
    A("v_mul_u32_u24 v%d, %d, v%d" % (tmp + 1, rowbytes, tmp + 1)); A("v_and_b32 v%d, 3, v%d" % (tmp + 2, tmp)); A("v_lshl_add_u32 v%d, v%d, 3, v%d" % (tmp + 1, tmp + 2, tmp + 1))
    A("v_add_u32 v%d, %s, v%d" % (tmp + 1, tilebyte_sreg, tmp + 1))
    cnt = 0
    for ks in range(18):
        for u in range(2):
            A("v_add_u32 v%d, %d, v%d" % (tmp + 3, (32 * ks + 16 * u) * rowbytes, tmp + 1))
            for i in range(ntile):
                sp = WREG(i, ks)
                A("ds_read_b64_tr_b16 %s, v%d offset:%d" % (R((sp[0], sp[1] + 2 * u), 2), tmp + 3, i * 32)); cnt += 1
                if cnt % 12 == 0: A("s_waitcnt lgkmcnt(0)")
    A("s_waitcnt lgkmcnt(0)"); A("s_barrier")

GC0 = -2.0 * 0.7978845608028654 * 1.4426950408889634
GC1 = GC0 * 0.044715
def gelu(A, regs, t):
    A("s_mov_b32 %s, 0x%x" % (s(pT + 12), f2u(GC1))); A("s_mov_b32 %s, 0x%x" % (s(pT + 13), f2u(GC0)))
    for i, r in enumerate(regs): A("v_mul_f32 v%d, v%d, v%d" % (t + i, r, r))
    for i, r in enumerate(regs): A("v_mov_b32 v%d, %s" % (t + len(regs), s(pT + 13))) if i == 0 else None
    for i, r in enumerate(regs): A("v_fma_f32 v%d, v%d, %s, v%d" % (t + i, t + i, s(pT + 12), t + len(regs)))
    for i, r in enumerate(regs): A("v_mul_f32 v%d, v%d, v%d" % (t + i, t + i, r))
    for i, r in enumerate(regs): A("v_exp_f32 v%d, v%d" % (t + i, t + i))
    for i, r in enumerate(regs): A("v_add_f32 v%d, 1.0, v%d" % (t + i, t + i))
    for i, r in enumerate(regs): A("v_rcp_f32 v%d, v%d" % (t + i, t + i))
    A("s_nop 0")
    for i, r in enumerate(regs): A("v_mul_f32 v%d, v%d, v%d" % (r, r, t + i))

def small_gemm(A, WREG, ACC, BF, vB0, lds_base, ntile):
    def rd(ks):
        for tt in range(2): bfrag_read(A, BF[ks & 1][tt], vB0, lds_base, tt, ks)
    rd(0)
    for ks in range(18):
        if ks + 1 < 18:
            rd(ks + 1); A("s_waitcnt lgkmcnt(2)")
        else: A("s_waitcnt lgkmcnt(0)")
        for i in range(ntile):
            for tt in range(2):
                A("v_mfma_f32_16x16x32_bf16 %s, %s, %s, %s" % (v(ACC(i, tt), 4), R(WREG(i, ks), 4), v(BF[ks & 1][tt], 4), "0" if ks == 0 else v(ACC(i, tt), 4)))

def emit_r4(A, fail, nseg=64, st="sc1"):
    A.c("=== R4")
    WREG = lambda i, ks: ('a', 4 * ks)
    vFl, vB0, vOut, VS, TMP = 1, 2, 4, 6, 16
    BF = [[40, 44], [48, 52]]; ACC = lambda i, tt: 56 + 4 * tt
    load_srd(A, pW, "w1")
    A("s_lshl_b32 %s, %s, 7" % (s(pT), s(pID)))
    A("s_lshl_b32 %s, %s, 5" % (s(pT + 1), s(pWV)))
    load_w576(A, pW, pT, 1152, 128, 1, WREG, s(pT + 1), TMP)
    stage_consts(A, VS, vB0, TMP)
    A("v_and_b32 v%d, 63, v0" % TMP); A("v_min_u32 v%d, 31, v%d" % (vFl, TMP)); A("v_lshlrev_b32 v%d, 2, v%d" % (vFl, vFl))
    sTl, sDL, sPOS = 44, 45, 46
    A("s_lshl_b32 %s, %s, 2" % (s(sTl), s(pID))); A("s_add_u32 %s, %s, %s" % (s(sTl), s(sTl), s(pWV)))
    A("s_mov_b32 %s, 1" % s(sDL))
    for thr, d in ((9, -1), (18, 2), (27, -2)):
        A("s_cmp_ge_u32 %s, %d" % (s(sTl), thr)); A("s_cselect_b32 %s, %d, %s" % (s(sDL), d, s(sDL)))
    A("s_lshr_b32 %s, %s, 1" % (s(sPOS), s(sTl))); A("s_lshl_b32 %s, %s, 6" % (s(sPOS), s(sPOS)))
    A("s_and_b32 %s, %s, 1" % (s(pT), s(sTl))); A("s_lshl_b32 %s, %s, 3" % (s(pT), s(pT))); A("s_add_u32 %s, %s, %s" % (s(sPOS), s(sPOS), s(pT)))
    A("s_add_u32 %s, %s, 0x%x" % (s(sPOS), s(sPOS), GSB))
    vC, vG16 = 4, 5
    A("v_and_b32 v%d, 15, v%d" % (vC, TMP)); A("v_lshrrev_b32 v%d, 4, v%d" % (vG16, TMP)); A("v_lshlrev_b32 v%d, 4, v%d" % (vG16, vG16))
    A("v_mov_b64 v[%d:%d], 0" % (TMP + 2, TMP + 3))
    A("s_cmp_gt_i32 %s, 0" % s(sDL)); A("s_cselect_b32 %s, 0, 2046" % s(pT))
    A("v_add_u32 v%d, %s, v%d" % (TMP + 4, s(pT), vC))
    A("s_abs_i32 %s, %s" % (s(pT + 1), s(sDL)))
    A("s_cmp_eq_u32 %s, 2" % s(pT + 1)); A("s_cselect_b32 %s, 3, 0" % s(pT + 2))
    A("s_cmp_eq_i32 %s, 1" % s(sDL)); A("s_cselect_b32 %s, 1, %s" % (s(pT + 2), s(pT + 2)))
    A("s_cmp_eq_i32 %s, -1" % s(sDL)); A("s_cselect_b32 %s, 2, %s" % (s(pT + 2), s(pT + 2)))
    A("v_lshlrev_b32 v%d, v%d, 1" % (TMP + 5, vC) if False else "v_mov_b32 v%d, 1" % (TMP + 5)); A("v_lshlrev_b32 v%d, v%d, v%d" % (TMP + 5, vC, TMP + 5))
    A("v_and_b32 v%d, %s, v%d" % (TMP + 5, s(pT + 2), TMP + 5)); A("v_cmp_ne_u32 vcc, 0, v%d" % (TMP + 5))
    A("v_mul_u32_u24 v%d, %d, v%d" % (TMP + 4, ROW, TMP + 4)); A("v_add_u32 v%d, v%d, v%d" % (TMP + 4, TMP + 4, vG16)); A("v_mov_b32 v%d, 0x40000000" % (TMP + 6))
    A("v_cndmask_b32 v%d, v%d, v%d, vcc" % (TMP + 4, TMP + 6, TMP + 4))
    A("buffer_store_dwordx2 %s, v%d, %s, %s offen %s" % (v(TMP + 2, 2), TMP + 4, s(pWS, 4), s(sPOS), st))
    A("s_lshl_b32 %s, %s, 2" % (s(pFOFF), s(pID))); A("s_add_u32 %s, %s, 0x%x" % (s(pFOFF), s(pFOFF), F_R4))
    A("s_mov_b32 %s, 0" % s(pS))
    top = A.newlab("r4_top"); m0 = A.mark(); A.label(top)
    A("s_add_u32 %s, %s, 1" % (s(pT + 4), s(pS)))
    A("s_mov_b32 %s, 0x%x" % (s(pT + 5), F_R3))
    wait_flags(A, vFl, s(pT + 5), s(pT + 4), fail, TMP, pend_sc=st)
    A("s_mul_i32 %s, %s, %d" % (s(pT), s(pS), 32 * ROW)); A("s_add_u32 %s, %s, 0x%x" % (s(pT), s(pT), TB))
    stage_rows(A, pT, VS, 0)
    A("s_waitcnt vmcnt(0)"); A("s_barrier")
    small_gemm(A, WREG, ACC, BF, vB0, 0, 1)
    A("s_nop 7")
    regs = [56 + i for i in range(8)]
    for r in regs: rb16(A, r)
    gelu(A, regs, TMP)
    for tt in range(2):
        x = 56 + 4 * tt
        A("v_cvt_pk_bf16_f32 v%d, v%d, v%d" % (TMP + 2 * tt, x, x + 1)); A("v_cvt_pk_bf16_f32 v%d, v%d, v%d" % (TMP + 2 * tt + 1, x + 2, x + 3))
        A("s_lshl_b32 %s, %s, 5" % (s(pT), s(pS))); A("s_add_i32 %s, %s, %s" % (s(pT), s(pT), s(sDL))); A("s_add_i32 %s, %s, %d" % (s(pT), s(pT), 16 * tt))
        A("v_add_u32 v%d, %s, v%d" % (TMP + 4, s(pT), vC))
        A("v_cmp_gt_u32 vcc, 2048, v%d" % (TMP + 4))
        A("v_mul_u32_u24 v%d, %d, v%d" % (TMP + 4, ROW, TMP + 4)); A("v_add_u32 v%d, v%d, v%d" % (TMP + 4, TMP + 4, vG16)); A("v_mov_b32 v%d, 0x40000000" % (TMP + 5))
        A("v_cndmask_b32 v%d, v%d, v%d, vcc" % (TMP + 4, TMP + 5, TMP + 4))
        A("buffer_store_dwordx2 %s, v%d, %s, %s offen %s" % (v(TMP + 2 * tt, 2), TMP + 4, s(pWS, 4), s(sPOS), st))
    A("s_add_u32 %s, %s, 1" % (s(pS), s(pS))); A("s_mov_b32 %s, %s" % (s(pPEND), s(pS)))
    A("s_cmp_lt_u32 %s, %d" % (s(pS), nseg)); A("s_cbranch_scc1 %s" % top)
    m1 = A.mark()
    set_flag(A, s(pFOFF), s(pPEND), TMP + 8, sc=st)
    return (m0, m1)

def emit_r5(A, fail, nseg=64, st_in="sc1"):
    A.c("=== R5")
    WREG = lambda i, ks: ('a', 4 * ks)
    vFl, vB0, vC, vRowG, VS, TMP = 1, 2, 4, 5, 6, 16
    BF = [[40, 44], [48, 52]]; ACC = lambda i, tt: 56 + 4 * tt; HN = 64
    load_srd(A, pW, "w2")
    A("s_lshl_b32 %s, %s, 7" % (s(pT), s(pID))); A("s_lshl_b32 %s, %s, 5" % (s(pT + 1), s(pWV)))
    load_w576(A, pW, pT, 1152, 128, 1, WREG, s(pT + 1), TMP)
    stage_consts(A, VS, vB0, TMP)
    A("v_and_b32 v%d, 63, v0" % TMP); A("v_min_u32 v%d, 8, v%d" % (vFl, TMP)); A("v_lshlrev_b32 v%d, 2, v%d" % (vFl, vFl))
    sTl, sPOS = 44, 46
    A("s_lshl_b32 %s, %s, 2" % (s(sTl), s(pID))); A("s_add_u32 %s, %s, %s" % (s(sTl), s(sTl), s(pWV)))
    A("s_lshr_b32 %s, %s, 1" % (s(sPOS), s(sTl))); A("s_lshl_b32 %s, %s, 6" % (s(sPOS), s(sPOS)))
    A("s_and_b32 %s, %s, 1" % (s(pT), s(sTl))); A("s_lshl_b32 %s, %s, 3" % (s(pT), s(pT))); A("s_add_u32 %s, %s, %s" % (s(sPOS), s(sPOS), s(pT)))
    A("v_and_b32 v%d, 15, v%d" % (vC, TMP)); A("v_lshrrev_b32 v%d, 4, v%d" % (TMP + 1, TMP))
    A("v_mul_u32_u24 v%d, %d, v%d" % (vRowG, ROW, vC)); A("v_lshl_add_u32 v%d, v%d, 4, v%d" % (vRowG, TMP + 1, vRowG))
    A("s_lshl_b32 %s, %s, 2" % (s(pFOFF), s(pID))); A("s_add_u32 %s, %s, 0x%x" % (s(pFOFF), s(pFOFF), F_R5))
    L_ST = 36864
    A("s_mov_b32 %s, 0" % s(pS))
    top = A.newlab("r5_top"); m0 = A.mark(); A.label(top)
    A("s_add_u32 %s, %s, 2" % (s(pT + 4), s(pS))); A("s_min_u32 %s, %s, %d" % (s(pT + 4), s(pT + 4), 64))
    A("s_mov_b32 %s, 0x%x" % (s(pT + 5), F_R4))
    wait_flags(A, vFl, s(pT + 5), s(pT + 4), fail, TMP, sc=st_in, pend_sc="sc1")
    A("s_mul_i32 %s, %s, %d" % (s(pT + 6), s(pS), 32 * ROW))
    A("s_add_u32 %s, %s, 0x%x" % (s(pT), s(pT + 6), GSB))
    stage_rows(A, pT, VS, 0, sc=st_in)
    A("s_add_u32 %s, %s, %s" % (s(pT + 6), s(pT + 6), s(sPOS)))
    for tt in range(2):
        A("s_add_u32 %s, %s, 0x%x" % (s(pT), s(pT + 6), HNB + tt * 16 * ROW))
        A("buffer_load_dwordx2 %s, v%d, %s, %s offen sc1" % (v(HN + 2 * tt, 2), vRowG, s(pWS, 4), s(pT)))
    A("s_waitcnt vmcnt(0)"); A("s_barrier")
    small_gemm(A, WREG, ACC, BF, vB0, 0, 1)
    A("s_nop 7")
    regs = [56 + i for i in range(8)]
    for r in regs: rb16(A, r)
    for tt in range(2): unpack4(A, HN + 2 * tt, TMP + 4 * tt)
    for i, r in enumerate(regs): A("v_add_f32 v%d, v%d, v%d" % (r, r, TMP + i))
    for r in regs: rb16(A, r)
    for tt in range(2):
        x = 56 + 4 * tt
        A("v_cvt_pk_bf16_f32 v%d, v%d, v%d" % (TMP + 2 * tt, x, x + 1)); A("v_cvt_pk_bf16_f32 v%d, v%d, v%d" % (TMP + 2 * tt + 1, x + 2, x + 3))
        A("s_add_u32 %s, %s, 0x%x" % (s(pT), s(pT + 6), X1B + tt * 16 * ROW))
        A("buffer_store_dwordx2 %s, v%d, %s, %s offen sc1" % (v(TMP + 2 * tt, 2), vRowG, s(pWS, 4), s(pT)))
    for tt in range(2):
        x = 56 + 4 * tt; a_, b_ = TMP + 8 + 2 * tt, TMP + 9 + 2 * tt
        A("v_add_f32 v%d, v%d, v%d" % (a_, x, x + 1)); A("v_mul_f32 v%d, v%d, v%d" % (b_, x, x))
        A("v_add_f32 v%d, v%d, v%d" % (a_, a_, x + 2)); A("v_fma_f32 v%d, v%d, v%d, v%d" % (b_, x + 1, x + 1, b_))
        A("v_add_f32 v%d, v%d, v%d" % (a_, a_, x + 3)); A("v_fma_f32 v%d, v%d, v%d, v%d" % (b_, x + 2, x + 2, b_))
        A("v_fma_f32 v%d, v%d, v%d, v%d" % (b_, x + 3, x + 3, b_))
    for sw in ("v_permlane16_swap_b32", "v_permlane32_swap_b32"):
        for k in range(4): A("v_mov_b32 v%d, v%d" % (TMP + 12 + k, TMP + 8 + k))
        A("s_nop 0")
        for k in range(4): A("%s v%d, v%d" % (sw, TMP + 8 + k, TMP + 12 + k))
        for k in range(4): A("v_add_f32 v%d, v%d, v%d" % (TMP + 8 + k, TMP + 8 + k, TMP + 12 + k))
    A("s_lshl_b32 %s, %s, 8" % (s(pT), s(pWV))); A("v_lshl_add_u32 v%d, v%d, 3, %s" % (TMP, vC, s(pT)))
    A("s_mov_b64 exec, 0xffff")
    A("ds_write_b64 v%d, %s offset:%d" % (TMP, v(TMP + 8, 2), L_ST)); A("ds_write_b64 v%d, %s offset:%d" % (TMP, v(TMP + 10, 2), L_ST + 128))
    A("s_mov_b64 exec, -1")
    A("s_waitcnt lgkmcnt(0)"); A("s_barrier")
    sk = A.newlab("r5_st")
    A("s_cmp_eq_u32 %s, 0" % s(pWV)); A("s_cbranch_scc0 %s" % sk)
    A("v_and_b32 v%d, 31, v0" % TMP); A("v_lshlrev_b32 v%d, 3, v%d" % (TMP, TMP))
    for w_ in range(4): A("ds_read_b64 %s, v%d offset:%d" % (v(TMP + 2 + 2 * w_, 2), TMP, L_ST + 256 * w_))
    A("s_waitcnt lgkmcnt(0)")
    A("v_add_f32 v%d, v%d, v%d" % (TMP + 2, TMP + 2, TMP + 4)); A("v_add_f32 v%d, v%d, v%d" % (TMP + 3, TMP + 3, TMP + 5))
    A("v_add_f32 v%d, v%d, v%d" % (TMP + 6, TMP + 6, TMP + 8)); A("v_add_f32 v%d, v%d, v%d" % (TMP + 7, TMP + 7, TMP + 9))
    A("v_add_f32 v%d, v%d, v%d" % (TMP + 2, TMP + 2, TMP + 6)); A("v_add_f32 v%d, v%d, v%d" % (TMP + 3, TMP + 3, TMP + 7))
    A("s_mul_i32 %s, %s, 9" % (s(pT), s(pS))); A("s_add_u32 %s, %s, %s" % (s(pT), s(pT), s(pID))); A("s_lshl_b32 %s, %s, 8" % (s(pT), s(pT))); A("s_add_u32 %s, %s, 0x%x" % (s(pT), s(pT), STB))
    A("s_mov_b32 exec_hi, 0")
    A("buffer_store_dwordx2 %s, v%d, %s, %s offen sc1" % (v(TMP + 2, 2), TMP, s(pWS, 4), s(pT)))
    A("s_mov_b64 exec, -1")
    A.label(sk)
    A("s_add_u32 %s, %s, 1" % (s(pS), s(pS))); A("s_mov_b32 %s, %s" % (s(pPEND), s(pS)))
    A("s_cmp_lt_u32 %s, %d" % (s(pS), nseg)); A("s_cbranch_scc1 %s" % top)
    m1 = A.mark()
    set_flag(A, s(pFOFF), s(pPEND), TMP + 12)
    return (m0, m1)

def emit_r67(A, fail, nseg=64, nsets=2):
    A.c("=== R67")
    sN, sSET = 44, 45
    A("s_cmp_ge_u32 %s, 36" % s(pID)); A("s_cselect_b32 %s, 1, 0" % s(sSET))
    A("s_mul_i32 %s, %s, 36" % (s(pT), s(sSET))); A("s_sub_u32 %s, %s, %s" % (s(sN), s(pID), s(pT)))
    W3 = lambda i, ks: ('a', (i * 18 + ks) * 4)
    def W4(i, ks):
        k = i * 4 + ks
        return ('a', 144 + 4 * k) if k < 28 else ('v', 224 + 4 * (k - 28))
    vFl, vB0, vTok, vSt, vSt8, vL16, VS, TMP = 1, 2, 4, 5, 15, 16, 6, 20
    CS, ST = 48, 56
    BF = [[60, 64], [68, 72]]
    ACC3 = lambda i, tt: 76 + 4 * (i * 2 + tt)
    OB = lambda tt, ks: 96 + 4 * (tt * 4 + ks)
    ACC4 = lambda i, tt: 128 + 4 * (i * 2 + tt)
    A("v_and_b32 v%d, 63, v0" % TMP); A("v_lshlrev_b32 v%d, 4, v%d" % (vL16, TMP))
    load_srd(A, pW, "w3")
    A("s_lshl_b32 %s, %s, 8" % (s(pT), s(sN))); A("s_lshl_b32 %s, %s, 6" % (s(pT + 1), s(pWV)))
    load_w576(A, pW, pT, 9216, 256, 2, W3, s(pT + 1), TMP)
    for i in range(4): A("v_mov_b32 v%d, 0x3f803f80" % (TMP + 8 + i))
    A("s_nop 1")
    for i in range(2):
        for ks in range(18):
            A("v_mfma_f32_16x16x32_bf16 %s, %s, %s, %s" % (v(CS + 4 * i, 4), R(W3(i, ks), 4), v(TMP + 8, 4), "0" if ks == 0 else v(CS + 4 * i, 4)))
    load_srd(A, pW, "w4")
    A("s_mul_i32 %s, %s, %d" % (s(pT), s(sN), 128 * 1152))
    dma_linear(A, pW, pT, 147456, 0, vL16)
    A("s_waitcnt vmcnt(0)"); A("s_barrier")
    A("s_mul_i32 %s, %s, 288" % (s(pT + 1), s(pWV)))
    load_k128_weights(A, TMP, W4, 1152, 0, s(pT + 1))
    A("s_barrier")
    stage_consts(A, VS, vB0, TMP)
    A("v_and_b32 v%d, 63, v0" % TMP); A("v_min_u32 v%d, 8, v%d" % (vFl, TMP)); A("v_lshlrev_b32 v%d, 2, v%d" % (vFl, vFl))
    A("v_and_b32 v%d, 15, v%d" % (TMP + 1, TMP)); A("v_lshrrev_b32 v%d, 4, v%d" % (TMP + 2, TMP))
    A("v_mul_u32_u24 v%d, %d, v%d" % (vTok, 36 * ROW, TMP + 1)); A("v_lshl_add_u32 v%d, v%d, 4, v%d" % (vTok, TMP + 2, vTok))
    A("v_lshlrev_b32 v%d, 8, v%d" % (vSt, TMP + 2)); A("v_lshl_add_u32 v%d, v%d, 3, v%d" % (vSt, TMP + 1, vSt))
    A("v_lshlrev_b32 v%d, 3, v%d" % (vSt8, TMP + 1)); A("v_add_u32 v%d, 2048, v%d" % (vSt8, vSt8)); A("v_mov_b32 v%d, 0x40000000" % (TMP + 3))
    A("v_cmp_eq_u32 vcc, 0, v%d" % (TMP + 2)); A("s_nop 1"); A("v_cndmask_b32 v%d, v%d, v%d, vcc" % (vSt8, TMP + 3, vSt8))
    sOUT = 46
    A("s_mul_i32 %s, %s, 9" % (s(pT), s(pWV))); A("s_lshr_b32 %s, %s, 1" % (s(pT), s(pT))); A("s_lshl_b32 %s, %s, 6" % (s(pT), s(pT)))
    A("s_mul_i32 %s, %s, 1152" % (s(sOUT), s(sN))); A("s_add_u32 %s, %s, %s" % (s(sOUT), s(sOUT), s(pT))); A("s_add_u32 %s, %s, 0x%x" % (s(sOUT), s(sOUT), P67))
    A("s_lshl_b32 %s, %s, 2" % (s(pFOFF), s(pID))); A("s_add_u32 %s, %s, 0x%x" % (s(pFOFF), s(pFOFF), F_R67))
    L_X, L_O = 0, 36864
    A("s_mov_b32 %s, %s" % (s(pS), s(sSET)))
    top = A.newlab("r67_top"); m0 = A.mark(); A.label(top)
    A("s_add_u32 %s, %s, 1" % (s(pT + 4), s(pS))); A("s_mov_b32 %s, 0x%x" % (s(pT + 5), F_R5))
    wait_flags(A, vFl, s(pT + 5), s(pT + 4), fail, TMP, pend_sc="sc1")
    A("s_mul_i32 %s, %s, %d" % (s(pT), s(pS), 32 * ROW)); A("s_add_u32 %s, %s, 0x%x" % (s(pT), s(pT), X1B))
    stage_rows(A, pT, VS, L_X)
    A("s_mul_i32 %s, %s, %d" % (s(pT), s(pS), 9 * 256)); A("s_add_u32 %s, %s, 0x%x" % (s(pT), s(pT), STB))
    for tt in range(2):
        A("buffer_load_dwordx2 %s, v%d, %s, %s offen offset:%d sc1" % (v(TMP + 6 * tt, 2), vSt, s(pWS, 4), s(pT), 128 * tt))
        A("buffer_load_dwordx2 %s, v%d, %s, %s offen offset:%d sc1" % (v(TMP + 6 * tt + 2, 2), vSt, s(pWS, 4), s(pT), 1024 + 128 * tt))
        A("buffer_load_dwordx2 %s, v%d, %s, %s offen offset:%d sc1" % (v(TMP + 6 * tt + 4, 2), vSt8, s(pWS, 4), s(pT), 128 * tt))
    A("s_waitcnt vmcnt(0)"); A("s_barrier")
    for tt in range(2):
        b = TMP + 6 * tt
        for k in range(2):
            A("v_add_f32 v%d, v%d, v%d" % (b + k, b + k, b + 2 + k)); A("v_add_f32 v%d, v%d, v%d" % (b + k, b + k, b + 4 + k))
    st4 = [TMP, TMP + 1, TMP + 6, TMP + 7]
    for sw in ("v_permlane16_swap_b32", "v_permlane32_swap_b32"):
        for k in range(4): A("v_mov_b32 v%d, v%d" % (TMP + 12 + k, st4[k]))
        A("s_nop 0")
        for k in range(4): A("%s v%d, v%d" % (sw, st4[k], TMP + 12 + k))
        for k in range(4): A("v_add_f32 v%d, v%d, v%d" % (st4[k], st4[k], TMP + 12 + k))
    for tt in range(2):
        vsum, vsq = TMP + 6 * tt, TMP + 6 * tt + 1
        A("v_mul_f32 v%d, 0x%x, v%d" % (vsum, f2u(1.0 / 576), vsum)); A("v_mul_f32 v%d, 0x%x, v%d" % (vsq, f2u(1.0 / 576), vsq))
        A("v_fma_f32 v%d, -v%d, v%d, v%d" % (vsq, vsum, vsum, vsq)); A("v_max_f32 v%d, 0, v%d" % (vsq, vsq))
        rb16(A, vsum); rb16(A, vsq)
        A("v_add_f32 v%d, 0x%x, v%d" % (vsq, f2u(1e-5), vsq)); rb16(A, vsq)
        A("v_sqrt_f32 v%d, v%d" % (vsq, vsq)); A("s_nop 0"); rb16(A, vsq)
        A("v_rcp_f32 v%d, v%d" % (ST + 2 * tt, vsq)); A("v_mov_b32 v%d, v%d" % (ST + 2 * tt + 1, vsum))
    small_gemm(A, W3, ACC3, BF, vB0, L_X, 2)
    A("s_nop 7")
    for tt in range(2):
        regs = []
        for i in range(2):
            for r in range(4):
                x = ACC3(i, tt) + r; regs.append(x)
                A("v_fma_f32 v%d, -v%d, v%d, v%d" % (x, ST + 2 * tt + 1, CS + 4 * i + r, x))
        for x in regs: A("v_mul_f32 v%d, v%d, v%d" % (x, x, ST + 2 * tt))
        for x in regs: rb16(A, x)
        gelu(A, regs, TMP)
        d = 92
        for q in range(4): A("v_cvt_pk_bf16_f32 v%d, v%d, v%d" % (d + q, regs[2 * q], regs[2 * q + 1]))
        A("s_lshl_b32 %s, %s, 10" % (s(pT), s(pWV))); A("v_add_u32 v%d, %s, v%d" % (TMP + 10, s(pT), vL16))
        if tt == 0: A("s_barrier")
        A("ds_write_b128 v%d, %s offset:%d" % (TMP + 10, v(d, 4), L_O + tt * 4096))
        A("s_nop 1")
    A("s_waitcnt lgkmcnt(0)"); A("s_barrier")
    for ks in range(4):
        for tt in range(2): A("ds_read_b128 %s, v%d offset:%d" % (v(OB(tt, ks), 4), vL16, L_O + tt * 4096 + ks * 1024))
    k128_gemm(A, W4, OB, ACC4, lambda ks: A("s_waitcnt lgkmcnt(%d)" % (6 - 2 * ks)))
    A("s_nop 7")
    A("s_mul_i32 %s, %s, %d" % (s(pT), s(pS), 32 * 36 * ROW)); A("s_add_u32 %s, %s, %s" % (s(pT), s(pT), s(sOUT)))
    sigma_store(A, ACC4, vTok, pT, TMP, None, 16 * 36 * ROW)
    A("s_add_u32 %s, %s, 1" % (s(pPEND), s(pS)))
    A("s_add_u32 %s, %s, %d" % (s(pS), s(pS), nsets))
    A("s_cmp_lt_u32 %s, %d" % (s(pS), nseg)); A("s_cbranch_scc1 %s" % top)
    m1 = A.mark()
    set_flag(A, s(pFOFF), s(pPEND), TMP)
    return (m0, m1)

def emit_r8(A, fail, nseg=64, nsets=2):
    A.c("=== R8")
    vM, vX, vX2, vSm, vSx, vNm, vNx, vFl = 1, 2, 3, 4, 5, 6, 7, 8
    SEL, DM, DX, HQ, XQ, TMP, LD = 12, 16, 20, 24, 28, 32, 48
    OUT = 48
    load_srd(A, OUT, "out")
    emit_sel(A, SEL, TMP)
    reduce_rows_consts(A, vM, vX, vX2, 36, TMP)
    rowpos_consts(A, vSm, vSx, vNm, vNx, TMP)
    A("v_and_b32 v%d, 63, v0" % TMP); A("v_min_u32 v%d, 35, v%d" % (vFl, TMP)); A("v_lshlrev_b32 v%d, 2, v%d" % (vFl, vFl))
    sIN, sROW, sFL = 44, 45, 46
    A("s_mov_b32 %s, 0" % s(pS)); A("s_mov_b32 %s, 0x07060302" % s(pT + 14))
    top = A.newlab("r8_top"); m0 = A.mark(); A.label(top)
    A("s_lshl_b32 %s, %s, 5" % (s(sROW), s(pS))); A("s_add_u32 %s, %s, %s" % (s(sROW), s(sROW), s(pID))); A("s_mul_i32 %s, %s, %d" % (s(sROW), s(sROW), ROW))
    if nsets == 2:
        A("s_and_b32 %s, %s, 1" % (s(sFL), s(pS))); A("s_mul_i32 %s, %s, 144" % (s(sFL), s(sFL))); A("s_add_u32 %s, %s, 0x%x" % (s(sFL), s(sFL), F_R67))
    else: A("s_mov_b32 %s, 0x%x" % (s(sFL), F_R67))
    A("s_add_u32 %s, %s, 1" % (s(pT + 4), s(pS)))
    wait_flags(A, vFl, s(sFL), s(pT + 4), fail, TMP)
    A("s_add_u32 %s, %s, 0x%x" % (s(pT), s(sROW), HB)); A("s_add_u32 %s, %s, 0x%x" % (s(pT + 1), s(sROW), X1B))
    A("buffer_load_dwordx2 %s, v%d, %s, %s offen sc1" % (v(HQ, 2), vSm, s(pWS, 4), s(pT))); A("buffer_load_dwordx2 %s, v%d, %s, %s offen sc1" % (v(HQ + 2, 2), vSx, s(pWS, 4), s(pT)))
    A("buffer_load_dwordx2 %s, v%d, %s, %s offen sc1" % (v(XQ, 2), vSm, s(pWS, 4), s(pT + 1))); A("buffer_load_dwordx2 %s, v%d, %s, %s offen sc1" % (v(XQ + 2, 2), vSx, s(pWS, 4), s(pT + 1)))
    A("s_mul_i32 %s, %s, %d" % (s(sIN), s(pS), 32 * 36 * ROW)); A("s_mul_i32 %s, %s, %d" % (s(pT), s(pID), 36 * ROW))
    A("s_add_u32 %s, %s, %s" % (s(sIN), s(sIN), s(pT))); A("s_mul_i32 %s, %s, 288" % (s(pT), s(pWV))); A("s_add_u32 %s, %s, %s" % (s(sIN), s(sIN), s(pT)))
    A("s_add_u32 %s, %s, 0x%x" % (s(sIN), s(sIN), P67))
    reduce_rows(A, sIN, 36, vM, vX, vX2, LD, SEL, DM, DX)
    vals = [DM + r for r in range(4)] + [DX + r for r in range(4)]
    for r in vals: rb16(A, r)
    unpack4(A, XQ, TMP); unpack4(A, XQ + 2, TMP + 4)
    for i, r in enumerate(vals): A("v_add_f32 v%d, v%d, v%d" % (r, r, TMP + i))
    for r in vals: rb16(A, r)
    unpack4(A, HQ, TMP); unpack4(A, HQ + 2, TMP + 4)
    for i, r in enumerate(vals): A("v_add_f32 v%d, v%d, v%d" % (r, r, TMP + i))
    A("v_cvt_pk_bf16_f32 v%d, v%d, v%d" % (TMP, DM, DM + 1)); A("v_cvt_pk_bf16_f32 v%d, v%d, v%d" % (TMP + 1, DM + 2, DM + 3))
    A("v_cvt_pk_bf16_f32 v%d, v%d, v%d" % (TMP + 2, DX, DX + 1)); A("v_cvt_pk_bf16_f32 v%d, v%d, v%d" % (TMP + 3, DX + 2, DX + 3))
    A("buffer_store_dwordx2 %s, v%d, %s, %s offen" % (v(TMP, 2), vNm, s(OUT, 4), s(sROW)))
    A("buffer_store_dwordx2 %s, v%d, %s, %s offen" % (v(TMP + 2, 2), vNx, s(OUT, 4), s(sROW)))
    A("s_add_u32 %s, %s, 1" % (s(pS), s(pS)))
    A("s_cmp_lt_u32 %s, %d" % (s(pS), nseg)); A("s_cbranch_scc1 %s" % top)
    A("s_waitcnt vmcnt(0)")
    return (m0, A.mark())
```

```python
from gen_common import *

sWS, sW, sDBG = 4, 8, 12
sH, sWV, sS, sFAST, sVX, sVT, sBYTE = 16, 17, 18, 19, 20, 21, 22
sT = 24
sEXC = 40
sKoff, sVoff, sKM, sVM, sSpin = 42, 43, 44, 45, 46
sPRc, sPRo, sPWc, sPWo, sP9c, sP9o, sMc, sMo = 47, 48, 49, 50, 51, 52, 53, 54
sPXc, sPXo, sXTRA, sM3, sMW1 = 55, 56, 57, 58, 59
sFKM = 62
sMQ, sODD, sS9 = 80, 88, 90
sW4096 = 60
sHoff = 61
sPROF = 64
sSRD = dict(Wq=80, Wk=84, Wv=88, Wo=92)
vL16, vIdx, vSel, vLW, vSw, vSw0, vSr, vSr0, vOw, vPL, vP9, vMx, vMst, vPf, vDum = 0, 1, 2, 4, 5, 6, 7, 8, 9, 10, 11, 12, 13, 14, 15
Ks, Vs = 16, 24
Msp = [32, 36, 40]
accQ = [44, 48, 52, 56]
accV = [72, 76]
LWA, LWB = 64, 72
L_M, L_S, L_O, L_V1, L_W1 = 0, 9216, 14336, 16384, 90112
def Wq_t(t, et): return ('a', (t * 2 + et) * 8)
def Wv_t(t, et):
    i = t * 2 + et
    return ('a', 144 + 8 * i) if i < 14 else ('v', 80 + 8 * (i - 14))
def Wk0_t(t): return ('v', 112 + 8 * t)
def Wo0_t(tau): return ('v', 184 + 8 * tau)
def RR(spec, cnt, off=0): return R((spec[0], spec[1] + off), cnt)

class Q:
    def __init__(self, A, name): self.A, self.name, self.q = A, name, []
    def add(self, tag): self.q.append(tag)
    def wait(self, tag):
        idx = max(i for i, t in enumerate(self.q) if t == tag) if tag in self.q else -1
        if idx < 0: return
        n = len(self.q) - 1 - idx
        assert n <= (15 if self.name == "lgkmcnt" else 63), (self.name, n)
        self.A("s_waitcnt %s(%d)" % (self.name, n))
        self.q = self.q[idx + 1:]
    def waitall(self):
        self.A("s_waitcnt %s(0)" % self.name); self.q = []

def emit_rec_prologue(A, fail):
    A.c("=== REC prologue: lane constants for the weight loads")
    vLane, vG, vRho, vSlot, vA, vB, vA8, vB8, vAo, vBo, vN0, vN1, vT, vTn, vTmp, vTmp2 = range(16, 32)
    A("v_and_b32 v%d, 63, v0" % vLane)
    A("v_lshrrev_b32 v%d, 4, v%d" % (vRho, vLane))
    A("v_and_b32 v%d, 15, v%d" % (vSlot, vLane))
    A("v_lshlrev_b32 v%d, 1, v%d" % (vTmp, vRho))
    A("v_xor_b32 v%d, v%d, v%d" % (vTmp, vSlot, vTmp))
    A("v_lshlrev_b32 v%d, 4, v%d" % (vTmp, vTmp))
    A("v_and_b32 v%d, 1, v%d" % (vTmp2, vRho))
    A("v_lshlrev_b32 v%d, 4, v%d" % (vTmp2, vTmp2))
    A("v_lshrrev_b32 v%d, 1, v%d" % (vA, vRho))
    A("v_add_u32 v%d, v%d, v%d" % (vA, vA, vTmp2))
    A("s_lshl_b32 %s, %s, 1" % (s(sT), s(sWV)))
    A("v_add_u32 v%d, %s, v%d" % (vA, s(sT), vA))
    A("v_lshlrev_b32 v%d, 13, v%d" % (vA, vA))
    A("v_add_u32 v%d, v%d, v%d" % (vA, vA, vTmp))
    A("v_xor_b32 v%d, 128, v%d" % (vB, vA))
    A("s_mul_i32 %s, %s, 144" % (s(sT), s(sWV)))
    A("v_lshrrev_b32 v%d, 1, v%d" % (vA8, vRho))
    A("v_lshlrev_b32 v%d, 3, v%d" % (vA8, vA8))
    A("v_and_b32 v%d, 1, v%d" % (vB8, vRho))
    A("v_add3_u32 v%d, v%d, v%d, %s" % (vA8, vA8, vB8, s(sT)))
    A("v_lshlrev_b32 v%d, 13, v%d" % (vA8, vA8))
    A("v_add_u32 v%d, v%d, v%d" % (vA8, vA8, vTmp))
    A("v_xor_b32 v%d, 128, v%d" % (vB8, vA8))
    A("s_lshr_b32 %s, %s, 1" % (s(sT), s(sWV)))
    A("s_lshl_b32 %s, %s, 5" % (s(sT), s(sT)))
    A("s_and_b32 %s, %s, 1" % (s(sT + 1), s(sWV)))
    A("s_lshl_b32 %s, %s, 3" % (s(sT + 1), s(sT + 1)))
    A("s_add_u32 %s, %s, %s" % (s(sT + 2), s(sT), s(sT + 1)))
    A("v_lshrrev_b32 v%d, 1, v%d" % (vAo, vRho))
    A("v_lshlrev_b32 v%d, 2, v%d" % (vAo, vAo))
    A("v_and_b32 v%d, 1, v%d" % (vTmp2, vRho))
    A("v_add3_u32 v%d, v%d, v%d, %s" % (vAo, vAo, vTmp2, s(sT + 2)))
    A("s_movk_i32 %s, 1152" % s(sT + 3))
    A("v_mul_lo_u32 v%d, v%d, %s" % (vAo, vAo, s(sT + 3)))
    A("v_xor_b32 v%d, 128, v%d" % (vTmp2, vTmp))
    A("v_add_u32 v%d, v%d, v%d" % (vBo, vAo, vTmp2))
    A("v_add_u32 v%d, v%d, v%d" % (vAo, vAo, vTmp))
    A("v_lshrrev_b32 v%d, 3, v%d" % (vTmp, vLane))
    A("v_bfe_u32 v%d, v%d, 1, 1" % (vTmp2, vTmp))
    A("v_lshlrev_b32 v%d, 2, v%d" % (vN0, vTmp2))
    A("v_lshrrev_b32 v%d, 2, v%d" % (vN1, vTmp))
    A("v_lshl_add_u32 v%d, v%d, 1, v%d" % (vN0, vN1, vN0))
    A("v_and_b32 v%d, 1, v%d" % (vN1, vTmp))
    A("v_add3_u32 v%d, v%d, v%d, %s" % (vN0, vN0, vN1, s(sT + 2)))
    A("v_mul_lo_u32 v%d, v%d, %s" % (vN0, vN0, s(sT + 3)))
    A("v_and_b32 v%d, 1, v%d" % (vTmp, vLane))
    A("v_lshl_add_u32 v%d, v%d, 4, v%d" % (vN0, vTmp, vN0))
    A("v_bfe_u32 v%d, v%d, 1, 2" % (vTmp, vLane))
    A("v_xor_b32 v%d, v%d, v%d" % (vTmp, vTmp, vTmp2))
    A("s_movk_i32 %s, 288" % s(sT + 4))
    A("v_xor_b32 v%d, 2, v%d" % (vTmp2, vTmp))
    A("v_mul_lo_u32 v%d, v%d, %s" % (vTmp, vTmp, s(sT + 4)))
    A("v_mul_lo_u32 v%d, v%d, %s" % (vTmp2, vTmp2, s(sT + 4)))
    A("v_add_u32 v%d, v%d, v%d" % (vN1, vN0, vTmp2))
    A("v_add_u32 v%d, v%d, v%d" % (vN0, vN0, vTmp))
    A("v_bfe_u32 v%d, v%d, 2, 2" % (vTmp, vLane))
    A("v_lshl_add_u32 v%d, v%d, 3, v%d" % (vTmp2, vRho, vTmp))
    A("v_lshlrev_b32 v%d, 8, v%d" % (vT, vTmp2))
    A("v_lshlrev_b32 v%d, 7, v%d" % (vTn, vTmp2))
    A("v_and_b32 v%d, 1, v%d" % (vTmp2, vRho))
    A("v_lshl_or_b32 v%d, v%d, 2, v%d" % (vSlot, vTmp2, vTmp))
    A("v_lshl_add_u32 v%d, v%d, 5, v%d" % (vT, vSlot, vT))
    A("v_lshrrev_b32 v%d, 1, v%d" % (vTmp, vTmp))
    A("v_lshl_or_b32 v%d, v%d, 1, v%d" % (vTmp, vTmp2, vTmp))
    A("v_xor_b32 v%d, %s, v%d" % (vTmp, s(sWV), vTmp))
    A("v_lshl_add_u32 v%d, v%d, 5, v%d" % (vTn, vTmp, vTn))
    A("v_and_b32 v%d, 3, v%d" % (vTmp, vLane))
    A("v_lshl_add_u32 v%d, v%d, 3, v%d" % (vT, vTmp, vT))
    A("v_lshl_add_u32 v%d, v%d, 3, v%d" % (vTn, vTmp, vTn))
    A("v_lshlrev_b32 v%d, 4, v%d" % (vL16, vLane))
    A("s_mul_i32 %s, %s, 18432" % (s(sT), s(sWV)))
    A("s_add_u32 %s, %s, %d" % (s(sT), s(sT), L_V1))
    A("v_add_u32 v%d, %s, v%d" % (vLW, s(sT), vL16))
    A("s_lshl_b32 %s, %s, 12" % (s(sW4096), s(sWV)))
    A("s_lshl_b32 %s, %s, 8" % (s(sHoff), s(sH)))
    A("s_mul_i32 %s, %s, %d" % (s(sT + 5), s(sH), 128 * 1152))
    sWoH = sT + 5

    vm = Q(A, "vmcnt")
    SL = [L_W1 + 16384 * i for i in range(4)] + [0]
    TAIL = L_W1 + 65536
    cur = [None]
    for nm, r in sSRD.items(): load_srd(A, r, nm)
    def setW(name): cur[0] = sSRD[name]
    def dma(vaddr, soff_imm, sbase, m0_imm, tag, wave_m0=True):
        if wave_m0: A("s_add_u32 m0, %s, %d" % (s(sW4096), m0_imm))
        A("s_add_u32 %s, %s, %d" % (s(sT + 8), s(sbase), soff_imm))
        A("buffer_load_dwordx4 v%d, %s, %s offen lds" % (vaddr, s(cur[0], 4), s(sT + 8)))
        vm.add(tag)
    def issue(slab, base):
        kind = slab[0]
        if kind in "vqk" and len(kind) == 1:
            t = slab[1]; setW({"v": "Wv", "q": "Wq", "k": "Wk"}[kind])
            for i in range(4):
                if t < 8:
                    U = 144 * (t >> 1) + 8 * (t & 1) + 32 * i; va = vA if i < 2 else vB
                else:
                    U = 128 + 2 * i; va = vA8 if i < 2 else vB8
                dma(va, U * 8192, sHoff, base + i * 1024, slab)
        elif kind == "om":
            tp, wo = slab[1], slab[2]; setW("Wo")
            for i in range(4):
                e = 64 * tp + 16 * (i >> 1) + 2 * (i & 1)
                dma(vAo if i < 2 else vBo, e * 1152 + 288 * wo, sWoH, base + i * 1024, slab)
        elif kind == "on":
            tp = slab[1]; setW("Wo")
            A("s_lshl_b32 %s, %s, 11" % (s(sT + 9), s(sWV)))
            for i in range(2):
                A("s_add_u32 m0, %s, %d" % (s(sT + 9), base + i * 1024))
                dma(vN0 if i == 0 else vN1, (64 * tp + 16 * i) * 1152 + 256, sWoH, 0, slab, wave_m0=False)
    OFFS = [0, 4 * 256, 32 * 256, 36 * 256]
    OFFN = [0, 4 * 128, 32 * 128, 36 * 128]
    vX, vY = 32, 33
    vTB = 36
    def trtile(dst, vaddr, offs):
        for u in range(4):
            A("ds_read_b64_tr_b16 %s, v%d offset:%d" % (RR(dst, 2, 2 * u), vaddr, offs[u]))
    def consume(slab, base):
        kind = slab[0]
        if kind in "vqk" and len(kind) == 1:
            t = slab[1]
            A("s_lshl_b32 %s, %s, 6" % (s(sT + 9), s(sWV)))
            A("v_xor_b32 v%d, %s, v%d" % (vX, s(sT + 9), vT))
            A("v_add_u32 v%d, %d, v%d" % (vX, base, vX) if base else "v_mov_b32 v%d, v%d" % (vX, vX))
            A("v_xor_b32 v%d, 32, v%d" % (vY, vX)) if base % 64 == 0 else None
            if kind == "q": d0, d1 = Wq_t(t, 0), Wq_t(t, 1)
            elif kind == "v": d0, d1 = Wv_t(t, 0), Wv_t(t, 1)
            else: d0, d1 = Wk0_t(t), ('v', vTB)
            trtile(d0, vX, OFFS); trtile(d1, vY, OFFS)
            A("s_waitcnt lgkmcnt(0)")
            if kind == "k":
                A("ds_write_b128 v%d, %s offset:%d" % (vLW, v(vTB, 4), t * 2048))
                A("ds_write_b128 v%d, %s offset:%d" % (vLW, v(vTB + 4, 4), t * 2048 + 1024))
                A("s_waitcnt lgkmcnt(0)")
        elif kind == "om":
            tp, wo = slab[1], slab[2]
            skip = A.newlab("om_skip")
            A("s_cmp_eq_u32 %s, %d" % (s(sWV), wo))
            A("s_cbranch_scc0 %s" % skip)
            for tau in range(8):
                A("v_xor_b32 v%d, %d, v%d" % (vX, tau << 5, vT))
                if base: A("v_add_u32 v%d, %d, v%d" % (vX, base, vX))
                trtile(Wo0_t(tau), vX, OFFS)
                if tau % 2 == 1: A("s_waitcnt lgkmcnt(0)")
            A.label(skip)
        elif kind == "on":
            A("v_add_u32 v%d, %d, v%d" % (vX, base, vTn) if base else "v_mov_b32 v%d, v%d" % (vX, vTn))
            trtile(Wo0_t(8), vX, OFFN)
            A("s_waitcnt lgkmcnt(0)")
    slabs = [("k", t) for t in range(9)] + [("q", t) for t in range(9)] + [("v", t) for t in range(9)] + \
            [("om", 0, w) for w in range(4)] + [("on", 0)]
    assert len(slabs) == 32
    for n in range(5): issue(slabs[n], SL[n % 5])
    follow = {27: (("om", 1, 2), SL[2]), 28: (("om", 1, 3), SL[3]), 29: (("on", 1), TAIL), 30: (("om", 1, 0), SL[0]), 31: (("om", 1, 1), SL[1])}
    for n in range(32):
        vm.wait(slabs[n])
        A("s_barrier")
        consume(slabs[n], SL[n % 5])
        A("s_barrier")
        if n + 5 < 32: issue(slabs[n + 5], SL[n % 5])
        else: issue(*follow[n])
    vm.waitall()
    A("s_barrier")
    A.c("re-layout Wo t'=1 tiles: natural -> linear (through v8..v79); own slab base = L_W1 + 16384*w")
    A("s_lshl_b32 %s, %s, 14" % (s(sT + 9), s(sWV)))
    A("s_add_u32 %s, %s, %d" % (s(sT + 9), s(sT + 9), L_W1))
    A("v_add_u32 v1, %s, v%d" % (s(sT + 9), vT))
    A("v_add_u32 v2, %d, v%d" % (TAIL, vTn))
    for tau in range(8):
        A("v_xor_b32 v3, %d, v1" % (tau << 5))
        trtile(('v', 8 + 8 * tau), 3, OFFS)
        if tau % 2 == 1: A("s_waitcnt lgkmcnt(0)")
    trtile(('v', 72), 2, OFFN)
    A("s_waitcnt lgkmcnt(0)")
    A("s_barrier")
    A("v_add_u32 v1, %d, v%d" % (L_W1 - L_V1, vLW))
    for tau in range(9):
        A("ds_write_b128 v1, %s offset:%d" % (v(8 + 8 * tau, 4), tau * 2048))
        A("ds_write_b128 v1, %s offset:%d" % (v(12 + 8 * tau, 4), tau * 2048 + 1024))
        if tau % 4 == 3: A("s_waitcnt lgkmcnt(0)")
    A("s_waitcnt lgkmcnt(0)")

def emit_rec_consts(A):
    A.c("=== persistent lane constants")
    t0, t1, t2, t3, t4 = 16, 17, 18, 19, 20
    lane, g, c = 21, 22, 23
    A("v_lshrrev_b32 v%d, 4, v%d" % (lane, vL16))
    A("v_lshrrev_b32 v%d, 4, v%d" % (g, lane))
    A("v_and_b32 v%d, 15, v%d" % (c, lane))
    A("v_mov_b32 v%d, 0x4444" % t0)
    A("v_mov_b32 v%d, 0xeeee" % t1)
    A("v_and_b32 v%d, 2, v%d" % (t2, c))
    A("v_cmp_eq_u32 vcc, 0, v%d" % t2)
    A("s_nop 1")
    A("v_cndmask_b32 v%d, v%d, v%d, vcc" % (vIdx, t1, t0))
    A("v_lshlrev_b32 v%d, 2, v%d" % (t0, g))
    A("v_sub_u32 v%d, v%d, v%d" % (t0, c, t0))
    A("v_mov_b32 v%d, 0x3f80" % t1)
    A("v_mov_b32 v%d, 0x3f800000" % t2)
    A("v_mov_b32 v%d, 0" % t3)
    for dst, (dl, dh) in ((vSel, (2, 3)), (vSel + 1, (0, 1))):
        A("v_cmp_eq_u32 vcc, %d, v%d" % (dl, t0))
        A("s_nop 1")
        A("v_cndmask_b32 v%d, v%d, v%d, vcc" % (dst, t3, t1))
        A("v_cmp_eq_u32 vcc, %d, v%d" % (dh, t0))
        A("s_nop 1")
        A("v_cndmask_b32 v%d, v%d, v%d, vcc" % (dst, dst, t2))
    A("v_lshrrev_b32 v%d, 2, v%d" % (t0, c))
    A("v_lshlrev_b32 v%d, 1, v%d" % (t0, t0))
    A("v_lshl_add_u32 v%d, v%d, 3, v%d" % (t0, g, t0))
    A("v_and_b32 v%d, 1, v%d" % (t1, c))
    A("v_add_u32 v%d, v%d, v%d" % (t0, t0, t1))
    A("s_mul_i32 %s, %s, 1280" % (s(sT), s(sWV)))
    A("s_add_u32 %s, %s, %d" % (s(sT), s(sT), L_S))
    A("v_lshl_add_u32 v%d, v%d, 4, %s" % (vSw, t0, s(sT)))
    A("v_lshl_add_u32 v%d, v%d, 3, %s" % (vSw0, t0, s(sT)))
    A("v_and_b32 v%d, 2, v%d" % (t1, c))
    A("v_xor_b32 v%d, 2, v%d" % (t1, t1))
    A("v_lshlrev_b32 v%d, 4, v%d" % (t2, t0))
    A("v_lshlrev_b32 v%d, 6, v%d" % (t3, t1))
    A("v_xor_b32 v%d, v%d, v%d" % (t2, t2, t3))
    A("v_lshl_add_u32 v%d, v%d, 8, v%d" % (t2, t1, t2))
    A("v_add_u32 v%d, %d, v%d" % (vSr, L_S + 256, t2))
    A("v_lshlrev_b32 v%d, 1, v%d" % (t2, t1))
    A("v_lshl_add_u32 v%d, v%d, 3, v%d" % (t2, t0, t2))
    A("v_add_u32 v%d, %d, v%d" % (vSr0, L_S, t2))
    A("v_lshrrev_b32 v%d, 1, v%d" % (t0, g))
    A("v_lshlrev_b32 v%d, 4, v%d" % (t0, t0))
    A("v_lshrrev_b32 v%d, 2, v%d" % (t1, c))
    A("v_lshl_add_u32 v%d, v%d, 2, v%d" % (t0, t1, t0))
    A("v_and_b32 v%d, 1, v%d" % (t1, g))
    A("v_lshl_add_u32 v%d, v%d, 1, v%d" % (t0, t1, t0))
    A("v_and_b32 v%d, 1, v%d" % (t1, c))
    A("v_add_u32 v%d, v%d, v%d" % (t0, t0, t1))
    A("s_and_b32 %s, %s, 1" % (s(sT), s(sWV)))
    A("s_lshl_b32 %s, %s, 9" % (s(sT), s(sT)))
    A("s_lshr_b32 %s, %s, 1" % (s(sT + 1), s(sWV)))
    A("s_lshl_b32 %s, %s, 10" % (s(sT + 1), s(sT + 1)))
    A("s_add_u32 %s, %s, %s" % (s(sT), s(sT), s(sT + 1)))
    A("s_add_u32 %s, %s, %d" % (s(sT), s(sT), L_O))
    A("v_lshl_add_u32 v%d, v%d, 4, %s" % (vOw, t0, s(sT)))
    A("v_lshrrev_b32 v%d, 2, v%d" % (t0, c))
    A("v_lshl_add_u32 v%d, v%d, 2, v%d" % (t0, t0, g))
    A("s_movk_i32 %s, %d" % (s(sT + 3), PSTR))
    A("v_mul_lo_u32 v%d, v%d, %s" % (t0, t0, s(sT + 3)))
    A("v_and_b32 v%d, 3, v%d" % (t1, c))
    A("v_lshl_add_u32 v%d, v%d, 4, v%d" % (vPL, t1, t0))
    A("v_mov_b32 v%d, 0x40000000" % t4)
    A("v_lshrrev_b32 v%d, 1, v%d" % (t0, g))
    A("v_lshl_add_u32 v%d, v%d, 1, v%d" % (t0, c, t0))
    A("v_lshlrev_b32 v%d, 4, v%d" % (t0, t0))
    A("v_and_b32 v%d, 1, v%d" % (t1, g))
    A("v_lshl_add_u32 v%d, v%d, 3, v%d" % (t0, t1, t0))
    A("v_cmp_gt_u32 vcc, 8, v%d" % c)
    A("s_nop 1")
    A("v_cndmask_b32 v%d, v%d, v%d, vcc" % (vP9, t4, t0))
    A("v_and_b32 v%d, 1, v%d" % (t0, c))
    A("v_lshrrev_b32 v%d, 1, v%d" % (t1, c))
    A("v_lshl_add_u32 v%d, v%d, 1, v%d" % (t0, t0, t1))
    A("s_lshr_b32 %s, %s, 2" % (s(sT), s(sH)))
    A("s_lshl_b32 %s, %s, 4" % (s(sT), s(sT)))
    A("s_and_b32 %s, %s, 3" % (s(sT + 1), s(sH)))
    A("s_lshl_b32 %s, %s, 2" % (s(sT + 1), s(sT + 1)))
    A("s_add_u32 %s, %s, %s" % (s(sT), s(sT), s(sT + 1)))
    A("v_add_u32 v%d, %s, v%d" % (t0, s(sT), t0))
    A("v_lshlrev_b32 v%d, 4, v%d" % (t0, t0))
    A("v_lshl_add_u32 v%d, v%d, 3, v%d" % (t0, g, t0))
    A("v_add_u32 v%d, 8192, v%d" % (t0, t0))
    A("v_cmp_gt_u32 vcc, 4, v%d" % c)
    A("v_cmp_gt_u32 %s, 2, v%d" % (s(sT + 6, 2), g))
    A("s_nop 1")
    A("s_and_b64 vcc, vcc, %s" % s(sT + 6, 2))
    A("s_nop 1")
    A("v_cndmask_b32 v%d, v%d, v%d, vcc" % (vMx, t4, t0))
    A("s_lshl_b32 %s, %s, 2" % (s(sT), s(sWV)))
    A("v_add_u32 v%d, %s, v%d" % (t0, s(sT), c))
    A("v_bfe_u32 v%d, v%d, 1, 2" % (t1, t0))
    A("v_lshlrev_b32 v%d, 4, v%d" % (t1, t1))
    A("v_and_b32 v%d, 1, v%d" % (t2, t0))
    A("v_lshl_add_u32 v%d, v%d, 1, v%d" % (t1, t2, t1))
    A("s_and_b32 %s, %s, 3" % (s(sT + 1), s(sH)))
    A("s_lshl_b32 %s, %s, 2" % (s(sT + 1), s(sT + 1)))
    A("v_add3_u32 v%d, v%d, v%d, %s" % (t1, t1, g, s(sT + 1)))
    A("s_lshr_b32 %s, %s, 2" % (s(sT + 2), s(sH)))
    A("s_and_b32 %s, %s, 1" % (s(sT + 2), s(sT + 2)))
    A("s_lshl_b32 %s, %s, 1" % (s(sT + 2), s(sT + 2)))
    A("v_lshlrev_b32 v%d, 2, v%d" % (t1, t1))
    A("v_add_u32 v%d, %s, v%d" % (t1, s(sT + 2), t1))
    A("v_and_b32 v%d, 63, v%d" % (t2, t1))
    A("v_lshrrev_b32 v%d, 6, v%d" % (t1, t1))
    A("v_lshl_add_u32 v%d, v%d, 2, v%d" % (t1, t2, t1))
    A("v_lshlrev_b32 v%d, 2, v%d" % (t1, t1))
    A("v_lshrrev_b32 v%d, 3, v%d" % (t2, t0))
    A("s_lshr_b32 %s, %s, 3" % (s(sT + 2), s(sH)))
    A("s_lshl_b32 %s, %s, 1" % (s(sT + 2), s(sT + 2)))
    A("v_add_u32 v%d, %s, v%d" % (t2, s(sT + 2), t2))
    A("v_lshl_add_u32 v%d, v%d, 10, v%d" % (t1, t2, t1))
    A("v_cmp_gt_u32 vcc, 4, v%d" % c)
    A("v_cmp_gt_u32 %s, 2, v%d" % (s(sT + 6, 2), g))
    A("s_nop 1")
    A("s_and_b64 vcc, vcc, %s" % s(sT + 6, 2))
    A("s_nop 1")
    A("v_cndmask_b32 v%d, v%d, v%d, vcc" % (vMst, t4, t1))
    A("v_lshlrev_b32 v%d, 3, v%d" % (t0, vL16))
    A("v_mov_b32 v%d, 0x%x" % (t1, VOP - 2048))
    A("v_cmp_lt_u32 vcc, 15, v%d" % lane)
    A("s_nop 1")
    A("v_cndmask_b32 v%d, 0, v%d, vcc" % (t1, t1))
    A("v_add_u32 v%d, v%d, v%d" % (t0, t0, t1))
    A("v_cmp_lt_u32 vcc, 31, v%d" % lane)
    A("s_nop 1")
    A("v_cndmask_b32 v%d, v%d, v%d, vcc" % (vPf, t0, t4))
    A("s_mov_b32 %s, 0xcccccccc" % s(sEXC))
    A("s_mov_b32 %s, 0xcccccccc" % s(sEXC + 1))
    def setmask(r, m):
        A("s_mov_b32 %s, 0x%x" % (s(r), m & 0xffffffff)); A("s_mov_b32 %s, 0x%x" % (s(r + 1), m >> 32))
    rows = lambda m16: m16 | (m16 << 16) | (m16 << 32) | (m16 << 48)
    for q in range(4): setmask(sMQ + 2 * q, rows(3 << (2 * q)))
    setmask(sODD, rows(0xaaaa))
    setmask(sS9, sum(1 << (18 * g_) for g_ in range(4)))
    setmask(sS9 + 2, sum(1 << (18 * g_ + 1) for g_ in range(4)))

def emit_rec_mem0(A):
    A.c("=== mem0 -> M staging")
    load_srd(A, sW, "mem0")
    lane, m, hi, gA, off, o8 = 16, 17, 18, 19, 20, 21
    A("v_lshrrev_b32 v%d, 4, v%d" % (lane, vL16))
    A("v_bfe_u32 v%d, v%d, 2, 2" % (m, lane))
    A("v_lshlrev_b32 v%d, 1, v%d" % (m, m))
    A("v_and_b32 v%d, 1, v%d" % (hi, lane))
    A("v_add_u32 v%d, v%d, v%d" % (m, m, hi))
    A("v_bfe_u32 v%d, v%d, 1, 1" % (hi, lane))
    A("v_lshrrev_b32 v%d, 4, v%d" % (gA, lane))
    A("v_lshl_add_u32 v%d, v%d, 1, v%d" % (hi, gA, hi))
    A("v_mul_u32_u24 v%d, 1152, v%d" % (m, m))
    A("s_lshr_b32 %s, %s, 1" % (s(sT), s(sWV)))
    A("s_mul_i32 %s, %s, 144" % (s(sT), s(sT)))
    A("s_and_b32 %s, %s, 1" % (s(sT + 1), s(sWV)))
    A("s_lshl_b32 %s, %s, 3" % (s(sT + 1), s(sT + 1)))
    A("s_add_u32 %s, %s, %s" % (s(sT), s(sT), s(sT + 1)))
    A("v_add_u32 v%d, %s, v%d" % (off, s(sT), hi))
    A("v_lshl_add_u32 v%d, v%d, 1, v%d" % (off, off, m))
    A("v_mul_u32_u24 v%d, 288, v%d" % (o8, gA))
    A("v_bfe_u32 v%d, v%d, 1, 1" % (22, lane))
    A("v_lshl_add_u32 v%d, v%d, 4, v%d" % (o8, 22, o8))
    A("v_add3_u32 v%d, v%d, v%d, 0" % (o8, o8, m))
    for k, (base, extra) in enumerate(((24, 0), (28, 576))):
        for j in range(8):
            A("buffer_load_ushort v%d, v%d, %s, 0 offen offset:%d" % (40 + j, off, s(sW, 4), extra + 32 * j))
        A("s_waitcnt vmcnt(0)")
        for j in range(4):
            A("v_lshl_or_b32 v%d, v%d, 16, v%d" % (base + j, 41 + 2 * j, 40 + 2 * j))
    A("buffer_load_dwordx4 v[32:35], v%d, %s, 0 offen offset:256" % (o8, s(sW, 4)))
    A("s_waitcnt vmcnt(0)")
    A("s_lshl_b32 %s, %s, 10" % (s(sT), s(sWV)))
    A("v_add_u32 v36, %s, v%d" % (s(sT), vL16))
    A("ds_write_b128 v36, v[24:27] offset:%d" % L_M)
    A("ds_write_b128 v36, v[28:31] offset:%d" % (L_M + 4096))
    A("ds_write_b128 v%d, v[32:35] offset:%d" % (vL16, L_M + 8192))
    A("s_waitcnt lgkmcnt(0)")
    A("s_barrier")

DUMPMAP = []
SCALE_LOG2E = 0.08838834764831845 * 1.4426950408889634
import struct
def f2u(x): return struct.unpack("<I", struct.pack("<f", x))[0]

def smf(A, acc, a_op, b_spec):
    A("v_smfmac_f32_16x16x64_bf16 %s, %s, %s, v%d" % (v(acc, 4), v(a_op, 4), RR(b_spec, 8), vIdx))

def zero_regs(A, r0, n):
    assert r0 % 2 == 0 and n % 2 == 0
    for i in range(0, n, 2): A("v_mov_b64 %s, 0" % v(r0 + i, 2))

DBGBUF = 0x4000000
DELAY_P = 0
DELAY_M = 0
def emit_rec_loop(A, fail, fast=True, prof=False, nsteps=64, dump=None, exp=(), pubflag=False):
    st = "" if fast else " sc1"
    WSR = s(sWS, 4)
    lg = Q(A, "lgkmcnt"); vm = Q(A, "vmcnt")
    def stamp(i):
        if prof:
            A("s_memtime %s" % s(sPROF + 14, 2))
            A("s_waitcnt lgkmcnt(0)")
            A("s_sub_u32 %s, %s, %s" % (s(sPROF + 12), s(sPROF + 14), s(sPROF + 13)))
            A("s_add_u32 %s, %s, %s" % (s(sPROF + i), s(sPROF + i), s(sPROF + 12)))
            A("s_mov_b32 %s, %s" % (s(sPROF + 13), s(sPROF + 14)))
            lg.q = []
    dumpslot = [0]
    def dbg(tag, regs):
        if dump is None: return
        lab = A.newlab("dump")
        A.c("lint-skip-begin")
        A("s_cmp_eq_u32 %s, %d" % (s(sS), dump))
        A("s_cbranch_scc0 %s" % lab)
        A("s_lshl_b32 s60, %s, 2" % s(sH))
        A("s_add_u32 s60, s60, %s" % s(sWV))
        A("s_lshl_b32 s60, s60, 15")
        A("s_add_u32 s60, s60, 0x%x" % DBGBUF)
        A("s_nop 7")
        A("s_nop 7")
        A("s_waitcnt vmcnt(0) lgkmcnt(0)")
        A("v_lshrrev_b32 v%d, 2, v%d" % (vDum, vL16))
        for r in regs:
            A("s_add_u32 s61, s60, %d" % (dumpslot[0] * 256))
            A("buffer_store_dword v%d, v%d, %s, s61 offen" % (r, vDum, WSR))
            DUMPMAP.append((tag, r, dumpslot[0])); dumpslot[0] += 1
        A("s_waitcnt vmcnt(0)")
        A.label(lab)
        A.c("lint-skip-end")
    A.c("=== REC main loop")
    A("s_mov_b32 %s, 0" % s(sS))
    A("s_lshl_b32 %s, %s, 13" % (s(sT), s(sH)))
    A("s_lshl_b32 %s, %s, 11" % (s(sT + 1), s(sWV)))
    A("s_add_u32 %s, %s, %s" % (s(sKoff), s(sT), s(sT + 1)))
    A("s_add_u32 %s, %s, 0x%x" % (s(sVoff), s(sKoff), VOP))
    A("s_lshl_b32 %s, %s, 12" % (s(sT), s(sH)))
    A("s_lshl_b32 %s, %s, 10" % (s(sT + 2), s(sWV)))
    A("s_add_u32 %s, %s, %s" % (s(sKM), s(sT), s(sT + 2)))
    A("s_add_u32 %s, %s, 0x%x" % (s(sKM), s(sKM), KMEM))
    A("s_lshl_b32 %s, %s, 11" % (s(sT), s(sH)))
    A("s_lshl_b32 %s, %s, 9" % (s(sT + 2), s(sWV)))
    A("s_add_u32 %s, %s, %s" % (s(sVM), s(sT), s(sT + 2)))
    A("s_add_u32 %s, %s, 0x%x" % (s(sVM), s(sVM), VMEM))
    A("s_lshl_b32 %s, %s, 2" % (s(sT + 4), s(sH)))
    A("s_add_u32 %s, %s, %s" % (s(sT + 4), s(sT + 4), s(sWV)))
    A("s_lshl_b32 %s, %s, 6" % (s(sT + 4), s(sT + 4)))
    A("s_add_u32 %s, %s, 0x%x" % (s(sPRc), s(sT + 4), PBUF))
    A("s_add_u32 %s, %s, 0x%x" % (s(sPRo), s(sT + 4), PBUF + PSLOT))
    A("s_lshl_b32 %s, %s, 6" % (s(sT + 4), s(sH)))
    A("s_add_u32 %s, %s, 0x%x" % (s(sPXc), s(sT + 4), PBUF + 8192))
    A("s_add_u32 %s, %s, 0x%x" % (s(sPXo), s(sT + 4), PBUF + PSLOT + 8192))
    A("s_cmp_lt_u32 %s, 16" % s(sH))
    A("s_cselect_b32 %s, 1, 0" % s(sXTRA))
    A("s_cmp_eq_u32 %s, 0" % s(sWV))
    A("s_cselect_b32 %s, %s, 0" % (s(sXTRA), s(sXTRA)))
    A("s_mul_i32 %s, %s, %d" % (s(sT), s(sH), PSTR))
    A("s_add_u32 %s, %s, %s" % (s(sT + 2), s(sT), s(sT + 1)))
    A("s_add_u32 %s, %s, 0x%x" % (s(sPWc), s(sT + 2), PBUF))
    A("s_add_u32 %s, %s, 0x%x" % (s(sPWo), s(sT + 2), PBUF + PSLOT))
    A("s_lshl_b32 %s, %s, 8" % (s(sT + 3), s(sWV)))
    A("s_add_u32 %s, %s, 8192" % (s(sM3), s(sT + 3)))
    A("s_add_u32 %s, %s, %s" % (s(sT + 3), s(sT + 3), s(sT)))
    A("s_add_u32 %s, %s, 0x%x" % (s(sP9c), s(sT + 3), PBUF + 8192))
    A("s_add_u32 %s, %s, 0x%x" % (s(sP9o), s(sT + 3), PBUF + PSLOT + 8192))
    A("s_lshl_b32 %s, %s, 2" % (s(sFKM), s(sH))); A("s_add_u32 %s, %s, %s" % (s(sFKM), s(sFKM), s(sWV)))
    A("s_lshl_b32 %s, %s, 2" % (s(sFKM), s(sFKM))); A("s_add_u32 %s, %s, 0x%x" % (s(sFKM), s(sFKM), F_KM))
    A("s_lshl_b32 %s, %s, 10" % (s(sMW1), s(sWV)))
    A("s_mov_b32 %s, 0x%x" % (s(sMc), MBUF + 9216))
    A("s_mov_b32 %s, 0x%x" % (s(sMo), MBUF))
    if prof:
        for i in range(12): A("s_mov_b32 %s, 0" % s(sPROF + i))
        A("s_memtime %s" % s(sPROF + 14, 2))
        A("s_waitcnt lgkmcnt(0)")
        A("s_mov_b32 %s, %s" % (s(sPROF + 13), s(sPROF + 14)))
    zero_regs(A, 44, 16)
    top = A.newlab("rec_top"); done = A.newlab("rec_done")
    m0 = A.mark()
    A.label(top)
    vm.q = []
    def rdM(t, tag):
        A("ds_read_b128 %s, v%d offset:%d" % (v(Msp[t % 3], 4), vL16, L_M + t * 1024)); lg.add(tag)
    def rdLWh(buf, tile, half, tag):
        A("ds_read_b128 %s, v%d offset:%d" % (v(buf + 4 * half, 4), vLW, tile * 2048 + 1024 * half)); lg.add(tag)
    LW = lambda i: LWA if i % 2 == 0 else LWB
    A.c("SEC qk")
    rdM(0, ("mq", 0)); rdLWh(LWA, 0, 0, ("lw", 0)); rdLWh(LWA, 0, 1, ("lw", 0)); rdM(1, ("mq", 1)); rdM(2, ("mq", 2))
    SENT = 60
    A("v_mov_b64 v[60:61], -1")
    A("v_mov_b64 v[62:63], -1")
    def vfill(t):
        if t == 0: A("buffer_load_dwordx4 %s, v%d, %s, %s offen" % (v(Ks, 4), vL16, WSR, s(sKoff))); vm.add("ks")
        if t == 1: A("buffer_load_dwordx4 %s, v%d, %s, %s offen offset:1024" % (v(Ks + 4, 4), vL16, WSR, s(sKoff))); vm.add("ks")
        if t == 2: A("buffer_load_dwordx4 %s, v%d, %s, %s offen" % (v(Vs, 4), vL16, WSR, s(sVoff))); vm.add("vs")
        if t == 3: A("buffer_load_dwordx4 %s, v%d, %s, %s offen offset:1024" % (v(Vs + 4, 4), vL16, WSR, s(sVoff))); vm.add("vs")
        if t == 4: A("buffer_store_dwordx4 %s, v%d, %s, %s offen%s" % (v(SENT, 4), vL16, WSR, s(sPWo), st)); vm.add("rst")
        if t == 5: A("buffer_store_dwordx4 %s, v%d, %s, %s offen offset:1024%s" % (v(SENT, 4), vL16, WSR, s(sPWo), st)); vm.add("rst")
        if t == 6: A("buffer_store_dwordx2 %s, v%d, %s, %s offen%s" % (v(SENT, 2), vP9, WSR, s(sP9o), st)); vm.add("rst")
        if t == 7: A("buffer_store_dword v%d, v%d, %s, %s offen%s" % (SENT, vMst, WSR, s(sMc), st)); vm.add("rst")
        if t == 8: A("buffer_store_dword v%d, v%d, %s, %s offen offset:16%s" % (SENT, vMst, WSR, s(sMc), st)); vm.add("rst")
    for t in range(9):
        lg.wait(("mq", t))
        b = Msp[t % 3]
        smf(A, accQ[0], b, Wq_t(t, 0))
        if t + 1 < 9: rdLWh(LW(t + 1), t + 1, 0, ("lw", t + 1))
        else: zero_regs(A, 72, 2)
        smf(A, accQ[1], b, Wq_t(t, 1))
        if t + 1 < 9: rdLWh(LW(t + 1), t + 1, 1, ("lw", t + 1))
        else: zero_regs(A, 74, 2)
        smf(A, accQ[2], b, Wk0_t(t))
        vfill(t)
        lg.wait(("lw", t))
        smf(A, accQ[3], b, ('v', LW(t)))
        if t + 3 < 9: rdM(t + 3, ("mq", t + 3))
        else: rdM(t - 6, ("mv", t - 6))
    zero_regs(A, 76, 2)
    zero_regs(A, 78, 2)
    stamp(0)
    def VS(i):
        t, et = i // 2, i % 2
        if et == 0: lg.wait(("mv", t))
        smf(A, accV[et], Msp[t % 3], Wv_t(t, et))
        if et == 1 and t + 3 < 9: rdM(t + 3, ("mv", t + 3))
    A.c("SEC fix")
    xr = A.newlab("xrst")
    A("s_cmp_eq_u32 %s, 0" % s(sXTRA))
    A("s_cbranch_scc1 %s" % xr)
    A("buffer_store_dwordx2 %s, v%d, %s, %s offen%s" % (v(SENT, 2), vMx, WSR, s(sMc), st))
    A.label(xr)
    A("s_nop 0")
    VS(0); VS(1)
    for x in (44, 48, 52, 56):
        A("v_add_f32 v%d, v%d, v%d" % (x, x, x + 2)); A("v_add_f32 v%d, v%d, v%d" % (x + 1, x + 1, x + 3))
    A("v_cvt_pk_bf16_f32 v44, v44, v45")
    A("v_cvt_pk_bf16_f32 v48, v48, v49")
    A("v_cvt_pk_bf16_f32 v45, v52, v53")
    A("v_cvt_pk_bf16_f32 v49, v56, v57")
    A("s_nop 1")
    A("v_mfma_f32_16x16x16_bf16 v[52:55], v[44:45], %s, 0" % v(vSel, 2))
    A("v_mfma_f32_16x16x16_bf16 v[56:59], v[48:49], %s, 0" % v(vSel, 2))
    VS(2); VS(3)
    A("s_nop 3")
    A("v_cvt_pk_bf16_f32 v44, v52, v53")
    A("v_cvt_pk_bf16_f32 v45, v54, v55")
    A("v_cvt_pk_bf16_f32 v46, v56, v57")
    A("v_cvt_pk_bf16_f32 v47, v58, v59")
    A("v_xor_b32 v60, 128, v%d" % vSw)
    vm.wait("ks")
    A("s_nop 0")
    A("v_mfma_f32_16x16x32_bf16 v[48:51], v[44:47], v[44:47], 0")
    A("v_mfma_f32_16x16x32_bf16 v[52:55], %s, v[44:47], 0" % v(Ks, 4))
    A("v_mfma_f32_16x16x32_bf16 v[56:59], %s, v[44:47], 0" % v(Ks + 4, 4))
    if "nopub" not in exp:
        A("buffer_store_dwordx4 v[44:47], v%d, %s, %s offen sc1" % (vL16, WSR, s(sKM))); vm.add("km")
    VS(4); VS(5)
    A("s_mov_b64 exec, %s" % s(sEXC, 2))
    A("s_nop 2")
    A("ds_write_b64 v%d, v[48:49]" % vSw0); lg.add("sw")
    A("ds_write_b128 v%d, v[52:55] offset:256" % vSw); lg.add("sw")
    A("ds_write_b128 v60, v[56:59] offset:768"); lg.add("sw")
    A("s_mov_b64 exec, -1")
    if "nopf" not in exp:
        A("s_add_u32 %s, %s, 0x%x" % (s(sT + 5), s(sKoff), 32 * 8192))
        A("buffer_load_dword v%d, v%d, %s, %s offen" % (vDum, vPf, WSR, s(sT + 5))); vm.add("pf")
    VS(6); VS(7)
    lg.waitall()
    A("s_barrier")
    stamp(1)
    A.c("SEC soft")
    RA = [52, 56, 16, 20]; R0 = [48, 49, 50, 51]
    for w_ in range(4):
        A("ds_read_b128 %s, v%d offset:%d" % (v(RA[w_], 4), vSr, 1280 * w_)); lg.add("sr")
    for w_ in range(4):
        A("ds_read_b32 v%d, v%d offset:%d" % (R0[w_], vSr0, 1280 * w_)); lg.add("sr")
    VS(8); VS(9); VS(10); VS(11)
    lg.wait("sr")
    for i in range(4): A("v_add_f32 v%d, v%d, v%d" % (52 + i, 52 + i, 56 + i))
    for i in range(4): A("v_add_f32 v%d, v%d, v%d" % (16 + i, 16 + i, 20 + i))
    A("v_add_f32 v48, v48, v49")
    A("v_add_f32 v50, v50, v51")
    for i in range(4): A("v_add_f32 v%d, v%d, v%d" % (52 + i, 52 + i, 16 + i))
    A("v_add_f32 v48, v48, v50")
    dbg("S", [48, 52, 53, 54, 55])
    A("v_max3_f32 v44, v52, v53, v54")
    A("v_max3_f32 v44, v44, v55, v48")
    VS(12)
    A("s_nop 0")
    A("v_max_f32_dpp v44, v44, v44 quad_perm:[2,3,0,1] row_mask:0xf bank_mask:0xf")
    A("v_mov_b32 v45, v44")
    VS(13)
    A("s_nop 0")
    A("v_permlane16_swap_b32 v44, v45")
    A("v_max_f32 v44, v44, v45")
    A("v_mov_b32 v45, v44")
    VS(14)
    A("s_nop 0")
    A("v_permlane32_swap_b32 v44, v45")
    A("v_max_f32 v44, v44, v45")
    A("s_mov_b32 %s, 0x%x" % (s(sT + 6), f2u(SCALE_LOG2E)))
    A("v_mul_f32 v44, %s, v44" % s(sT + 6))
    vals = [52, 53, 54, 55, 48]
    for r in vals: A("v_fma_f32 v%d, v%d, %s, -v44" % (r, r, s(sT + 6)))
    for r in vals: A("v_exp_f32 v%d, v%d" % (r, r))
    for i in range(4): A("v_mov_b32 v%d, 0x3f803f80" % (44 + i))
    VS(15)
    A("v_cvt_pk_bf16_f32 v16, v52, v53")
    A("v_cvt_pk_bf16_f32 v17, v54, v55")
    A("v_mov_b32_dpp v49, v48 quad_perm:[2,3,0,1] row_mask:0xf bank_mask:0xf")
    VS(16)
    A("v_mov_b32_dpp v18, v16 quad_perm:[2,3,0,1] row_mask:0xf bank_mask:0xf")
    A("v_mov_b32_dpp v19, v17 quad_perm:[2,3,0,1] row_mask:0xf bank_mask:0xf")
    A("v_cvt_pk_bf16_f32 v20, v48, v49")
    VS(17)
    A("v_cvt_pk_bf16_f32 v23, v48, v49")
    A("v_mov_b32 v21, 0")
    A("v_mov_b32 v22, 0")
    vm.wait("vs")
    A("s_nop 0")
    A("v_mfma_f32_16x16x32_bf16 v[48:51], v[44:47], v[16:19], 0")
    A("v_mfma_f32_16x16x32_bf16 v[52:55], %s, v[16:19], 0" % v(Vs, 4))
    A("v_add_f32 v72, v72, v74"); A("v_add_f32 v73, v73, v75")
    A("v_mfma_f32_16x16x32_bf16 v[56:59], %s, v[16:19], 0" % v(Vs + 4, 4))
    A("v_add_f32 v76, v76, v78"); A("v_add_f32 v77, v77, v79")
    A("v_cvt_pk_bf16_f32 v60, v72, v73")
    A("v_mfma_f32_16x16x16_bf16 v[48:51], v[44:45], v[20:21], v[48:51]")
    A("v_cvt_pk_bf16_f32 v61, v76, v77")
    A("v_add_u32 v%d, %d, v%d" % (vLW, L_W1 - L_V1, vLW))
    A("v_lshrrev_b32 v62, 1, v%d" % vL16)
    A("v_mfma_f32_16x16x16_bf16 v[52:55], v[60:61], v[20:21], v[52:55]")
    A("v_mfma_f32_16x16x16_bf16 v[56:59], v[60:61], v[22:23], v[56:59]")
    if "nopub" not in exp:
        A("buffer_store_dwordx2 v[60:61], v62, %s, %s offen sc1" % (WSR, s(sVM))); vm.add("vmem")
    A("s_cmp_eq_u32 %s, %d" % (s(sS), nsteps - 1))
    A("s_cbranch_scc1 %s" % done)
    A.c("SEC oex")
    order = [8, 0, 1, 2, 3, 4, 5, 6, 7]
    rdLWh(LWA, order[0], 0, ("wo", 0)); rdLWh(LWA, order[0], 1, ("wo", 0))
    A("v_rcp_f32 v46, v48")
    rdLWh(LWB, order[1], 0, ("wo", 1)); rdLWh(LWB, order[1], 1, ("wo", 1))
    dbg("P", [16, 17, 18, 19, 20, 21, 22, 23, 46])
    dbg("oT", [52, 53, 54, 55, 56, 57, 58, 59])
    zero_regs(A, 24, 4)
    for i in range(8): A("v_mul_f32 v%d, v%d, v46" % (52 + i, 52 + i))
    A("v_cvt_pk_bf16_f32 v44, v52, v53")
    A("v_cvt_pk_bf16_f32 v45, v54, v55")
    A("v_cvt_pk_bf16_f32 v46, v56, v57")
    A("v_cvt_pk_bf16_f32 v47, v58, v59")
    A("s_mov_b64 exec, %s" % s(sEXC, 2))
    A("ds_write_b128 v%d, v[44:47]" % vOw); lg.add("ow")
    A("s_mov_b64 exec, -1")
    zero_regs(A, 28, 16)
    lg.waitall()
    A("s_barrier")
    stamp(2)
    A.c("SEC wo")
    A("ds_read_b128 v[52:55], v%d offset:%d" % (vL16, L_O)); lg.add("or0")
    A("ds_read_b128 v[56:59], v%d offset:%d" % (vL16, L_O + 1024)); lg.add("or1")
    zero_regs(A, 48, 4)
    zero_regs(A, 16, 8)
    zero_regs(A, 44, 4)
    A("v_mov_b32 v60, 0x3f80")
    A("v_mov_b32 v61, 0x3f800000")
    A("v_cndmask_b32 v62, 0, v60, %s" % s(sS9, 2))
    A("v_mov_b32 v63, 0")
    A("v_cndmask_b32 v62, v62, v61, %s" % s(sS9 + 2, 2))
    A("v_mov_b32 v61, 0")
    dbg("Oop", [52, 53, 54, 55, 56, 57, 58, 59])
    acc = lambda tau: 16 + 4 * tau
    def post(i):
        tau = order[i]; x = acc(tau)
        A("v_add_f32 v%d, v%d, v%d" % (x, x, x + 2)); A("v_add_f32 v%d, v%d, v%d" % (x + 1, x + 1, x + 3))
        if tau == 8:
            A("v_cvt_pk_bf16_f32 v60, v48, v49")
        elif tau % 2 == 1:
            base = 16 if tau < 4 else 32
            j = (tau % 4) // 2
            A("v_cvt_pk_bf16_f32 v%d, v%d, v%d" % (base + j, acc(tau - 1), acc(tau))) if j == 0 else None
            A("v_cvt_pk_bf16_f32 v%d, v%d, v%d" % (base + 2 + j, acc(tau - 1) + 1, acc(tau) + 1))
            A("v_cvt_pk_bf16_f32 v%d, v%d, v%d" % (base + j, acc(tau - 1), acc(tau))) if j == 1 else None
    for i, tau in enumerate(order):
        if i == 0: lg.wait("or0")
        smf(A, acc(tau), 52, Wo0_t(tau))
        if i >= 1 and i + 1 < 9: rdLWh(LW(i + 1), order[i + 1], 1, ("wo", i + 1))
        if i == 0: lg.wait("or1")
        lg.wait(("wo", i))
        smf(A, acc(tau), 56, ('v', LW(i)))
        if i + 2 < 9: rdLWh(LW(i), order[i + 2], 0, ("wo", i + 2, 0))
        if i >= 2: post(i - 2)
        if i == 2:
            A("s_nop 1")
            A("v_mfma_f32_16x16x16_bf16 v[48:51], v[60:61], v[62:63], 0")
        if i == 4:
            A("v_cvt_pk_bf16_f32 v60, v48, v49")
            A("v_cvt_pk_bf16_f32 v61, v50, v51")
            vm.wait("rst")
            A("buffer_store_dwordx2 v[60:61], v%d, %s, %s offen%s" % (vP9, WSR, s(sP9c), st)); vm.add("pst")
        if i == 6:
            A("buffer_store_dwordx4 v[16:19], v%d, %s, %s offen%s" % (vL16, WSR, s(sPWc), st)); vm.add("pst")
    A("v_add_u32 v%d, %d, v%d" % (vLW, -(L_W1 - L_V1) & 0xffffffff, vLW))
    A("s_nop 2")
    post(7)
    A("s_nop 1")
    post(8)
    dbg("Pout", [16, 17, 18, 19, 32, 33, 34, 35, 60, 61])
    A("buffer_store_dwordx4 v[32:35], v%d, %s, %s offen offset:1024%s" % (vL16, WSR, s(sPWc), st)); vm.add("pst")
    stamp(3)
    A.c("SEC pp")
    A("s_add_u32 %s, %s, %d" % (s(sT), s(sPRc), 16 * PSTR))
    A("s_add_u32 %s, %s, %d" % (s(sT + 1), s(sPXc), 16 * PSTR))
    def issueP():
        A("buffer_load_dwordx4 v[24:27], v%d, %s, %s offen sc1" % (vPL, WSR, s(sPRc)))
        A("buffer_load_dwordx4 v[28:31], v%d, %s, %s offen sc1" % (vPL, WSR, s(sT)))
        lab = A.newlab("nx")
        A("s_cmp_eq_u32 %s, 0" % s(sXTRA))
        A("s_cbranch_scc1 %s" % lab)
        A("buffer_load_dwordx4 v[52:55], v%d, %s, %s offen sc1" % (vPL, WSR, s(sPXc)))
        A("buffer_load_dwordx4 v[56:59], v%d, %s, %s offen sc1" % (vPL, WSR, s(sT + 1)))
        A.label(lab)
    A("v_mov_b32 v46, 0x3f80")
    A("v_mov_b32 v47, 0x3f800000")
    A("v_lshrrev_b32 v51, 2, v%d" % vL16)
    A("v_cndmask_b32 v46, v46, v47, %s" % s(sODD, 2))
    for q in range(4): A("v_cndmask_b32 v%d, 0, v46, %s" % (36 + q, s(sMQ + 2 * q, 2)))
    for i in range(DELAY_P): A("s_nop 7")
    issueP()
    A("s_mov_b32 %s, %d" % (s(sSpin), SPIN_MAX))
    pl = A.newlab("p_poll"); pok = A.newlab("p_ok")
    A.label(pl)
    vm.waitall()
    A("v_max3_u32 v40, v24, v25, v26")
    A("v_max3_u32 v41, v27, v28, v29")
    A("v_max3_u32 v40, v40, v30, v31")
    xc = A.newlab("xchk")
    A("s_cmp_eq_u32 %s, 0" % s(sXTRA))
    A("s_cbranch_scc1 %s" % xc)
    A("v_max3_u32 v42, v52, v53, v54")
    A("v_max3_u32 v43, v55, v56, v57")
    A("v_max3_u32 v41, v41, v58, v59")
    A("v_max3_u32 v41, v41, v42, v43")
    A.label(xc)
    A("v_max_u32 v40, v40, v41")
    A("v_cmp_eq_u32 vcc, -1, v40")
    if "nosync" in exp: A("s_branch %s" % pok)
    A("s_cbranch_vccz %s" % pok)
    A.c("lint-skip-begin")
    issueP()
    if prof: A("s_add_u32 %s, %s, 1" % (s(sPROF + 8), s(sPROF + 8)))
    A("s_sub_u32 %s, %s, 1" % (s(sSpin), s(sSpin)))
    A("s_cmp_lg_u32 %s, 0" % s(sSpin))
    A("s_cbranch_scc1 %s" % pl)
    A("s_branch %s" % fail)
    A.c("lint-skip-end")
    A.label(pok)
    stamp(4)
    A.c("SEC red")
    if pubflag:
        A("s_add_u32 %s, %s, 1" % (s(sT + 3), s(sS)))
        A("v_mov_b32 v48, %s" % s(sT + 3))
        A("buffer_store_dword v48, off, %s, %s sc1" % (WSR, s(sFKM)))
    A("v_mfma_f32_16x16x32_bf16 v[40:43], v[36:39], v[24:27], 0")
    A("v_mfma_f32_16x16x32_bf16 v[40:43], v[36:39], v[28:31], v[40:43]")
    xl = A.newlab("xtra"); xd = A.newlab("xdone")
    A("s_cmp_eq_u32 %s, 0" % s(sXTRA))
    A("s_cbranch_scc1 %s" % xl)
    A("v_mfma_f32_16x16x32_bf16 v[60:63], v[36:39], v[52:55], 0")
    A("v_mfma_f32_16x16x32_bf16 v[60:63], v[36:39], v[56:59], v[60:63]")
    A.label(xl)
    A("s_add_u32 %s, %s, %s" % (s(sT), s(sMc), s(sMW1)))
    A("s_add_u32 %s, %s, 4096" % (s(sT + 2), s(sT)))
    A("s_add_u32 %s, %s, %s" % (s(sT + 1), s(sMc), s(sM3)))
    A("s_add_u32 %s, %s, 1" % (s(sS), s(sS)))
    A("s_add_u32 %s, %s, 0x%x" % (s(sKoff), s(sKoff), 32 * 8192))
    A("s_add_u32 %s, %s, 0x%x" % (s(sVoff), s(sVoff), 32 * 8192))
    A("s_add_u32 %s, %s, 0x%x" % (s(sKM), s(sKM), 32 * 4096))
    A("s_add_u32 %s, %s, 0x%x" % (s(sVM), s(sVM), 32 * 2048))
    A("s_nop 0")
    for r in range(4): A("v_add_f32_dpp v%d, v%d, v%d row_shl:4 row_mask:0xf bank_mask:0xf" % (44 + r, 40 + r, 40 + r))
    for r in range(4): A("v_add_f32_dpp v%d, v%d, v%d row_shl:8 row_mask:0xf bank_mask:0xf" % (44 + r, 44 + r, 44 + r))
    A("v_cvt_pk_bf16_f32 v44, v44, v45")
    A("v_cvt_pk_bf16_f32 v45, v46, v47")
    A("buffer_store_dword v44, v%d, %s, %s offen%s" % (vMst, WSR, s(sMc), st))
    A("buffer_store_dword v45, v%d, %s, %s offen offset:16%s" % (vMst, WSR, s(sMc), st))
    A("s_cmp_eq_u32 %s, 0" % s(sXTRA))
    A("s_cbranch_scc1 %s" % xd)
    for r in range(4): A("v_add_f32_dpp v%d, v%d, v%d row_shl:4 row_mask:0xf bank_mask:0xf" % (56 + r, 60 + r, 60 + r))
    for r in range(4): A("v_add_f32_dpp v%d, v%d, v%d row_shl:8 row_mask:0xf bank_mask:0xf" % (56 + r, 56 + r, 56 + r))
    A("v_cvt_pk_bf16_f32 v56, v56, v57")
    A("v_cvt_pk_bf16_f32 v57, v58, v59")
    A("buffer_store_dwordx2 v[56:57], v%d, %s, %s offen%s" % (vMx, WSR, s(sMc), st))
    A.label(xd)
    stamp(5)
    A.c("SEC mp")
    def issueM():
        A("buffer_load_dwordx4 v[32:35], v%d, %s, %s offen sc1" % (vL16, WSR, s(sT)))
        A("buffer_load_dwordx4 v[36:39], v%d, %s, %s offen sc1" % (vL16, WSR, s(sT + 2)))
        A("buffer_load_dword v40, v51, %s, %s offen sc1" % (WSR, s(sT + 1)))
    zero_regs(A, 44, 6)
    zero_regs(A, 52, 8)
    for i in range(DELAY_M): A("s_nop 7")
    issueM()
    zero_regs(A, 50, 2) if False else None
    A("s_mov_b32 %s, %d" % (s(sSpin), SPIN_MAX))
    ml = A.newlab("m_poll"); mok = A.newlab("m_ok")
    A.label(ml)
    A("s_waitcnt vmcnt(0)")
    A("v_max3_u32 v68, v32, v33, v34")
    A("v_max3_u32 v69, v35, v36, v37")
    A("v_max3_u32 v70, v38, v39, v40")
    A("v_max3_u32 v68, v68, v69, v70")
    A("v_cmp_eq_u32 vcc, -1, v68")
    if "nosync" in exp: A("s_branch %s" % mok)
    A("s_cbranch_vccz %s" % mok)
    A.c("lint-skip-begin")
    issueM()
    if prof: A("s_add_u32 %s, %s, 1" % (s(sPROF + 9), s(sPROF + 9)))
    A("s_sub_u32 %s, %s, 1" % (s(sSpin), s(sSpin)))
    A("s_cmp_lg_u32 %s, 0" % s(sSpin))
    A("s_cbranch_scc1 %s" % ml)
    A("s_branch %s" % fail)
    A.c("lint-skip-end")
    A.label(mok)
    stamp(6)
    vm.q = []
    A.c("SEC stage")
    A("s_lshl_b32 m0, %s, 10" % s(sWV))
    A("s_nop 0")
    for j in range(4): A("ds_write_addtid_b32 v%d offset:%d" % (32 + j, L_M + 256 * j))
    for j in range(4): A("ds_write_addtid_b32 v%d offset:%d" % (36 + j, L_M + 4096 + 256 * j))
    A("s_lshl_b32 m0, %s, 8" % s(sWV))
    A("s_nop 0")
    A("ds_write_addtid_b32 v40 offset:%d" % (L_M + 8192))
    zero_regs(A, 50, 2)
    for a_, b_ in ((sPRc, sPRo), (sPWc, sPWo), (sP9c, sP9o), (sMc, sMo), (sPXc, sPXo)):
        A("s_mov_b32 %s, %s" % (s(sT), s(a_))); A("s_mov_b32 %s, %s" % (s(a_), s(b_))); A("s_mov_b32 %s, %s" % (s(b_), s(sT)))
    A("s_waitcnt lgkmcnt(0)")
    A("s_barrier")
    stamp(7)
    A("s_branch %s" % top)
    m1 = A.mark()
    A.label(done)
    A("s_waitcnt vmcnt(0) lgkmcnt(0)")
    if pubflag:
        A("v_mov_b32 v48, %d" % nsteps)
        A("buffer_store_dword v48, off, %s, %s sc1" % (WSR, s(sFKM)))
    return (m0, m1)

PROFBUF = 0x3E00000
def build_rec_test(prof=False, fast=True, nsteps=64, dump=None, exp=()):
    A = Asm()
    name = "rec_kernel"
    kstart(A, name)
    fail = "L_fail"; end = "L_end"
    A("s_cmp_ge_u32 s2, 256")
    A("s_cbranch_scc1 %s" % end)
    load_srd(A, sDBG, "dbg"); load_srd(A, sWS, "ws")
    A("v_lshrrev_b32 v1, 6, v0")
    A("s_nop 0")
    A("v_readfirstlane_b32 %s, v1" % s(sWV))
    emit_election(A, sDBG, sVX, sVT, sFAST, sBYTE, sT, fail)
    A("s_cmp_eq_u32 %s, 0" % s(sVX))
    A("s_cbranch_scc0 %s" % end)
    A("s_mov_b32 %s, %s" % (s(sH), s(sVT)))
    A("s_memrealtime s[96:97]")
    emit_rec_prologue(A, fail)
    emit_rec_consts(A)
    emit_rec_mem0(A)
    A("s_memrealtime s[98:99]")
    A("s_waitcnt lgkmcnt(0)")
    mm = emit_rec_loop(A, fail, fast=fast, prof=prof, nsteps=nsteps, dump=dump, exp=exp)
    A("s_memrealtime s[100:101]")
    A("s_waitcnt lgkmcnt(0)")
    A("s_sub_u32 %s, s98, s96" % s(sPROF + 10))
    A("s_sub_u32 %s, s100, s98" % s(sPROF + 11))
    for i in range(12): A("v_mov_b32 v%d, %s" % (16 + i, s(sPROF + i)))
    A("s_lshl_b32 %s, %s, 2" % (s(sT), s(sH)))
    A("s_add_u32 %s, %s, %s" % (s(sT), s(sT), s(sWV)))
    A("s_lshl_b32 %s, %s, 6" % (s(sT), s(sT)))
    A("s_add_u32 %s, %s, 0x%x" % (s(sT), s(sT), PROFBUF))
    A("v_mov_b32 v1, 0")
    A("s_mov_b64 exec, 1")
    for i in range(3): A("buffer_store_dwordx4 %s, v1, %s, %s offen offset:%d" % (v(16 + 4 * i, 4), s(sWS, 4), s(sT), 16 * i))
    A("s_endpgm")
    A.label(fail)
    A("v_mov_b32 v1, 0xf0")
    A("v_mov_b32 v2, 0xdead")
    A("s_mov_b64 exec, 1")
    A("buffer_store_dword v2, v1, %s, 0 offen sc1" % s(sDBG, 4))
    A.label(end)
    A("s_endpgm")
    body = A.lines[mm[0]:mm[1]]
    probs = lint(A.lines, "rec-linear", verbose=True) + lint(body + body, "rec-loop2", verbose=True)
    txt = HDR + A.text() + '.section .rodata,"a"\n' + kdesc(name)
    return txt, name, probs

if __name__ == "__main__":
    import sys
    from hiprun import add_metadata, assemble
    txt, name, probs = build_rec_test(prof=True)
    open("rec.s", "w").write(add_metadata(txt, [(name, 256)], 120))
    assemble("rec.s", "rec.co")
    print("assembled, lines:", txt.count("\n"))
```

```python
S_LEN = 2048; D = 576; H = 32; DH = 128; M = 8; SEG = 32; NSEG = 64; F = 4608
WS_BYTES = 0x10000000
KOP  = 0x0000000
VOP  = 0x1000000
QOP  = 0x2000000
KMEM = 0x3000000
VMEM = 0x3800000
PBUF = 0x3C00000
MBUF = 0x3D00000
PSTR = 9216 + 128
PSLOT = 32 * PSTR

def m_a(g): return 2 * g

def mchunk_d(t, lane, jA):
    i = lane & 15
    m = 2 * (i >> 2) + (i & 1); hi = (i >> 1) & 1; gA = lane >> 4
    if t < 8:
        d = 144 * (t >> 1) + 8 * (t & 1) + 2 * gA + hi + 16 * jA
    else:
        d = 144 * gA + 128 + 8 * hi + jA
    return m, d

ROW = 1152
PROW = 1664
P12  = 0x4000000
P67  = 0x8800000
TB   = 0xD900000
HNB  = 0xDC00000
HB   = 0xDF00000
GSB  = 0xE200000
X1B  = 0xE500000
STB  = 0xE800000
FLG  = 0xE900000
F_KM  = FLG
F_R12 = FLG + 0x400
F_R3  = FLG + 0x600
F_R4  = FLG + 0x800
F_R5  = FLG + 0xA00
F_R67 = FLG + 0xC00
F_R8  = FLG + 0x1000
RING = 8
def sigma_pos(col):
    T = col >> 4; g = (col >> 2) & 3; r = col & 3
    return (T >> 1) * 32 + g * 8 + (T & 1) * 4 + r
```

```python
from gen_common import *
import gen_rec as gr, gen_g as gg, gen_pipe as gp

NAME = "sequential_preLN__memory_aug_recurrent_mem_tr__mixer_s_mlp__prompt_kernel"
sRANK = 23
B_INIT, B_KV, B_Q = 0x40, 0x20, 0x10

def set_byte(A, sDBG, sBYTE, bit, sWV, tv):
    A("s_waitcnt vmcnt(0)"); A("s_barrier")
    A("s_or_b32 %s, %s, 0x%x" % (s(sBYTE), s(sBYTE), bit))
    sk = A.newlab("sb")
    A("s_cmp_eq_u32 %s, 0" % s(sWV)); A("s_cbranch_scc0 %s" % sk)
    A("v_mov_b32 v%d, s2" % tv); A("v_mov_b32 v%d, %s" % (tv + 1, s(sBYTE)))
    A("s_mov_b64 exec, 1")
    A("buffer_store_byte v%d, v%d, %s, 0 offen sc1" % (tv + 1, tv, s(sDBG, 4)))
    A("s_mov_b64 exec, -1")
    A.label(sk)

def wait_bytes(A, sDBG, bits_all, bits_workers, fail, tv, st, fastreg, vxself=None):
    lp = A.newlab("wb"); ok = A.newlab("wb_ok")
    A("v_mbcnt_lo_u32_b32 v%d, -1, 0" % tv); A("v_mbcnt_hi_u32_b32 v%d, -1, v%d" % (tv, tv))
    A("v_lshlrev_b32 v%d, 2, v%d" % (tv + 1, tv))
    A("s_mov_b32 %s, %d" % (s(st), SPIN_MAX))
    A.label(lp)
    A("buffer_load_dword v%d, v%d, %s, 0 offen sc1" % (tv + 2, tv + 1, s(sDBG, 4)))
    A("s_waitcnt vmcnt(0)")
    A("v_mov_b32 v%d, 0" % (tv + 3))
    for b in range(4):
        A("v_bfe_u32 v%d, v%d, %d, 8" % (tv + 4, tv + 2, 8 * b))
        A("v_and_b32 v%d, 15, v%d" % (tv + 5, tv + 4))
        A("v_cmp_ne_u32 vcc, 0, v%d" % (tv + 5))
        A("v_cmp_le_u32 %s, 8, v%d" % (s(st + 2, 2), tv))
        A("s_cmp_eq_u32 %s, 1" % s(fastreg))
        A("s_cselect_b64 vcc, vcc, %s" % s(st + 2, 2))
        A("v_mov_b32 v%d, %d" % (tv + 5, bits_all)); A("v_mov_b32 v%d, %d" % (tv + 6, bits_all | bits_workers))
        A("v_cndmask_b32 v%d, v%d, v%d, vcc" % (tv + 5, tv + 5, tv + 6))
        A("v_and_b32 v%d, v%d, v%d" % (tv + 4, tv + 4, tv + 5)); A("v_xor_b32 v%d, v%d, v%d" % (tv + 4, tv + 4, tv + 5))
        A("v_or_b32 v%d, v%d, v%d" % (tv + 3, tv + 3, tv + 4))
    A("v_cmp_ne_u32 vcc, 0, v%d" % (tv + 3))
    A("s_cbranch_vccz %s" % ok)
    A("s_sleep 4")
    A("s_sub_u32 %s, %s, 1" % (s(st), s(st))); A("s_cmp_lg_u32 %s, 0" % s(st)); A("s_cbranch_scc1 %s" % lp)
    A("s_branch %s" % fail)
    A.label(ok)

def build(force_slow=False, timing=False):
    gr.DELAY_P, gr.DELAY_M = 7, 4
    A = Asm(); kstart(A, NAME)
    fail, end = "L_fail", "L_end"
    sDBG, sWS, sWV, sFAST, sVX, sVT, sBYTE, sT = 12, 4, 17, 19, 20, 21, 22, 24
    A("s_cmp_ge_u32 s2, 256"); A("s_cbranch_scc1 %s" % end)
    if timing: A("s_memrealtime s[100:101]")
    load_srd(A, sDBG, "dbg"); load_srd(A, sWS, "ws")
    A("v_lshrrev_b32 v1, 6, v0"); A("s_nop 0"); A("v_readfirstlane_b32 %s, v1" % s(sWV))
    emit_election(A, sDBG, sVX, sVT, sFAST, sBYTE, sT, fail)
    if force_slow:
        A("s_mov_b32 %s, 0" % s(sFAST)); A("s_lshr_b32 %s, s2, 5" % s(sVX)); A("s_and_b32 %s, s2, 31" % s(sVT))
    worker = "L_worker"
    A("s_cmp_eq_u32 %s, 0" % s(sVX)); A("s_cbranch_scc0 %s" % worker)
    A.c("################ recurrence group")
    A("s_mov_b32 %s, %s" % (s(gr.sH), s(sVT)))
    A("v_mov_b32 v2, -1"); A("v_mov_b32 v3, -1"); A("v_mov_b32 v4, -1"); A("v_mov_b32 v5, -1")
    A("v_lshlrev_b32 v1, 4, v0")
    A("s_mul_i32 %s, %s, %d" % (s(sT), s(gr.sH), PSTR)); A("s_add_u32 %s, %s, 0x%x" % (s(sT), s(sT), PBUF))
    for slot in range(2):
        for part in range(2):
            A("s_add_u32 %s, %s, %d" % (s(sT + 1), s(sT), slot * PSLOT + part * 4096))
            A("buffer_store_dwordx4 v[2:5], v1, %s, %s offen sc1" % (s(sWS, 4), s(sT + 1)))
        A("s_add_u32 %s, %s, %d" % (s(sT + 1), s(sT), slot * PSLOT + 8192))
        A("v_cmp_gt_u32 vcc, 1024, v1"); A("v_mov_b32 v6, 0x40000000"); A("s_nop 0"); A("v_cndmask_b32 v7, v6, v1, vcc")
        A("buffer_store_dwordx4 v[2:5], v7, %s, %s offen sc1" % (s(sWS, 4), s(sT + 1)))
    A("s_mul_i32 %s, %s, 576" % (s(sT), s(gr.sH))); A("s_add_u32 %s, %s, 0x%x" % (s(sT), s(sT), MBUF))
    A("v_cmp_gt_u32 vcc, 576, v1"); A("v_mov_b32 v6, 0x40000000"); A("s_nop 0"); A("v_cndmask_b32 v7, v6, v1, vcc")
    A("buffer_store_dwordx4 v[2:5], v7, %s, %s offen sc1" % (s(sWS, 4), s(sT)))
    set_byte(A, sDBG, sBYTE, B_INIT, sWV, 8)
    gr.emit_rec_prologue(A, fail)
    gr.emit_rec_consts(A)
    gr.emit_rec_mem0(A)
    wait_bytes(A, sDBG, B_INIT, B_KV, fail, 16, sT, sFAST)
    if timing: A("s_memrealtime s[96:97]"); A("s_waitcnt lgkmcnt(0)")
    slow = A.newlab("rec_slow"); rdone = A.newlab("rec_alldone")
    A("s_cmp_eq_u32 %s, 1" % s(sFAST)); A("s_cbranch_scc0 %s" % slow)
    mf = gr.emit_rec_loop(A, fail, fast=True, pubflag=True)
    A("s_branch %s" % rdone)
    A.label(slow)
    ms = gr.emit_rec_loop(A, fail, fast=False, pubflag=True)
    A.label(rdone)
    def tstamp(slot):
        if not timing: return
        A("s_memrealtime s[98:99]"); A("s_waitcnt lgkmcnt(0)")
        A("s_sub_u32 s98, s98, s100"); A("s_sub_u32 s96, s96, s100")
        A("v_mov_b32 v16, s96"); A("v_mov_b32 v17, s98")
        A("s_lshl_b32 s24, s2, 3"); A("s_add_u32 s24, s24, 0x%x" % (FLG + 0x2000))
        A("s_cmp_eq_u32 %s, 0" % s(sWV)); lab = A.newlab("ts"); A("s_cbranch_scc0 %s" % lab)
        A("v_mov_b32 v1, 0"); A("s_mov_b64 exec, 1"); A("buffer_store_dwordx2 v[16:17], v1, %s, s24 offen" % s(sWS, 4))
        A.label(lab)
    tstamp(0)
    A("s_endpgm")
    A.label(worker)
    A.c("################ workers")
    A("s_sub_u32 %s, %s, 1" % (s(sRANK), s(sVX))); A("s_lshl_b32 %s, %s, 5" % (s(sRANK), s(sRANK))); A("s_add_u32 %s, %s, %s" % (s(sRANK), s(sRANK), s(sVT)))
    sk = A.newlab("noclr")
    A("s_cmp_eq_u32 %s, 0" % s(sRANK)); A("s_cbranch_scc0 %s" % sk)
    A("v_lshlrev_b32 v1, 4, v0"); A("v_mov_b64 v[2:3], 0"); A("v_mov_b64 v[4:5], 0"); A("s_mov_b32 %s, 0x%x" % (s(sT), FLG))
    A("buffer_store_dwordx4 v[2:5], v1, %s, %s offen sc1" % (s(sWS, 4), s(sT)))
    A.label(sk)
    set_byte(A, sDBG, sBYTE, B_INIT, sWV, 8)
    A("s_and_b32 %s, %s, 7" % (s(gg.gTG), s(sVT)))
    A("s_sub_u32 %s, %s, 1" % (s(gg.gCG), s(sVX))); A("s_lshl_b32 %s, %s, 2" % (s(gg.gCG), s(gg.gCG)))
    A("s_lshr_b32 %s, %s, 3" % (s(sT), s(sVT))); A("s_add_u32 %s, %s, %s" % (s(gg.gCG), s(gg.gCG), s(sT)))
    gg.emit_g_ln(A)
    marks = gg.emit_g_gemm(A, kvflag=lambda A_: set_byte(A_, sDBG, sBYTE, B_KV, sWV, 8))
    set_byte(A, sDBG, sBYTE, B_Q, sWV, 8)
    if timing: A("s_memrealtime s[96:97]"); A("s_waitcnt lgkmcnt(0)")
    roles = [("r12", 64, gp.emit_r12), ("r3", 32, gp.emit_r3), ("r4", 9, gp.emit_r4), ("r5", 9, gp.emit_r5), ("r67", 72, gp.emit_r67), ("r8", 32, gp.emit_r8)]
    A("s_mov_b32 %s, 0" % s(gp.pPEND))
    base = 0; labs = []
    for nm, cnt, fn in roles:
        lab = "L_role_" + nm; labs.append(lab)
        A("s_cmp_lt_u32 %s, %d" % (s(sRANK), base + cnt)); A("s_cbranch_scc1 %s" % lab)
        base += cnt
    A("s_endpgm")
    base = 0; rmarks = []
    for (nm, cnt, fn), lab in zip(roles, labs):
        A.label(lab)
        wait_bytes(A, sDBG, B_INIT, B_Q if nm == "r12" else 0, fail, 1, sT, sFAST)
        A("s_sub_u32 %s, %s, %d" % (s(gp.pID), s(sRANK), base))
        rmarks.append((nm, fn(A, fail)))
        tstamp(1)
        A("s_endpgm")
        base += cnt
    A.label(fail)
    A("s_mov_b64 exec, 1"); A("v_mov_b32 v1, 0"); A("v_mov_b32 v2, 0xdead"); A("s_mov_b32 s24, 0x%x" % (FLG + 0x1ff0))
    A("buffer_store_dword v2, v1, %s, s24 offen sc1" % s(sWS, 4))
    A.label(end)
    A("s_endpgm")
    probs = []
    for (m0, m1), nm in ((mf, "rec-fast"), (ms, "rec-slow")): probs += lint(A.lines[m0:m1] * 2, nm, verbose=False)
    for m0, m1 in marks: probs += lint(A.lines[m0:m1] * 2, "g-loop", verbose=False)
    for nm, (m0, m1) in rmarks: probs += lint(A.lines[m0:m1] * 2, nm, verbose=False)
    lin = lint(A.lines, "linear", verbose=False)
    probs += [p for p in lin if "HAZARD" in p]
    for p in probs[:20]: print(p)
    hdr = open("cdna_kernels/%s.s.ref" % NAME[:-7]).read().split("; Override launch geometry")[0]
    hdr += "; @launch grid=(256,1,1) block=(256,1,1) lds=163840\n"
    txt = hdr + HDR + A.text() + '.section .rodata,"a"\n' + kdesc(NAME)
    return txt, probs

if __name__ == "__main__":
    import sys
    txt, probs = build(force_slow="slow" in sys.argv, timing="timing" in sys.argv)
    out = "cdna_kernels/%s.s" % NAME[:-7] if "final" in sys.argv else "mega.s"
    open(out, "w").write(txt)
    print("problems:", len(probs), "bytes:", len(txt), "->", out)
```

```python
from gen_common import *
import struct
def f2u(x): return struct.unpack("<I", struct.pack("<f", x))[0]
pWS, pW, pDBG = 4, 8, 12
pID, pWV, pS, pFAST = 16, 17, 18, 19
pT = 24
pSPIN = 40
pFOFF = 41
pPEND = 42
SCALE_LOG2E = 0.08838834764831845 * 1.4426950408889634

SLEEP = 1
WARM = 0
TRACE = False
TRV = [250]
TRBUF = FLG + 0x4000
TR2 = FLG + 0x20000
def trace(A, idx, seg_last=62):
    if not TRACE: return
    lab = A.newlab("tr")
    if TRACE != "full":
        A("s_cmp_ge_u32 %s, %d" % (s(pS), seg_last)); A("s_cbranch_scc0 %s" % lab)
    A("s_cmp_eq_u32 %s, 0" % s(pWV)); A("s_cbranch_scc0 %s" % lab)
    A.c("lint-skip-begin")
    A("s_memrealtime s[98:99]"); A("s_waitcnt lgkmcnt(0)")
    A("s_sub_u32 s98, s98, s100")
    if TRACE == "full":
        A("s_lshl_b32 s99, s2, 6"); A("s_and_b32 s97, %s, 63" % s(pS)); A("s_add_u32 s99, s99, s97"); A("s_lshl_b32 s99, s99, 5"); A("s_add_u32 s99, s99, 0x%x" % (TR2 + 4 * idx))
    else:
        A("s_lshl_b32 s99, s2, 6"); A("s_add_u32 s99, s99, 0x%x" % (TRBUF + 4 * idx))
    A("v_mov_b32 v%d, s98" % TRV[0])
    A("buffer_store_dword v%d, off, %s, s99" % (TRV[0], s(pWS, 4)))
    A.c("lint-skip-end")
    A.label(lab)

def wait_flags(A, voff, soff_expr, target, fail, tmpv, sleep=None, sc="sc1", pend_sc=None, solo=None):
    if sleep is None: sleep = SLEEP
    if solo is None: solo = pend_sc is not None
    lp = A.newlab("wf"); ok = A.newlab("wf_ok"); rel = A.newlab("wf_rel")
    A("s_mov_b32 %s, %d" % (s(pSPIN), SPIN_MAX))
    first = A.newlab("wf_first")
    if solo:
        A("s_cmp_eq_u32 %s, 0" % s(pWV)); A("s_cbranch_scc0 %s" % first)
    A("buffer_load_dword v%d, v%d, %s, %s offen %s" % (tmpv, voff, s(pWS, 4), soff_expr, sc))
    A.label(first)
    A("s_waitcnt vmcnt(0)")
    if pend_sc is not None:
        sk = A.newlab("pend")
        A("s_cmp_eq_u32 %s, 0" % s(pPEND)); A("s_cbranch_scc1 %s" % sk)
        A("s_barrier")
        sk2 = A.newlab("pend2")
        A("s_cmp_eq_u32 %s, 0" % s(pWV)); A("s_cbranch_scc0 %s" % sk2)
        A("v_mov_b32 v%d, %s" % (tmpv + 1, s(pPEND)))
        A("buffer_store_dword v%d, off, %s, %s %s" % (tmpv + 1, s(pWS, 4), s(pFOFF), pend_sc))
        A.label(sk2)
        A("s_mov_b32 %s, 0" % s(pPEND))
        A.label(sk)
    if solo:
        A("s_cmp_eq_u32 %s, 0" % s(pWV)); A("s_cbranch_scc0 %s" % rel)
    A("v_cmp_gt_u32 vcc, %s, v%d" % (target, tmpv))
    A("s_cbranch_vccz %s" % ok)
    A.c("lint-skip-begin")
    A.label(lp)
    if sleep: A("s_sleep %d" % sleep)
    A("buffer_load_dword v%d, v%d, %s, %s offen %s" % (tmpv, voff, s(pWS, 4), soff_expr, sc))
    A("s_waitcnt vmcnt(0)")
    A("v_cmp_gt_u32 vcc, %s, v%d" % (target, tmpv))
    A("s_cbranch_vccz %s" % ok)
    A("s_sub_u32 %s, %s, 1" % (s(pSPIN), s(pSPIN)))
    A("s_cmp_lg_u32 %s, 0" % s(pSPIN))
    A("s_cbranch_scc1 %s" % lp)
    A("s_endpgm") if False else A("s_branch %s" % fail)
    A.c("lint-skip-end")
    A.label(ok)
    if solo:
        A.label(rel)
        A("s_barrier")

def set_flag(A, soff, valreg, tmpv, sc="sc1", barrier=True):
    A("s_waitcnt vmcnt(0)")
    if barrier: A("s_barrier")
    sk = A.newlab("sf")
    if barrier:
        A("s_cmp_eq_u32 %s, 0" % s(pWV)); A("s_cbranch_scc0 %s" % sk)
    A("v_mov_b32 v%d, %s" % (tmpv, valreg))
    A("v_mov_b32 v%d, 0" % (tmpv + 1))
    A("s_mov_b64 exec, 1")
    A("buffer_store_dword v%d, v%d, %s, %s offen %s" % (tmpv, tmpv + 1, s(pWS, 4), soff, sc))
    A("s_mov_b64 exec, -1")
    A.label(sk)
    trace(A, 3, 0)

def dma_linear(A, srd, sbase, nbytes, lds_base, vL16):
    n = nbytes // 4096
    A("s_lshl_b32 %s, %s, 10" % (s(pT + 9), s(pWV)))
    for i in range(n):
        A("s_add_u32 m0, %s, %d" % (s(pT + 9), lds_base + i * 4096))
        A("s_add_u32 %s, %s, %s" % (s(pT + 8), s(sbase), s(pT + 9)))
        if i: A("s_add_u32 %s, %s, %d" % (s(pT + 8), s(pT + 8), i * 4096))
        else: A("s_nop 0")
        A("buffer_load_dwordx4 v%d, %s, %s offen lds" % (vL16, s(srd, 4), s(pT + 8)))
        if i % 48 == 47: A("s_waitcnt vmcnt(16)")

def load_k128_weights(A, vtmp, WREG, rowbytes, lds_base, colbyte_sreg):
    A("v_and_b32 v%d, 63, v0" % vtmp)
    A("v_lshrrev_b32 v%d, 4, v%d" % (vtmp + 1, vtmp))
    A("v_bfe_u32 v%d, v%d, 2, 2" % (vtmp + 2, vtmp))
    A("v_lshl_add_u32 v%d, v%d, 2, v%d" % (vtmp + 1, vtmp + 1, vtmp + 2))
    A("v_mul_u32_u24 v%d, %d, v%d" % (vtmp + 1, rowbytes, vtmp + 1))
    A("v_and_b32 v%d, 3, v%d" % (vtmp + 2, vtmp))
    A("v_lshl_add_u32 v%d, v%d, 3, v%d" % (vtmp + 1, vtmp + 2, vtmp + 1))
    A("v_add_u32 v%d, %s, v%d" % (vtmp + 1, colbyte_sreg, vtmp + 1))
    cnt = 0
    for ks in range(4):
        for u in range(2):
            A("v_add_u32 v%d, %d, v%d" % (vtmp + 3, lds_base + (32 * ks + 16 * u) * rowbytes, vtmp + 1))
            for i in range(9):
                sp = WREG(i, ks)
                A("ds_read_b64_tr_b16 %s, v%d offset:%d" % (R((sp[0], sp[1] + 2 * u), 2), vtmp + 3, i * 32))
                cnt += 1
                if cnt % 12 == 0: A("s_waitcnt lgkmcnt(0)")
    A("s_waitcnt lgkmcnt(0)")

def k128_gemm(A, WREG, OB, ACC, lg_wait=None):
    for ks in range(4):
        if lg_wait: lg_wait(ks)
        for i in range(9):
            for tt in range(2):
                c = "0" if ks == 0 else v(ACC(i, tt), 4)
                A("v_mfma_f32_16x16x32_bf16 %s, %s, %s, %s" % (v(ACC(i, tt), 4), R(WREG(i, ks), 4), v(OB(tt, ks), 4), c))

def pstore_consts(A, vTokA, vTok9, vBP, vBP9, rowstride, tmp):
    A("v_and_b32 v%d, 63, v0" % tmp)
    A("v_lshrrev_b32 v%d, 3, v%d" % (tmp + 1, tmp)); A("v_and_b32 v%d, 7, v%d" % (tmp + 2, tmp))
    A("v_and_b32 v%d, 3, v%d" % (tmp + 3, tmp + 2)); A("v_lshlrev_b32 v%d, 4, v%d" % (tmp + 3, tmp + 3))
    A("v_lshrrev_b32 v%d, 2, v%d" % (tmp + 4, tmp + 2)); A("v_lshl_add_u32 v%d, v%d, 3, v%d" % (tmp + 3, tmp + 4, tmp + 3))
    A("v_add_u32 v%d, v%d, v%d" % (tmp + 3, tmp + 3, tmp + 1)); A("v_lshlrev_b32 v%d, 2, v%d" % (vBP, tmp + 3))
    A("s_mov_b32 %s, %d" % (s(pT + 8), rowstride)); A("v_mul_lo_u32 v%d, v%d, %s" % (vTokA, tmp + 1, s(pT + 8))); A("v_lshl_add_u32 v%d, v%d, 4, v%d" % (vTokA, tmp + 2, vTokA))
    A("v_lshrrev_b32 v%d, 2, v%d" % (tmp + 1, tmp)); A("v_and_b32 v%d, 3, v%d" % (tmp + 2, tmp))
    A("v_lshl_add_u32 v%d, v%d, 4, v%d" % (tmp + 3, tmp + 2, tmp + 1)); A("v_lshlrev_b32 v%d, 2, v%d" % (vBP9, tmp + 3))
    A("v_mul_lo_u32 v%d, v%d, %s" % (vTok9, tmp + 1, s(pT + 8))); A("v_lshl_add_u32 v%d, v%d, 3, v%d" % (vTok9, tmp + 2, vTok9)); A("v_add_u32 v%d, 256, v%d" % (vTok9, vTok9))

def pstore(A, ACC, vTokA, vTok9, vBP, vBP9, sbase, tmp, rowstride, sLO8, sc="sc1"):
    X, Y, Z = tmp, tmp + 4, tmp + 8
    for tt in range(2):
        for L in range(2):
            a0, a1, b0, b1 = ACC(4 * L, tt), ACC(4 * L + 1, tt), ACC(4 * L + 2, tt), ACC(4 * L + 3, tt)
            for (d, p, q) in ((X, a0, a1), (Y, b0, b1)):
                A("v_cvt_pk_bf16_f32 v%d, v%d, v%d" % (d, p, p + 1)); A("v_cvt_pk_bf16_f32 v%d, v%d, v%d" % (d + 1, p + 2, p + 3))
                A("v_cvt_pk_bf16_f32 v%d, v%d, v%d" % (d + 2, q, q + 1)); A("v_cvt_pk_bf16_f32 v%d, v%d, v%d" % (d + 3, q + 2, q + 3))
            A("s_mov_b64 vcc, %s" % s(sLO8, 2))
            A("s_nop 0")
            for d in range(4): A("v_cndmask_b32_dpp v%d, v%d, v%d, vcc row_shr:8 row_mask:0xf bank_mask:0xf bound_ctrl:1" % (Z + d, Y + d, X + d))
            A("s_not_b64 vcc, vcc")
            for d in range(4): A("v_cndmask_b32_dpp v%d, v%d, v%d, vcc row_shl:8 row_mask:0xf bank_mask:0xf bound_ctrl:1" % (Z + 4 + d, X + d, Y + d))
            for d in range(8): A("ds_bpermute_b32 v%d, v%d, v%d" % (tmp + 16 + d, vBP, Z + d))
            A("s_add_u32 %s, %s, %d" % (s(pT + 9), s(sbase), tt * 16 * rowstride + L * 128))
            A("s_add_u32 %s, %s, %d" % (s(pT + 10), s(pT + 9), 8 * rowstride))
            A("s_waitcnt lgkmcnt(4)")
            A("buffer_store_dwordx4 %s, v%d, %s, %s offen %s" % (v(tmp + 16, 4), vTokA, s(pWS, 4), s(pT + 9), sc))
            A("s_waitcnt lgkmcnt(0)")
            A("buffer_store_dwordx4 %s, v%d, %s, %s offen %s" % (v(tmp + 20, 4), vTokA, s(pWS, 4), s(pT + 10), sc))
        x = ACC(8, tt)
        A("v_cvt_pk_bf16_f32 v%d, v%d, v%d" % (X, x, x + 1)); A("v_cvt_pk_bf16_f32 v%d, v%d, v%d" % (X + 1, x + 2, x + 3))
        A("ds_bpermute_b32 v%d, v%d, v%d" % (Y, vBP9, X)); A("ds_bpermute_b32 v%d, v%d, v%d" % (Y + 1, vBP9, X + 1))
        A("s_add_u32 %s, %s, %d" % (s(pT + 9), s(sbase), tt * 16 * rowstride))
        A("s_waitcnt lgkmcnt(0)")
        A("buffer_store_dwordx2 %s, v%d, %s, %s offen %s" % (v(Y, 2), vTok9, s(pWS, 4), s(pT + 9), sc))

def emit_r12(A, fail, nseg=64, nsets=2, hook=None):
    A.c("=== R12: attention + Wo partial")
    sSET12 = 59
    A("s_lshr_b32 %s, %s, 5" % (s(sSET12), s(pID)))
    A("s_lshl_b32 %s, %s, 2" % (s(pFOFF), s(pID))); A("s_add_u32 %s, %s, 0x%x" % (s(pFOFF), s(pFOFF), F_R12))
    A("s_and_b32 %s, %s, 31" % (s(pID), s(pID)))
    vL16, vTok, vFl, vMaskT = 1, 2, 3, 4
    WREG = lambda i, ks: ('a', (i * 4 + ks) * 4)
    load_srd(A, pW, "Wo")
    A("v_and_b32 v5, 63, v0"); A("v_lshlrev_b32 v%d, 4, v5" % vL16)
    A("s_mul_i32 %s, %s, %d" % (s(pT), s(pID), 128 * 1152))
    dma_linear(A, pW, pT, 147456, 0, vL16)
    A("s_waitcnt vmcnt(0)"); A("s_barrier")
    A("s_mul_i32 %s, %s, 288" % (s(pT + 1), s(pWV)))
    load_k128_weights(A, 6, WREG, 1152, 0, s(pT + 1))
    A("s_barrier")
    A("v_and_b32 v6, 15, v5"); A("v_lshrrev_b32 v7, 4, v5")
    vTok9, vBP, vBP9, sLO8 = 248, 249, 251, 62
    pstore_consts(A, vTok, vTok9, vBP, vBP9, 32 * PROW, 136)
    A("s_mov_b32 %s, 0x00ff00ff" % s(sLO8)); A("s_mov_b32 %s, 0x00ff00ff" % s(sLO8 + 1))
    A("v_min_u32 v8, 35, v5"); A("v_subrev_u32 v9, 4, v8"); A("v_lshlrev_b32 v9, 4, v9"); A("v_add_u32 v9, 0x%x, v9" % F_R3)
    A("s_lshl_b32 %s, %s, 4" % (s(pT), s(pID))); A("s_add_u32 %s, %s, 0x%x" % (s(pT), s(pT), F_KM))
    A("v_lshl_add_u32 v%d, v8, 2, %s" % (vFl, s(pT))); A("v_cmp_gt_u32 %s, 4, v8" % s(60, 2)); A("s_nop 1")
    A("v_cndmask_b32 v%d, v9, v%d, %s" % (vFl, vFl, s(60, 2)))
    sMK = 44
    for r in range(4):
        A("v_lshl_add_u32 v8, v7, 2, %d" % r); A("v_cmp_le_u32 %s, v8, v6" % s(sMK + 2 * r, 2))
    tt_, part = pT + 2, pT + 3
    sTT, sPART, sQ, sOUT, sKM, sVM, sFK = 52, 53, 54, 55, 56, 57, 58
    A("s_and_b32 %s, %s, 1" % (s(sTT), s(pWV))); A("s_lshr_b32 %s, %s, 1" % (s(sPART), s(pWV)))
    A("s_lshl_b32 %s, %s, 13" % (s(sQ), s(pID)))
    A("s_lshl_b32 %s, %s, 12" % (s(sKM), s(pID))); A("s_add_u32 %s, %s, 0x%x" % (s(sKM), s(sKM), KMEM))
    A("s_lshl_b32 %s, %s, 11" % (s(sVM), s(pID))); A("s_lshl_b32 %s, %s, 10" % (s(pT), s(sPART))); A("s_add_u32 %s, %s, %s" % (s(sVM), s(sVM), s(pT))); A("s_add_u32 %s, %s, 0x%x" % (s(sVM), s(sVM), VMEM))
    A("s_lshl_b32 %s, %s, 4" % (s(sFK), s(pID))); A("s_add_u32 %s, %s, 0x%x" % (s(sFK), s(sFK), F_KM))
    A("s_mul_i32 %s, %s, 384" % (s(pT), s(pWV)))
    A("s_mul_i32 %s, %s, %d" % (s(sOUT), s(pID), PROW)); A("s_add_u32 %s, %s, %s" % (s(sOUT), s(sOUT), s(pT))); A("s_add_u32 %s, %s, 0x%x" % (s(sOUT), s(sOUT), P12))
    if hook: hook(A)
    A("s_mov_b32 %s, %s" % (s(pS), s(sSET12)))
    Qf = 16
    Kf = 32
    Vf = 64
    Xf = 80
    PV = 96
    T0, T1, T2 = 100, 104, 108
    OT = 112
    LS = 128
    ONE = 132
    PB = 136
    OB = lambda tt, ks: 144 + 4 * (tt * 4 + ks)
    ACCf = lambda i, tt: 176 + 4 * (i * 2 + tt)
    TMP = 8
    L_O = 0
    top = A.newlab("r12_top")
    m0 = A.mark()
    A.label(top)
    A("s_lshl_b32 %s, %s, 18" % (s(pT), s(pS))); A("s_add_u32 %s, %s, %s" % (s(pT), s(pT), s(sQ)))
    A("s_lshl_b32 %s, %s, 10" % (s(pT + 1), s(sTT))); A("s_add_u32 %s, %s, %s" % (s(pT + 1), s(pT + 1), s(pT))); A("s_add_u32 %s, %s, 0x%x" % (s(pT + 1), s(pT + 1), QOP))
    for ks in range(4):
        A("s_add_u32 %s, %s, %d" % (s(pT + 2), s(pT + 1), ks * 2048))
        A("buffer_load_dwordx4 %s, v%d, %s, %s offen" % (v(Qf + 4 * ks, 4), vL16, s(pWS, 4), s(pT + 2)))
    for ks in range(4):
        A("s_add_u32 %s, %s, %d" % (s(pT + 2), s(pT), ks * 2048 + KOP))
        for kt in range(2):
            A("buffer_load_dwordx4 %s, v%d, %s, %s offen offset:%d" % (v(Kf + 16 * kt + 4 * ks, 4), vL16, s(pWS, 4), s(pT + 2), kt * 1024))
    A("s_lshl_b32 %s, %s, 12" % (s(pT + 1), s(sPART))); A("s_add_u32 %s, %s, %s" % (s(pT + 1), s(pT + 1), s(pT))); A("s_add_u32 %s, %s, 0x%x" % (s(pT + 1), s(pT + 1), VOP))
    for et in range(4):
        A("s_add_u32 %s, %s, %d" % (s(pT + 2), s(pT + 1), et * 1024))
        A("buffer_load_dwordx4 %s, v%d, %s, %s offen" % (v(Vf + 4 * et, 4), vL16, s(pWS, 4), s(pT + 2)))
    if WARM:
        A("s_add_u32 %s, %s, %d" % (s(pT + 2), s(pT), WARM * 262144))
        A("v_lshlrev_b32 v%d, 3, v%d" % (TMP + 4, vL16))
        A("buffer_load_dword v%d, v%d, %s, %s offen" % (TMP + 5, TMP + 4, s(pWS, 4), s(pT + 2)))
        A("s_add_u32 %s, %s, 0x%x" % (s(pT + 2), s(pT + 2), VOP))
        A("buffer_load_dword v%d, v%d, %s, %s offen" % (TMP + 6, TMP + 4, s(pWS, 4), s(pT + 2)))
    for i in range(4): A("v_mov_b32 v%d, 0x3f803f80" % (ONE + i))
    A("s_waitcnt vmcnt(%d)" % (6 if WARM else 4))
    for ks in range(4):
        for kt in range(2):
            T = T1 if kt == 0 else T2
            A("v_mfma_f32_16x16x32_bf16 %s, %s, %s, %s" % (v(T, 4), v(Kf + 16 * kt + 4 * ks, 4), v(Qf + 4 * ks, 4), "0" if ks == 0 else v(T, 4)))
    A("s_add_u32 %s, %s, 1" % (s(pT + 4), s(pS)))
    A("s_max_u32 %s, %s, %d" % (s(pT + 5), s(pS), RING - 1)); A("s_sub_u32 %s, %s, %d" % (s(pT + 5), s(pT + 5), RING - 1))
    A("v_mov_b32 v%d, %s" % (vMaskT, s(pT + 5))); A("v_mov_b32 v%d, %s" % (TMP + 3, s(pT + 4)))
    A("v_cndmask_b32 v%d, v%d, v%d, %s" % (vMaskT, vMaskT, TMP + 3, s(60, 2)))
    A("s_and_b32 %s, %s, 3" % (s(pT + 5), s(pS))); A("s_lshl_b32 %s, %s, 2" % (s(pT + 5), s(pT + 5)))
    A("v_mov_b32 v%d, %s" % (TMP + 3, s(pT + 5))); A("v_cndmask_b32 v%d, v%d, 0, %s" % (TMP + 3, TMP + 3, s(60, 2)))
    A("v_add_u32 v%d, v%d, v%d" % (TMP + 7, vFl, TMP + 3))
    wait_flags(A, TMP + 7, "0", "v%d" % vMaskT, fail, TMP, pend_sc="sc1")
    trace(A, 0)
    A("s_lshl_b32 %s, %s, 17" % (s(pT), s(pS))); A("s_add_u32 %s, %s, %s" % (s(pT), s(pT), s(sKM)))
    for ks in range(4):
        A("s_add_u32 %s, %s, %d" % (s(pT + 2), s(pT), ks * 1024))
        A("buffer_load_dwordx4 %s, v%d, %s, %s offen sc1" % (v(Xf + 4 * ks, 4), vL16, s(pWS, 4), s(pT + 2)))
    A("s_lshl_b32 %s, %s, 16" % (s(pT), s(pS))); A("s_add_u32 %s, %s, %s" % (s(pT), s(pT), s(sVM)))
    A("v_lshrrev_b32 v%d, 1, v%d" % (TMP, vL16))
    A("buffer_load_dwordx2 %s, v%d, %s, %s offen sc1" % (v(PV, 2), TMP, s(pWS, 4), s(pT)))
    A("buffer_load_dwordx2 %s, v%d, %s, %s offen offset:512 sc1" % (v(PV + 2, 2), TMP, s(pWS, 4), s(pT)))
    NEG = TMP + 1
    A("v_mov_b32 v%d, 0xff800000" % NEG)
    m1 = A.newlab("r12_tt1"); m2 = A.newlab("r12_msk")
    A("s_cmp_eq_u32 %s, 1" % s(sTT)); A("s_cbranch_scc1 %s" % m1)
    for r in range(4):
        A("v_cndmask_b32 v%d, v%d, v%d, %s" % (T1 + r, NEG, T1 + r, s(sMK + 2 * r, 2)))
        A("v_mov_b32 v%d, v%d" % (T2 + r, NEG))
    A("s_branch %s" % m2)
    A.label(m1)
    for r in range(4): A("v_cndmask_b32 v%d, v%d, v%d, %s" % (T2 + r, NEG, T2 + r, s(sMK + 2 * r, 2)))
    A.label(m2)
    A("s_waitcnt vmcnt(2)")
    trace(A, 1)
    for ks in range(4):
        A("v_mfma_f32_16x16x32_bf16 %s, %s, %s, %s" % (v(T0, 4), v(Xf + 4 * ks, 4), v(Qf + 4 * ks, 4), "0" if ks == 0 else v(T0, 4)))
    A("v_max3_f32 v%d, v%d, v%d, v%d" % (TMP + 2, T1, T1 + 1, T1 + 2))
    A("v_max3_f32 v%d, v%d, v%d, v%d" % (TMP + 3, T1 + 3, T2, T2 + 1))
    A("v_max3_f32 v%d, v%d, v%d, v%d" % (TMP + 2, TMP + 2, T2 + 2, T2 + 3))
    A("v_max_f32 v%d, v%d, v%d" % (TMP + 2, TMP + 2, TMP + 3))
    A("s_nop 3")
    A("v_max3_f32 v%d, v%d, v%d, v%d" % (TMP + 2, TMP + 2, T0, T0 + 1))
    x, y = TMP + 2, TMP + 3
    for sw in ("v_permlane16_swap_b32", "v_permlane32_swap_b32"):
        A("v_mov_b32 v%d, v%d" % (y, x)); A("s_nop 1"); A("%s v%d, v%d" % (sw, x, y)); A("v_max_f32 v%d, v%d, v%d" % (x, x, y))
    A("s_mov_b32 %s, 0x%x" % (s(pT + 6), f2u(SCALE_LOG2E)))
    A("v_mul_f32 v%d, %s, v%d" % (x, s(pT + 6), x))
    vals = [T0, T0 + 1] + [T1 + r for r in range(4)] + [T2 + r for r in range(4)]
    for r in vals: A("v_fma_f32 v%d, v%d, %s, -v%d" % (r, r, s(pT + 6), x))
    for r in vals: A("v_exp_f32 v%d, v%d" % (r, r))
    A("s_nop 0")
    A("v_cvt_pk_bf16_f32 v%d, v%d, v%d" % (PB, T1, T1 + 1)); A("v_cvt_pk_bf16_f32 v%d, v%d, v%d" % (PB + 1, T1 + 2, T1 + 3))
    A("v_cvt_pk_bf16_f32 v%d, v%d, v%d" % (PB + 2, T2, T2 + 1)); A("v_cvt_pk_bf16_f32 v%d, v%d, v%d" % (PB + 3, T2 + 2, T2 + 3))
    A("v_cvt_pk_bf16_f32 v%d, v%d, v%d" % (PB + 4, T0, T0 + 1)); A("v_mov_b32 v%d, 0" % (PB + 5))
    A("v_mov_b32 v%d, 0" % (PB + 6)); A("v_cvt_pk_bf16_f32 v%d, v%d, v%d" % (PB + 7, T0, T0 + 1))
    A("s_waitcnt vmcnt(0)")
    A("s_nop 0")
    A("v_mfma_f32_16x16x32_bf16 %s, %s, %s, 0" % (v(LS, 4), v(ONE, 4), v(PB, 4)))
    for et in range(4):
        A("v_mfma_f32_16x16x32_bf16 %s, %s, %s, 0" % (v(OT + 4 * et, 4), v(Vf + 4 * et, 4), v(PB, 4)))
    A("s_nop 1")
    A("v_mfma_f32_16x16x16_bf16 %s, %s, %s, %s" % (v(LS, 4), v(ONE, 2), v(PB + 4, 2), v(LS, 4)))
    for et in range(4):
        A("v_mfma_f32_16x16x16_bf16 %s, %s, %s, %s" % (v(OT + 4 * et, 4), v(PV + 2 * (et >> 1), 2), v(PB + 4 + 2 * (et & 1), 2), v(OT + 4 * et, 4)))
    A("s_nop 4")
    A("v_rcp_f32 v%d, v%d" % (x, LS))
    A("s_nop 2")
    for i in range(16): A("v_mul_f32 v%d, v%d, v%d" % (OT + i, OT + i, x))
    for a_ in range(2):
        d = TMP + 4 if a_ == 0 else OT
        src = OT + 8 * a_
        dd = Xf + 4 * a_
        for q in range(4): A("v_cvt_pk_bf16_f32 v%d, v%d, v%d" % (dd + q, src + 2 * q, src + 2 * q + 1))
    A("s_lshl_b32 %s, %s, 12" % (s(pT), s(sTT))); A("s_lshl_b32 %s, %s, 11" % (s(pT + 1), s(sPART))); A("s_add_u32 %s, %s, %s" % (s(pT), s(pT), s(pT + 1)))
    A("v_add_u32 v%d, %s, v%d" % (TMP, s(pT), vL16))
    A("s_barrier")
    A("ds_write_b128 v%d, %s offset:%d" % (TMP, v(Xf, 4), L_O))
    A("ds_write_b128 v%d, %s offset:%d" % (TMP, v(Xf + 4, 4), L_O + 1024))
    A("s_waitcnt lgkmcnt(0)")
    A("s_barrier")
    for ks in range(4):
        for tt in range(2):
            A("ds_read_b128 %s, v%d offset:%d" % (v(OB(tt, ks), 4), vL16, L_O + tt * 4096 + ks * 1024))
    def lw(ks): A("s_waitcnt lgkmcnt(%d)" % (6 - 2 * ks))
    k128_gemm(A, WREG, OB, ACCf, lw)
    trace(A, 2)
    A("s_nop 7")
    A("s_and_b32 %s, %s, %d" % (s(pT), s(pS), RING - 1)); A("s_mul_i32 %s, %s, %d" % (s(pT), s(pT), 32 * 32 * PROW)); A("s_add_u32 %s, %s, %s" % (s(pT), s(pT), s(sOUT)))
    pstore(A, ACCf, vTok, vTok9, vBP, vBP9, pT, 16, 32 * PROW, sLO8)
    A("s_add_u32 %s, %s, 1" % (s(pPEND), s(pS)))
    A("s_add_u32 %s, %s, %d" % (s(pS), s(pS), nsets))
    A("s_cmp_lt_u32 %s, %d" % (s(pS), nseg))
    A("s_cbranch_scc1 %s" % top)
    m1 = A.mark()
    set_flag(A, s(pFOFF), s(pPEND), TMP)
    return (m0, m1)

def build_role_test(name, role_fn, idreg_expr):
    A = Asm(); kstart(A, name)
    fail = "L_fail_" + name; end = "L_end_" + name
    load_srd(A, pDBG, "dbg"); load_srd(A, pWS, "ws")
    A("v_lshrrev_b32 v1, 6, v0"); A("s_nop 0"); A("v_readfirstlane_b32 %s, v1" % s(pWV))
    A("s_mov_b32 %s, s2" % s(pID)); A("s_mov_b32 %s, 0" % s(pFAST)); A("s_mov_b32 %s, 0" % s(pPEND))
    A("s_memrealtime s[96:97]")
    mm = role_fn(A, fail)
    A("s_memrealtime s[100:101]"); A("s_waitcnt lgkmcnt(0)"); A("s_sub_u32 s100, s100, s96")
    A("v_mov_b32 v16, s100"); A("s_lshl_b32 %s, s2, 2" % s(pT)); A("s_add_u32 %s, %s, 0x%x" % (s(pT), s(pT), FLG + 0x1000))
    A("v_mov_b32 v1, 0"); A("s_mov_b64 exec, 1"); A("buffer_store_dword v16, v1, %s, %s offen" % (s(pWS, 4), s(pT)))
    A("s_endpgm")
    A.label(fail); A("v_mov_b32 v1, 0xf0"); A("v_mov_b32 v2, 0xdead"); A("s_mov_b64 exec, 1"); A("buffer_store_dword v2, v1, %s, 0 offen sc1" % s(pDBG, 4))
    A.label(end); A("s_endpgm")
    probs = lint(A.lines, name + "-linear", verbose=True)
    if mm: probs += lint(A.lines[mm[0]:mm[1]] * 2, name + "-loop", verbose=True)
    return HDR + A.text() + '.section .rodata,"a"\n' + kdesc(name), name, probs
if __name__ == "__main__":
    from hiprun import add_metadata, assemble
    txt, name, probs = build_role_test("r12_kernel", lambda A, f: emit_r12(A, f), None)
    open("r12.s", "w").write(add_metadata(txt, [(name, 256)], 120)); assemble("r12.s", "r12.co"); print("ok", txt.count("\n"))

def emit_sel(A, dst, tmp):
    A("v_and_b32 v%d, 15, v0" % tmp)
    A("v_mov_b32 v%d, 0x3f80" % (tmp + 1)); A("v_mov_b32 v%d, 0x3f800000" % (tmp + 2))
    A("v_and_b32 v%d, 1, v%d" % (dst, tmp)); A("v_cmp_eq_u32 vcc, 0, v%d" % dst); A("s_nop 1")
    A("v_cndmask_b32 v%d, v%d, v%d, vcc" % (tmp + 1, tmp + 2, tmp + 1))
    A("v_lshrrev_b32 v%d, 1, v%d" % (tmp, tmp))
    for q in range(4):
        A("v_cmp_eq_u32 vcc, %d, v%d" % (q, tmp)); A("s_nop 1"); A("v_cndmask_b32 v%d, 0, v%d, vcc" % (dst + q, tmp + 1))

def reduce_rows_consts(A, vM, vX, vX2, nprod, tmp):
    A("v_and_b32 v%d, 63, v0" % tmp); A("v_lshrrev_b32 v%d, 4, v%d" % (tmp + 1, tmp)); A("v_and_b32 v%d, 15, v%d" % (tmp + 2, tmp))
    A("v_mul_u32_u24 v%d, %d, v%d" % (vM, ROW, tmp + 1)); A("v_lshl_add_u32 v%d, v%d, 4, v%d" % (vM, tmp + 2, vM))
    A("v_lshrrev_b32 v%d, 1, v%d" % (tmp + 3, tmp + 2))
    A("v_lshl_add_u32 v%d, v%d, 2, v%d" % (vX, tmp + 3, tmp + 1)); A("v_mul_u32_u24 v%d, %d, v%d" % (vX, ROW, vX))
    A("v_and_b32 v%d, 1, v%d" % (tmp + 4, tmp + 2)); A("v_add_u32 v%d, 16, v%d" % (tmp + 4, tmp + 4))
    A("v_lshl_add_u32 v%d, v%d, 4, v%d" % (vX, tmp + 4, vX))
    if nprod > 32:
        A("v_add_u32 v%d, 32, v%d" % (vX2, tmp + 1)); A("v_mul_u32_u24 v%d, %d, v%d" % (vX2, ROW, vX2)); A("v_lshl_add_u32 v%d, v%d, 4, v%d" % (vX2, tmp + 4, vX2))
        A("v_mov_b32 v%d, 0x40000000" % (tmp + 4)); A("v_cmp_eq_u32 vcc, 0, v%d" % (tmp + 3)); A("s_nop 1")
        A("v_cndmask_b32 v%d, v%d, v%d, vcc" % (vX2, tmp + 4, vX2))

def reduce_issue(A, sbase, nprod, vM, vX, vX2, LD):
    nm = nprod // 4
    for n in range(nm):
        A("s_add_u32 %s, %s, %d" % (s(pT + 8), s(sbase), n * 4 * ROW))
        A("buffer_load_dwordx4 %s, v%d, %s, %s offen sc1" % (v(LD + 4 * n, 4), vM, s(pWS, 4), s(pT + 8)))
    A("buffer_load_dwordx4 %s, v%d, %s, %s offen sc1" % (v(LD + 4 * nm, 4), vX, s(pWS, 4), s(sbase)))
    if nprod > 32:
        A("buffer_load_dwordx4 %s, v%d, %s, %s offen sc1" % (v(LD + 4 * nm + 4, 4), vX2, s(pWS, 4), s(sbase)))
def reduce_consume(A, nprod, LD, SEL, DM, DX, younger=0):
    nm = nprod // 4; nx = 2 if nprod > 32 else 1
    for n in range(nm):
        A("s_waitcnt vmcnt(%d)" % (nm - 1 - n + nx + younger))
        A("v_mfma_f32_16x16x32_bf16 %s, %s, %s, %s" % (v(DM, 4), v(SEL, 4), v(LD + 4 * n, 4), "0" if n == 0 else v(DM, 4)))
    for k in range(nx):
        A("s_waitcnt vmcnt(%d)" % (nx - 1 - k + younger))
        A("v_mfma_f32_16x16x32_bf16 %s, %s, %s, %s" % (v(DX, 4), v(SEL, 4), v(LD + 4 * (nm + k), 4), "0" if k == 0 else v(DX, 4)))
    A("s_nop 7")
    for sh in (2, 4, 8):
        for r in range(4): A("v_add_f32_dpp v%d, v%d, v%d row_shl:%d row_mask:0xf bank_mask:0xf bound_ctrl:1" % (DX + r, DX + r, DX + r, sh))
def reduce_rows(A, sbase, nprod, vM, vX, vX2, LD, SEL, DM, DX):
    reduce_issue(A, sbase, nprod, vM, vX, vX2, LD)
    reduce_consume(A, nprod, LD, SEL, DM, DX)

def rowpos_consts(A, vSm, vSx, vNm, vNx, tmp):
    A("v_and_b32 v%d, 63, v0" % tmp); A("v_lshrrev_b32 v%d, 4, v%d" % (tmp + 1, tmp)); A("v_and_b32 v%d, 15, v%d" % (tmp + 2, tmp))
    A("s_mul_i32 %s, %s, 18" % (s(pT + 8), s(pWV)))
    for (vs, vn, add, cmax) in ((vSm, vNm, 0, 16), (vSx, vNx, 16, 2)):
        A("v_add_u32 v%d, %s, v%d" % (tmp + 3, s(pT + 8), tmp + 2))
        if add: A("v_add_u32 v%d, %d, v%d" % (tmp + 3, add, tmp + 3))
        A("v_lshlrev_b32 v%d, 4, v%d" % (vs, tmp + 3)); A("v_lshl_add_u32 v%d, v%d, 3, v%d" % (vs, tmp + 1, vs))
        A("v_lshrrev_b32 v%d, 2, v%d" % (vn, tmp + 3)); A("v_lshlrev_b32 v%d, 6, v%d" % (vn, vn))
        A("v_lshl_add_u32 v%d, v%d, 5, v%d" % (vn, tmp + 1, vn))
        A("v_and_b32 v%d, 3, v%d" % (tmp + 4, tmp + 3)); A("v_lshl_add_u32 v%d, v%d, 3, v%d" % (vn, tmp + 4, vn))
        A("v_cmp_gt_u32 vcc, %d, v%d" % (cmax, tmp + 2)); A("v_cmp_gt_u32 %s, 2, v%d" % (s(pT + 10, 2), tmp + 1)); A("s_nop 1")
        A("s_and_b64 vcc, vcc, %s" % s(pT + 10, 2)); A("v_mov_b32 v%d, 0x40000000" % (tmp + 4)); A("s_nop 0")
        A("v_cndmask_b32 v%d, v%d, v%d, vcc" % (vs, tmp + 4, vs)); A("v_cndmask_b32 v%d, v%d, v%d, vcc" % (vn, tmp + 4, vn))

def rb16(A, r):
    A("v_cvt_pk_bf16_f32 v%d, v%d, v%d" % (r, r, r)); A("v_lshlrev_b32 v%d, 16, v%d" % (r, r))

def wave_sum2(A, a_, b_, t):
    for sh in (1, 2, 4, 8):
        A("v_add_f32_dpp v%d, v%d, v%d row_ror:%d row_mask:0xf bank_mask:0xf" % (t, a_, a_, sh))
        A("v_add_f32_dpp v%d, v%d, v%d row_ror:%d row_mask:0xf bank_mask:0xf" % (t + 1, b_, b_, sh))
        A("v_mov_b32 v%d, v%d" % (a_, t)); A("v_mov_b32 v%d, v%d" % (b_, t + 1)); A("s_nop 0")
    for sw in ("v_permlane16_swap_b32", "v_permlane32_swap_b32"):
        A("v_mov_b32 v%d, v%d" % (t, a_)); A("v_mov_b32 v%d, v%d" % (t + 1, b_)); A("s_nop 0")
        A("%s v%d, v%d" % (sw, a_, t)); A("%s v%d, v%d" % (sw, b_, t + 1))
        A("v_add_f32 v%d, v%d, v%d" % (a_, a_, t)); A("v_add_f32 v%d, v%d, v%d" % (b_, b_, t + 1))

def ln_row(A, vals, vsum, vsq, t, lds_off, vLdsW, vLdsR):
    A("v_add_f32 v%d, v%d, v%d" % (vsum, vals[0], vals[1])); A("v_mul_f32 v%d, v%d, v%d" % (vsq, vals[0], vals[0]))
    A("v_fma_f32 v%d, v%d, v%d, v%d" % (vsq, vals[1], vals[1], vsq))
    for r in vals[2:]:
        A("v_add_f32 v%d, v%d, v%d" % (vsum, vsum, r)); A("v_fma_f32 v%d, v%d, v%d, v%d" % (vsq, r, r, vsq))
    A("s_nop 0")
    wave_sum2(A, vsum, vsq, t)
    A("v_mov_b32 v%d, v%d" % (t, vsum)); A("v_mov_b32 v%d, v%d" % (t + 1, vsq))
    A("s_mov_b64 exec, 1"); A("ds_write_b64 v%d, %s offset:%d" % (vLdsW, v(t, 2), lds_off)); A("s_mov_b64 exec, -1")
    A("s_waitcnt lgkmcnt(0)"); A("s_barrier")
    A("ds_read_b128 %s, v%d offset:%d" % (v(t, 4), vLdsR, lds_off)); A("ds_read_b128 %s, v%d offset:%d" % (v(t + 4, 4), vLdsR, lds_off + 16))
    A("s_waitcnt lgkmcnt(0)")
    A("v_add_f32 v%d, v%d, v%d" % (vsum, t, t + 2)); A("v_add_f32 v%d, v%d, v%d" % (vsq, t + 1, t + 3))
    A("v_add_f32 v%d, v%d, v%d" % (t, t + 4, t + 6)); A("v_add_f32 v%d, v%d, v%d" % (t + 1, t + 5, t + 7))
    A("v_add_f32 v%d, v%d, v%d" % (vsum, vsum, t)); A("v_add_f32 v%d, v%d, v%d" % (vsq, vsq, t + 1))
    A("v_mul_f32 v%d, 0x%x, v%d" % (vsum, f2u(1.0 / 576), vsum)); A("v_mul_f32 v%d, 0x%x, v%d" % (vsq, f2u(1.0 / 576), vsq))
    A("v_fma_f32 v%d, -v%d, v%d, v%d" % (vsq, vsum, vsum, vsq)); A("v_max_f32 v%d, 0, v%d" % (vsq, vsq))
    rb16(A, vsum); rb16(A, vsq)
    A("v_add_f32 v%d, 0x%x, v%d" % (vsq, f2u(1e-5), vsq)); rb16(A, vsq)
    A("v_sqrt_f32 v%d, v%d" % (vsq, vsq)); A("s_nop 0"); rb16(A, vsq)
    A("v_rcp_f32 v%d, v%d" % (vsq, vsq))
    for r in vals: A("v_sub_f32 v%d, v%d, v%d" % (r, r, vsum))
    for r in vals: rb16(A, r)
    for r in vals: A("v_mul_f32 v%d, v%d, v%d" % (r, r, vsq))
    for r in vals: rb16(A, r)

def unpack4(A, src, dst):
    A("v_lshlrev_b32 v%d, 16, v%d" % (dst, src)); A("v_and_b32 v%d, 0xffff0000, v%d" % (dst + 1, src))
    A("v_lshlrev_b32 v%d, 16, v%d" % (dst + 2, src + 1)); A("v_and_b32 v%d, 0xffff0000, v%d" % (dst + 3, src + 1))

def role_top(A, fail, vFl, sflag, target_expr_fn, tmp, first_label):
    pass

def emit_r3(A, fail, nseg=64):
    A.c("=== R3")
    vM, vX, vSm, vSx, vNm, vNx, vFl, vLW_, vLR = 1, 2, 3, 4, 5, 6, 7, 8, 9
    SEL, DM, DX, XQ, TMP, LD = 12, 16, 20, 24, 28, 48
    load_srd(A, pW, "x")
    emit_sel(A, SEL, TMP)
    reduce_rows_consts(A, vM, vX, None, 32, TMP)
    rowpos_consts(A, vSm, vSx, vNm, vNx, TMP)
    A("v_and_b32 v%d, 63, v0" % TMP); A("v_min_u32 v%d, 31, v%d" % (vFl, TMP)); A("v_lshlrev_b32 v%d, 2, v%d" % (vFl, vFl))
    A("v_mov_b32 v%d, 0" % vLR); A("s_lshl_b32 %s, %s, 3" % (s(pT), s(pWV))); A("v_mov_b32 v%d, %s" % (vLW_, s(pT)))
    A("s_lshl_b32 %s, %s, 2" % (s(pFOFF), s(pID))); A("s_add_u32 %s, %s, 0x%x" % (s(pFOFF), s(pFOFF), F_R3))
    sIN, sROW, sFL = 44, 45, 46
    A("s_mov_b32 %s, 0" % s(pS))
    top = A.newlab("r3_top"); m0 = A.mark(); A.label(top)
    A("s_lshl_b32 %s, %s, 5" % (s(sROW), s(pS))); A("s_add_u32 %s, %s, %s" % (s(sROW), s(sROW), s(pID))); A("s_mul_i32 %s, %s, %d" % (s(sROW), s(sROW), ROW))
    A("buffer_load_dwordx2 %s, v%d, %s, %s offen" % (v(XQ, 2), vNm, s(pW, 4), s(sROW)))
    A("buffer_load_dwordx2 %s, v%d, %s, %s offen" % (v(XQ + 2, 2), vNx, s(pW, 4), s(sROW)))
    A("s_and_b32 %s, %s, 1" % (s(sFL), s(pS))); A("s_lshl_b32 %s, %s, 7" % (s(sFL), s(sFL))); A("s_add_u32 %s, %s, 0x%x" % (s(sFL), s(sFL), F_R12))
    A("s_add_u32 %s, %s, 1" % (s(pT + 4), s(pS)))
    wait_flags(A, vFl, s(sFL), s(pT + 4), fail, TMP, pend_sc="sc1")
    trace(A, 0)
    A("s_and_b32 %s, %s, %d" % (s(sIN), s(pS), RING - 1)); A("s_mul_i32 %s, %s, %d" % (s(sIN), s(sIN), 32 * 32 * ROW)); A("s_mul_i32 %s, %s, %d" % (s(pT), s(pID), 32 * ROW))
    A("s_add_u32 %s, %s, %s" % (s(sIN), s(sIN), s(pT))); A("s_mul_i32 %s, %s, 288" % (s(pT), s(pWV))); A("s_add_u32 %s, %s, %s" % (s(sIN), s(sIN), s(pT)))
    A("s_add_u32 %s, %s, 0x%x" % (s(sIN), s(sIN), P12))
    reduce_rows(A, sIN, 32, vM, vX, None, LD, SEL, DM, DX)
    trace(A, 1)
    vals = [DM + r for r in range(4)] + [DX + r for r in range(4)]
    for r in vals: rb16(A, r)
    unpack4(A, XQ, TMP); unpack4(A, XQ + 2, TMP + 4)
    for i, r in enumerate(vals): A("v_add_f32 v%d, v%d, v%d" % (r, r, TMP + i))
    for r in vals: rb16(A, r)
    A("v_cmp_gt_u32 vcc, 0x40000000, v%d" % vSx); A("s_nop 1")
    for r in range(4): A("v_cndmask_b32 v%d, 0, v%d, vcc" % (DX + r, DX + r))
    def store_row(base):
        A("v_perm_b32 v%d, v%d, v%d, %s" % (TMP, DM + 1, DM, s(pT + 14))); A("v_perm_b32 v%d, v%d, v%d, %s" % (TMP + 1, DM + 3, DM + 2, s(pT + 14)))
        A("v_perm_b32 v%d, v%d, v%d, %s" % (TMP + 2, DX + 1, DX, s(pT + 14))); A("v_perm_b32 v%d, v%d, v%d, %s" % (TMP + 3, DX + 3, DX + 2, s(pT + 14)))
        A("s_add_u32 %s, %s, 0x%x" % (s(pT + 8), s(sROW), base))
        A("buffer_store_dwordx2 %s, v%d, %s, %s offen sc1" % (v(TMP, 2), vSm, s(pWS, 4), s(pT + 8)))
        A("buffer_store_dwordx2 %s, v%d, %s, %s offen sc1" % (v(TMP + 2, 2), vSx, s(pWS, 4), s(pT + 8)))
    A("s_mov_b32 %s, 0x07060302" % s(pT + 14))
    store_row(HB)
    ln_row(A, vals, TMP + 8, TMP + 9, TMP + 10, 0, vLW_, vLR)
    A("v_cmp_gt_u32 vcc, 0x40000000, v%d" % vSx); A("v_cmp_gt_u32 %s, 0x40000000, v%d" % (s(pT + 10, 2), vSm)) if False else None
    A("s_nop 1")
    for r in range(4): A("v_cndmask_b32 v%d, 0, v%d, vcc" % (DX + r, DX + r))
    A("v_cmp_gt_u32 vcc, 0x40000000, v%d" % vSm); A("s_nop 1")
    for r in range(4): A("v_cndmask_b32 v%d, 0, v%d, vcc" % (DM + r, DM + r))
    store_row(HNB)
    ln_row(A, vals, TMP + 8, TMP + 9, TMP + 10, 64, vLW_, vLR)
    store_row(TB)
    trace(A, 2)
    A("s_add_u32 %s, %s, 1" % (s(pS), s(pS))); A("s_mov_b32 %s, %s" % (s(pPEND), s(pS)))
    A("s_cmp_lt_u32 %s, %d" % (s(pS), nseg)); A("s_cbranch_scc1 %s" % top)
    m1 = A.mark()
    set_flag(A, s(pFOFF), s(pPEND), TMP)
    return (m0, m1)

def stage_consts(A, VS, vB0, tmp):
    A("v_and_b32 v%d, 63, v0" % tmp)
    for i in range(9):
        A("s_lshl_b32 %s, %s, 6" % (s(pT + 8), s(pWV))); A("s_add_u32 %s, %s, %d" % (s(pT + 8), s(pT + 8), 256 * i))
        A("v_add_u32 v%d, %s, v%d" % (tmp + 1, s(pT + 8), tmp))
        A("v_mul_u32_u24 v%d, 58255, v%d" % (tmp + 2, tmp + 1)); A("v_lshrrev_b32 v%d, 22, v%d" % (tmp + 2, tmp + 2))
        A("v_mul_u32_u24 v%d, 72, v%d" % (tmp + 3, tmp + 2)); A("v_sub_u32 v%d, v%d, v%d" % (tmp + 3, tmp + 1, tmp + 3))
        A("v_bfe_u32 v%d, v%d, 1, 3" % (tmp + 4, tmp + 2)); A("v_xor_b32 v%d, v%d, v%d" % (tmp + 3, tmp + 3, tmp + 4))
        A("v_lshlrev_b32 v%d, 4, v%d" % (tmp + 3, tmp + 3))
        A("v_mul_u32_u24 v%d, %d, v%d" % (tmp + 2, ROW, tmp + 2)); A("v_add_u32 v%d, v%d, v%d" % (VS + i, tmp + 2, tmp + 3))
    A("v_and_b32 v%d, 15, v%d" % (tmp + 1, tmp)); A("v_lshrrev_b32 v%d, 4, v%d" % (tmp + 2, tmp))
    A("v_bfe_u32 v%d, v%d, 1, 3" % (tmp + 3, tmp + 1)); A("v_xor_b32 v%d, v%d, v%d" % (tmp + 3, tmp + 3, tmp + 2)); A("v_lshlrev_b32 v%d, 4, v%d" % (tmp + 3, tmp + 3))
    A("v_mul_u32_u24 v%d, %d, v%d" % (tmp + 1, ROW, tmp + 1)); A("v_add_u32 v%d, v%d, v%d" % (vB0, tmp + 1, tmp + 3)); A("v_xor_b32 v%d, 64, v%d" % (vB0 + 1, vB0))

def stage_rows(A, sbase, VS, lds_base, sc="sc1"):
    A("s_lshl_b32 %s, %s, 10" % (s(pT + 9), s(pWV)))
    for i in range(9):
        A("s_add_u32 m0, %s, %d" % (s(pT + 9), lds_base + i * 4096)); A("s_nop 0")
        A("buffer_load_dwordx4 v%d, %s, %s offen %s lds" % (VS + i, s(pWS, 4), s(sbase), sc))

def bfrag_read(A, dst, vB0, lds_base, tt, ks):
    A("ds_read_b128 %s, v%d offset:%d" % (v(dst, 4), vB0 + (ks & 1), lds_base + tt * 16 * ROW + (ks >> 1) * 128))

def load_w576(A, srd, scol, grow, rowbytes, ntile, WREG, tilebyte_sreg, tmp):
    lanes_per_row = rowbytes // 16; rows_per = 64 // lanes_per_row; ninstr = 576 // rows_per // 4
    A("v_and_b32 v%d, 63, v0" % tmp)
    A("v_lshrrev_b32 v%d, %d, v%d" % (tmp + 1, lanes_per_row.bit_length() - 1, tmp)); A("v_and_b32 v%d, %d, v%d" % (tmp + 2, lanes_per_row - 1, tmp))
    A("s_mov_b32 %s, %d" % (s(pT + 8), grow)); A("v_mul_lo_u32 v%d, v%d, %s" % (tmp + 1, tmp + 1, s(pT + 8))); A("v_lshl_add_u32 v%d, v%d, 4, v%d" % (tmp + 1, tmp + 2, tmp + 1))
    A("s_mul_i32 %s, %s, %d" % (s(pT + 10), s(pWV), rows_per * grow)); A("s_add_u32 %s, %s, %s" % (s(pT + 10), s(pT + 10), s(scol)))
    A("s_lshl_b32 %s, %s, 10" % (s(pT + 9), s(pWV)))
    for i in range(ninstr):
        A("s_add_u32 m0, %s, %d" % (s(pT + 9), i * 4096))
        A("s_add_u32 %s, %s, %d" % (s(pT + 8), s(pT + 10), i * 4 * rows_per * grow))
        A("buffer_load_dwordx4 v%d, %s, %s offen lds" % (tmp + 1, s(srd, 4), s(pT + 8)))
    A("s_waitcnt vmcnt(0)"); A("s_barrier")
    A("v_lshrrev_b32 v%d, 4, v%d" % (tmp + 1, tmp)); A("v_bfe_u32 v%d, v%d, 2, 2" % (tmp + 2, tmp)); A("v_lshl_add_u32 v%d, v%d, 2, v%d" % (tmp + 1, tmp + 1, tmp + 2))
    A("v_mul_u32_u24 v%d, %d, v%d" % (tmp + 1, rowbytes, tmp + 1)); A("v_and_b32 v%d, 3, v%d" % (tmp + 2, tmp)); A("v_lshl_add_u32 v%d, v%d, 3, v%d" % (tmp + 1, tmp + 2, tmp + 1))
    A("v_add_u32 v%d, %s, v%d" % (tmp + 1, tilebyte_sreg, tmp + 1))
    cnt = 0
    for ks in range(18):
        for u in range(2):
            A("v_add_u32 v%d, %d, v%d" % (tmp + 3, (32 * ks + 16 * u) * rowbytes, tmp + 1))
            for i in range(ntile):
                sp = WREG(i, ks)
                A("ds_read_b64_tr_b16 %s, v%d offset:%d" % (R((sp[0], sp[1] + 2 * u), 2), tmp + 3, i * 32)); cnt += 1
                if cnt % 12 == 0: A("s_waitcnt lgkmcnt(0)")
    A("s_waitcnt lgkmcnt(0)"); A("s_barrier")

GC0 = -2.0 * 0.7978845608028654 * 1.4426950408889634
GC1 = GC0 * 0.044715
def gelu(A, regs, t):
    A("s_mov_b32 %s, 0x%x" % (s(pT + 12), f2u(GC1))); A("s_mov_b32 %s, 0x%x" % (s(pT + 13), f2u(GC0)))
    for i, r in enumerate(regs): A("v_mul_f32 v%d, v%d, v%d" % (t + i, r, r))
    for i, r in enumerate(regs): A("v_mov_b32 v%d, %s" % (t + len(regs), s(pT + 13))) if i == 0 else None
    for i, r in enumerate(regs): A("v_fma_f32 v%d, v%d, %s, v%d" % (t + i, t + i, s(pT + 12), t + len(regs)))
    for i, r in enumerate(regs): A("v_mul_f32 v%d, v%d, v%d" % (t + i, t + i, r))
    for i, r in enumerate(regs): A("v_exp_f32 v%d, v%d" % (t + i, t + i))
    for i, r in enumerate(regs): A("v_add_f32 v%d, 1.0, v%d" % (t + i, t + i))
    for i, r in enumerate(regs): A("v_rcp_f32 v%d, v%d" % (t + i, t + i))
    A("s_nop 0")
    for i, r in enumerate(regs): A("v_mul_f32 v%d, v%d, v%d" % (r, r, t + i))

def small_gemm(A, WREG, ACC, BF, vB0, lds_base, ntile, fillers=None):
    fillers = [l for l in (fillers or []) if not l.startswith(";")]
    def rd(ks):
        for tt in range(2): bfrag_read(A, BF[ks & 1][tt], vB0, lds_base, tt, ks)
    rd(0)
    nm = 18 * ntile * 2; per = -(-len(fillers) // (nm - 4)) if fillers else 0
    for ks in range(18):
        if ks + 1 < 18:
            rd(ks + 1); A("s_waitcnt lgkmcnt(2)")
        else: A("s_waitcnt lgkmcnt(0)")
        for i in range(ntile):
            for tt in range(2):
                A("v_mfma_f32_16x16x32_bf16 %s, %s, %s, %s" % (v(ACC(i, tt), 4), R(WREG(i, ks), 4), v(BF[ks & 1][tt], 4), "0" if ks == 0 else v(ACC(i, tt), 4)))
                for _ in range(per):
                    if fillers: A(fillers.pop(0))
    while fillers: A(fillers.pop(0))

def emit_r4(A, fail, nseg=64, st="sc1", nsets=2, hook=None):
    A.c("=== R4")
    sSET = 47
    A("s_lshl_b32 %s, %s, 2" % (s(pFOFF), s(pID))); A("s_add_u32 %s, %s, 0x%x" % (s(pFOFF), s(pFOFF), F_R4))
    A("s_cmp_ge_u32 %s, 9" % s(pID)); A("s_cselect_b32 %s, 1, 0" % s(sSET)); A("s_mul_i32 %s, %s, 9" % (s(pT), s(sSET))); A("s_sub_u32 %s, %s, %s" % (s(pID), s(pID), s(pT)))
    WREG = lambda i, ks: ('a', 4 * ks)
    vFl, vB0, vOut, VS, TMP = 1, 2, 4, 6, 16
    BF = [[40, 44], [48, 52]]; ACC = lambda i, tt: 56 + 4 * tt
    load_srd(A, pW, "w1")
    A("s_lshl_b32 %s, %s, 7" % (s(pT), s(pID)))
    A("s_lshl_b32 %s, %s, 5" % (s(pT + 1), s(pWV)))
    load_w576(A, pW, pT, 1152, 128, 1, WREG, s(pT + 1), TMP)
    stage_consts(A, VS, vB0, TMP)
    A("v_and_b32 v%d, 63, v0" % TMP); A("v_min_u32 v%d, 31, v%d" % (vFl, TMP)); A("v_lshlrev_b32 v%d, 4, v%d" % (vFl, vFl))
    sTl, sDL, sPOS = 44, 45, 46
    A("s_lshl_b32 %s, %s, 2" % (s(sTl), s(pID))); A("s_add_u32 %s, %s, %s" % (s(sTl), s(sTl), s(pWV)))
    A("s_mov_b32 %s, 1" % s(sDL))
    for thr, d in ((9, -1), (18, 2), (27, -2)):
        A("s_cmp_ge_u32 %s, %d" % (s(sTl), thr)); A("s_cselect_b32 %s, %d, %s" % (s(sDL), d, s(sDL)))
    A("s_lshr_b32 %s, %s, 1" % (s(sPOS), s(sTl))); A("s_lshl_b32 %s, %s, 6" % (s(sPOS), s(sPOS)))
    A("s_and_b32 %s, %s, 1" % (s(pT), s(sTl))); A("s_lshl_b32 %s, %s, 3" % (s(pT), s(pT))); A("s_add_u32 %s, %s, %s" % (s(sPOS), s(sPOS), s(pT)))
    A("s_add_u32 %s, %s, 0x%x" % (s(sPOS), s(sPOS), GSB))
    vC, vG16 = 4, 5
    A("v_and_b32 v%d, 15, v%d" % (vC, TMP)); A("v_lshrrev_b32 v%d, 4, v%d" % (vG16, TMP)); A("v_lshlrev_b32 v%d, 4, v%d" % (vG16, vG16))
    A("v_mov_b64 v[%d:%d], 0" % (TMP + 2, TMP + 3))
    A("s_cmp_gt_i32 %s, 0" % s(sDL)); A("s_cselect_b32 %s, 0, 2046" % s(pT))
    A("v_add_u32 v%d, %s, v%d" % (TMP + 4, s(pT), vC))
    A("s_abs_i32 %s, %s" % (s(pT + 1), s(sDL)))
    A("s_cmp_eq_u32 %s, 2" % s(pT + 1)); A("s_cselect_b32 %s, 3, 0" % s(pT + 2))
    A("s_cmp_eq_i32 %s, 1" % s(sDL)); A("s_cselect_b32 %s, 1, %s" % (s(pT + 2), s(pT + 2)))
    A("s_cmp_eq_i32 %s, -1" % s(sDL)); A("s_cselect_b32 %s, 2, %s" % (s(pT + 2), s(pT + 2)))
    A("v_lshlrev_b32 v%d, v%d, 1" % (TMP + 5, vC) if False else "v_mov_b32 v%d, 1" % (TMP + 5)); A("v_lshlrev_b32 v%d, v%d, v%d" % (TMP + 5, vC, TMP + 5))
    A("v_and_b32 v%d, %s, v%d" % (TMP + 5, s(pT + 2), TMP + 5)); A("v_cmp_ne_u32 vcc, 0, v%d" % (TMP + 5))
    A("v_mul_u32_u24 v%d, %d, v%d" % (TMP + 4, ROW, TMP + 4)); A("v_add_u32 v%d, v%d, v%d" % (TMP + 4, TMP + 4, vG16)); A("v_mov_b32 v%d, 0x40000000" % (TMP + 6))
    A("v_cndmask_b32 v%d, v%d, v%d, vcc" % (TMP + 4, TMP + 6, TMP + 4))
    A("buffer_store_dwordx2 %s, v%d, %s, %s offen %s" % (v(TMP + 2, 2), TMP + 4, s(pWS, 4), s(sPOS), st))
    if hook: hook(A)
    A("s_mov_b32 %s, %s" % (s(pS), s(sSET)))
    top = A.newlab("r4_top"); m0 = A.mark(); A.label(top)
    A("s_add_u32 %s, %s, 1" % (s(pT + 4), s(pS)))
    A("s_and_b32 %s, %s, 3" % (s(pT + 5), s(pS))); A("s_lshl_b32 %s, %s, 2" % (s(pT + 5), s(pT + 5))); A("s_add_u32 %s, %s, 0x%x" % (s(pT + 5), s(pT + 5), F_R3))
    wait_flags(A, vFl, s(pT + 5), s(pT + 4), fail, TMP, pend_sc=st)
    trace(A, 0)
    A("s_mul_i32 %s, %s, %d" % (s(pT), s(pS), 32 * ROW)); A("s_add_u32 %s, %s, 0x%x" % (s(pT), s(pT), TB))
    stage_rows(A, pT, VS, 0)
    A("s_waitcnt vmcnt(0)"); A("s_barrier")
    trace(A, 1)
    small_gemm(A, WREG, ACC, BF, vB0, 0, 1)
    A("s_nop 7")
    regs = [56 + i for i in range(8)]
    for r in regs: rb16(A, r)
    gelu(A, regs, TMP)
    for tt in range(2):
        x = 56 + 4 * tt
        A("v_cvt_pk_bf16_f32 v%d, v%d, v%d" % (TMP + 2 * tt, x, x + 1)); A("v_cvt_pk_bf16_f32 v%d, v%d, v%d" % (TMP + 2 * tt + 1, x + 2, x + 3))
        A("s_lshl_b32 %s, %s, 5" % (s(pT), s(pS))); A("s_add_i32 %s, %s, %s" % (s(pT), s(pT), s(sDL))); A("s_add_i32 %s, %s, %d" % (s(pT), s(pT), 16 * tt))
        A("v_add_u32 v%d, %s, v%d" % (TMP + 4, s(pT), vC))
        A("v_cmp_gt_u32 vcc, 2048, v%d" % (TMP + 4))
        A("v_mul_u32_u24 v%d, %d, v%d" % (TMP + 4, ROW, TMP + 4)); A("v_add_u32 v%d, v%d, v%d" % (TMP + 4, TMP + 4, vG16)); A("v_mov_b32 v%d, 0x40000000" % (TMP + 5))
        A("v_cndmask_b32 v%d, v%d, v%d, vcc" % (TMP + 4, TMP + 5, TMP + 4))
        A("buffer_store_dwordx2 %s, v%d, %s, %s offen %s" % (v(TMP + 2 * tt, 2), TMP + 4, s(pWS, 4), s(sPOS), st))
    A("s_add_u32 %s, %s, 1" % (s(pPEND), s(pS))); A("s_add_u32 %s, %s, %d" % (s(pS), s(pS), nsets))
    A("s_cmp_lt_u32 %s, %d" % (s(pS), nseg)); A("s_cbranch_scc1 %s" % top)
    m1 = A.mark()
    set_flag(A, s(pFOFF), s(pPEND), TMP + 8, sc=st)
    return (m0, m1)

def emit_r5(A, fail, nseg=64, st_in="sc1", nsets=2, hook=None):
    A.c("=== R5")
    sSET = 47
    A("s_lshl_b32 %s, %s, 2" % (s(pFOFF), s(pID))); A("s_add_u32 %s, %s, 0x%x" % (s(pFOFF), s(pFOFF), F_R5))
    A("s_cmp_ge_u32 %s, 9" % s(pID)); A("s_cselect_b32 %s, 1, 0" % s(sSET)); A("s_mul_i32 %s, %s, 9" % (s(pT), s(sSET))); A("s_sub_u32 %s, %s, %s" % (s(pID), s(pID), s(pT)))
    WREG = lambda i, ks: ('a', 4 * ks)
    vFl, vB0, vC, vRowG, VS, TMP = 1, 2, 4, 5, 6, 16
    BF = [[40, 44], [48, 52]]; ACC = lambda i, tt: 56 + 4 * tt; HN = 64
    load_srd(A, pW, "w2")
    A("s_lshl_b32 %s, %s, 7" % (s(pT), s(pID))); A("s_lshl_b32 %s, %s, 5" % (s(pT + 1), s(pWV)))
    load_w576(A, pW, pT, 1152, 128, 1, WREG, s(pT + 1), TMP)
    stage_consts(A, VS, vB0, TMP)
    A("v_and_b32 v%d, 63, v0" % TMP); A("v_min_u32 v%d, 17, v%d" % (vFl, TMP))
    sOWN, vTgt = 48, 15
    A("v_cmp_le_u32 vcc, 9, v%d" % vFl); A("s_cmp_eq_u32 %s, 1" % s(sSET)); A("s_cselect_b64 %s, vcc, 0" % s(sOWN, 2))
    A("s_not_b64 vcc, vcc"); A("s_cmp_eq_u32 %s, 0" % s(sSET)); A("s_cselect_b64 %s, vcc, %s" % (s(sOWN, 2), s(sOWN, 2)))
    A("v_lshlrev_b32 v%d, 2, v%d" % (vFl, vFl))
    sTl, sPOS = 44, 46
    A("s_lshl_b32 %s, %s, 2" % (s(sTl), s(pID))); A("s_add_u32 %s, %s, %s" % (s(sTl), s(sTl), s(pWV)))
    A("s_lshr_b32 %s, %s, 1" % (s(sPOS), s(sTl))); A("s_lshl_b32 %s, %s, 6" % (s(sPOS), s(sPOS)))
    A("s_and_b32 %s, %s, 1" % (s(pT), s(sTl))); A("s_lshl_b32 %s, %s, 3" % (s(pT), s(pT))); A("s_add_u32 %s, %s, %s" % (s(sPOS), s(sPOS), s(pT)))
    A("v_and_b32 v%d, 15, v%d" % (vC, TMP)); A("v_lshrrev_b32 v%d, 4, v%d" % (TMP + 1, TMP))
    A("v_mul_u32_u24 v%d, %d, v%d" % (vRowG, ROW, vC)); A("v_lshl_add_u32 v%d, v%d, 4, v%d" % (vRowG, TMP + 1, vRowG))
    L_ST = 36864
    if hook: hook(A)
    A("s_mov_b32 %s, %s" % (s(pS), s(sSET)))
    top = A.newlab("r5_top"); m0 = A.mark(); A.label(top)
    A("s_add_u32 %s, %s, 1" % (s(pT + 4), s(pS))); A("s_add_u32 %s, %s, 2" % (s(pT + 5), s(pS)))
    A("s_cmp_eq_u32 %s, 63" % s(pS)); A("s_cselect_b32 %s, %s, %s" % (s(pT + 5), s(pS), s(pT + 5)))
    A("v_mov_b32 v%d, %s" % (vTgt, s(pT + 4))); A("v_mov_b32 v%d, %s" % (TMP + 3, s(pT + 5)))
    A("v_cndmask_b32 v%d, v%d, v%d, %s" % (vTgt, TMP + 3, vTgt, s(sOWN, 2)))
    A("s_mov_b32 %s, 0x%x" % (s(pT + 5), F_R4))
    wait_flags(A, vFl, s(pT + 5), "v%d" % vTgt, fail, TMP, sc=st_in, pend_sc="sc1")
    trace(A, 0)
    A("s_mul_i32 %s, %s, %d" % (s(pT + 6), s(pS), 32 * ROW))
    A("s_add_u32 %s, %s, 0x%x" % (s(pT), s(pT + 6), GSB))
    stage_rows(A, pT, VS, 0, sc=st_in)
    A("s_add_u32 %s, %s, %s" % (s(pT + 6), s(pT + 6), s(sPOS)))
    for tt in range(2):
        A("s_add_u32 %s, %s, 0x%x" % (s(pT), s(pT + 6), HNB + tt * 16 * ROW))
        A("buffer_load_dwordx2 %s, v%d, %s, %s offen sc1" % (v(HN + 2 * tt, 2), vRowG, s(pWS, 4), s(pT)))
    A("s_waitcnt vmcnt(0)"); A("s_barrier")
    trace(A, 1)
    small_gemm(A, WREG, ACC, BF, vB0, 0, 1)
    A("s_nop 7")
    regs = [56 + i for i in range(8)]
    for r in regs: rb16(A, r)
    for tt in range(2): unpack4(A, HN + 2 * tt, TMP + 4 * tt)
    for i, r in enumerate(regs): A("v_add_f32 v%d, v%d, v%d" % (r, r, TMP + i))
    for r in regs: rb16(A, r)
    for tt in range(2):
        x = 56 + 4 * tt
        A("v_cvt_pk_bf16_f32 v%d, v%d, v%d" % (TMP + 2 * tt, x, x + 1)); A("v_cvt_pk_bf16_f32 v%d, v%d, v%d" % (TMP + 2 * tt + 1, x + 2, x + 3))
        A("s_add_u32 %s, %s, 0x%x" % (s(pT), s(pT + 6), X1B + tt * 16 * ROW))
        A("buffer_store_dwordx2 %s, v%d, %s, %s offen sc1" % (v(TMP + 2 * tt, 2), vRowG, s(pWS, 4), s(pT)))
    for tt in range(2):
        x = 56 + 4 * tt; a_, b_ = TMP + 8 + 2 * tt, TMP + 9 + 2 * tt
        A("v_add_f32 v%d, v%d, v%d" % (a_, x, x + 1)); A("v_mul_f32 v%d, v%d, v%d" % (b_, x, x))
        A("v_add_f32 v%d, v%d, v%d" % (a_, a_, x + 2)); A("v_fma_f32 v%d, v%d, v%d, v%d" % (b_, x + 1, x + 1, b_))
        A("v_add_f32 v%d, v%d, v%d" % (a_, a_, x + 3)); A("v_fma_f32 v%d, v%d, v%d, v%d" % (b_, x + 2, x + 2, b_))
        A("v_fma_f32 v%d, v%d, v%d, v%d" % (b_, x + 3, x + 3, b_))
    for sw in ("v_permlane16_swap_b32", "v_permlane32_swap_b32"):
        for k in range(4): A("v_mov_b32 v%d, v%d" % (TMP + 12 + k, TMP + 8 + k))
        A("s_nop 0")
        for k in range(4): A("%s v%d, v%d" % (sw, TMP + 8 + k, TMP + 12 + k))
        for k in range(4): A("v_add_f32 v%d, v%d, v%d" % (TMP + 8 + k, TMP + 8 + k, TMP + 12 + k))
    A("s_lshl_b32 %s, %s, 8" % (s(pT), s(pWV))); A("v_lshl_add_u32 v%d, v%d, 3, %s" % (TMP, vC, s(pT)))
    A("s_mov_b64 exec, 0xffff")
    A("ds_write_b64 v%d, %s offset:%d" % (TMP, v(TMP + 8, 2), L_ST)); A("ds_write_b64 v%d, %s offset:%d" % (TMP, v(TMP + 10, 2), L_ST + 128))
    A("s_mov_b64 exec, -1")
    A("s_waitcnt lgkmcnt(0)"); A("s_barrier")
    sk = A.newlab("r5_st")
    A("s_cmp_eq_u32 %s, 0" % s(pWV)); A("s_cbranch_scc0 %s" % sk)
    A("v_and_b32 v%d, 31, v0" % TMP); A("v_lshlrev_b32 v%d, 3, v%d" % (TMP, TMP))
    for w_ in range(4): A("ds_read_b64 %s, v%d offset:%d" % (v(TMP + 2 + 2 * w_, 2), TMP, L_ST + 256 * w_))
    A("s_waitcnt lgkmcnt(0)")
    A("v_add_f32 v%d, v%d, v%d" % (TMP + 2, TMP + 2, TMP + 4)); A("v_add_f32 v%d, v%d, v%d" % (TMP + 3, TMP + 3, TMP + 5))
    A("v_add_f32 v%d, v%d, v%d" % (TMP + 6, TMP + 6, TMP + 8)); A("v_add_f32 v%d, v%d, v%d" % (TMP + 7, TMP + 7, TMP + 9))
    A("v_add_f32 v%d, v%d, v%d" % (TMP + 2, TMP + 2, TMP + 6)); A("v_add_f32 v%d, v%d, v%d" % (TMP + 3, TMP + 3, TMP + 7))
    A("s_mul_i32 %s, %s, 9" % (s(pT), s(pS))); A("s_add_u32 %s, %s, %s" % (s(pT), s(pT), s(pID))); A("s_lshl_b32 %s, %s, 8" % (s(pT), s(pT))); A("s_add_u32 %s, %s, 0x%x" % (s(pT), s(pT), STB))
    A("s_mov_b32 exec_hi, 0")
    A("buffer_store_dwordx2 %s, v%d, %s, %s offen sc1" % (v(TMP + 2, 2), TMP, s(pWS, 4), s(pT)))
    A("s_mov_b64 exec, -1")
    A.label(sk)
    A("s_add_u32 %s, %s, 1" % (s(pPEND), s(pS))); A("s_add_u32 %s, %s, %d" % (s(pS), s(pS), nsets))
    A("s_cmp_lt_u32 %s, %d" % (s(pS), nseg)); A("s_cbranch_scc1 %s" % top)
    m1 = A.mark()
    set_flag(A, s(pFOFF), s(pPEND), TMP + 12)
    return (m0, m1)

def emit_r67(A, fail, nseg=64, nsets=2, hook=None):
    A.c("=== R67")
    TRV[0] = 210
    sN, sSET = 44, 45
    A("s_cmp_ge_u32 %s, 36" % s(pID)); A("s_cselect_b32 %s, 1, 0" % s(sSET))
    A("s_mul_i32 %s, %s, 36" % (s(pT), s(sSET))); A("s_sub_u32 %s, %s, %s" % (s(sN), s(pID), s(pT)))
    W3 = lambda i, ks: ('a', (i * 18 + ks) * 4)
    def W4(i, ks):
        k = i * 4 + ks
        return ('a', 144 + 4 * k) if k < 28 else ('v', 224 + 4 * (k - 28))
    vFl, vB0, vTok, vSt, vSt8, vL16, VS, TMP = 1, 2, 4, 5, 15, 16, 6, 20
    vTgt = 17
    CS, ST = 48, 56
    BF = [[60, 64], [68, 72]]
    ACC3 = lambda i, tt: 76 + 4 * (i * 2 + tt)
    OB = lambda tt, ks: 96 + 4 * (tt * 4 + ks)
    ACC4 = lambda i, tt: 128 + 4 * (i * 2 + tt)
    A("v_and_b32 v%d, 63, v0" % TMP); A("v_lshlrev_b32 v%d, 4, v%d" % (vL16, TMP))
    load_srd(A, pW, "w3")
    A("s_lshl_b32 %s, %s, 8" % (s(pT), s(sN))); A("s_lshl_b32 %s, %s, 6" % (s(pT + 1), s(pWV)))
    load_w576(A, pW, pT, 9216, 256, 2, W3, s(pT + 1), TMP)
    for i in range(4): A("v_mov_b32 v%d, 0x3f803f80" % (TMP + 8 + i))
    A("s_nop 1")
    for i in range(2):
        for ks in range(18):
            A("v_mfma_f32_16x16x32_bf16 %s, %s, %s, %s" % (v(CS + 4 * i, 4), R(W3(i, ks), 4), v(TMP + 8, 4), "0" if ks == 0 else v(CS + 4 * i, 4)))
    load_srd(A, pW, "w4")
    A("s_mul_i32 %s, %s, %d" % (s(pT), s(sN), 128 * 1152))
    dma_linear(A, pW, pT, 147456, 0, vL16)
    A("s_waitcnt vmcnt(0)"); A("s_barrier")
    A("s_mul_i32 %s, %s, 288" % (s(pT + 1), s(pWV)))
    load_k128_weights(A, TMP, W4, 1152, 0, s(pT + 1))
    A("s_barrier")
    stage_consts(A, VS, vB0, TMP)
    A("v_and_b32 v%d, 63, v0" % TMP)
    A("v_min_u32 v%d, 40, v%d" % (TMP + 1, TMP)); A("v_subrev_u32 v%d, 9, v%d" % (TMP + 2, TMP + 1)); A("v_lshlrev_b32 v%d, 2, v%d" % (TMP + 2, TMP + 2)); A("v_add_u32 v%d, 0x%x, v%d" % (TMP + 2, F_R8, TMP + 2))
    A("s_mul_i32 %s, %s, 36" % (s(pT), s(sSET))); A("s_add_u32 %s, %s, 0x%x" % (s(pT), s(pT), F_R5))
    A("v_lshl_add_u32 v%d, v%d, 2, %s" % (vFl, TMP + 1, s(pT))); A("v_cmp_gt_u32 %s, 9, v%d" % (s(60, 2), TMP + 1)); A("s_nop 1")
    A("v_cndmask_b32 v%d, v%d, v%d, %s" % (vFl, TMP + 2, vFl, s(60, 2)))
    A("v_and_b32 v%d, 15, v%d" % (TMP + 1, TMP)); A("v_lshrrev_b32 v%d, 4, v%d" % (TMP + 2, TMP))
    vTok9, vBP, vBP9, sLO8 = 200, 201, 202, 62
    pstore_consts(A, vTok, vTok9, vBP, vBP9, 36 * PROW, 204)
    A("s_mov_b32 %s, 0x00ff00ff" % s(sLO8)); A("s_mov_b32 %s, 0x00ff00ff" % s(sLO8 + 1))
    A("v_lshlrev_b32 v%d, 8, v%d" % (vSt, TMP + 2)); A("v_lshl_add_u32 v%d, v%d, 3, v%d" % (vSt, TMP + 1, vSt))
    A("v_lshlrev_b32 v%d, 3, v%d" % (vSt8, TMP + 1)); A("v_add_u32 v%d, 2048, v%d" % (vSt8, vSt8)); A("v_mov_b32 v%d, 0x40000000" % (TMP + 3))
    A("v_cmp_eq_u32 vcc, 0, v%d" % (TMP + 2)); A("s_nop 1"); A("v_cndmask_b32 v%d, v%d, v%d, vcc" % (vSt8, TMP + 3, vSt8))
    sOUT = 46
    A("s_mul_i32 %s, %s, 384" % (s(pT), s(pWV)))
    A("s_mul_i32 %s, %s, %d" % (s(sOUT), s(sN), PROW)); A("s_add_u32 %s, %s, %s" % (s(sOUT), s(sOUT), s(pT))); A("s_add_u32 %s, %s, 0x%x" % (s(sOUT), s(sOUT), P67))
    A("s_lshl_b32 %s, %s, 2" % (s(pFOFF), s(pID))); A("s_add_u32 %s, %s, 0x%x" % (s(pFOFF), s(pFOFF), F_R67))
    L_O, L_V = 0, 8192
    SR = 212
    vBc, vPA = 203, 204
    vBc, vPA, vPR = 204, 206, 207
    sBUF, sPRE, sNX = 47, 52, 53
    if hook: hook(A)
    A("s_mov_b32 %s, %s" % (s(pS), s(sSET))); A("s_mov_b32 %s, 16384" % s(sBUF)); A("s_mov_b32 %s, 0" % s(sPRE))
    def poll_regs(seg):
        A("s_add_u32 %s, %s, 1" % (s(pT + 4), s(seg)))
        A("s_max_u32 %s, %s, %d" % (s(pT + 5), s(seg), RING - 1)); A("s_sub_u32 %s, %s, %d" % (s(pT + 5), s(pT + 5), RING - 1))
        A("v_mov_b32 v%d, %s" % (vTgt, s(pT + 5))); A("v_mov_b32 v%d, %s" % (vPR, s(pT + 4)))
        A("v_cndmask_b32 v%d, v%d, v%d, %s" % (vTgt, vTgt, vPR, s(60, 2)))
        A("s_and_b32 %s, %s, 7" % (s(pT + 5), s(seg))); A("s_lshl_b32 %s, %s, 7" % (s(pT + 5), s(pT + 5)))
        A("v_mov_b32 v%d, %s" % (vPR, s(pT + 5))); A("v_cndmask_b32 v%d, v%d, 0, %s" % (vPR, vPR, s(60, 2)))
        A("v_add_u32 v%d, v%d, v%d" % (vPA, vFl, vPR))
    def fetch(seg, bufreg):
        A("s_mul_i32 %s, %s, %d" % (s(pT), s(seg), 32 * ROW)); A("s_add_u32 %s, %s, 0x%x" % (s(pT), s(pT), X1B))
        A("s_lshl_b32 %s, %s, 10" % (s(pT + 9), s(pWV))); A("s_add_u32 %s, %s, %s" % (s(pT + 9), s(pT + 9), s(bufreg)))
        for i in range(9):
            A("s_add_u32 m0, %s, %d" % (s(pT + 9), i * 4096)); A("s_nop 0")
            A("buffer_load_dwordx4 v%d, %s, %s offen sc1 lds" % (VS + i, s(pWS, 4), s(pT)))
        A("s_mul_i32 %s, %s, %d" % (s(pT), s(seg), 9 * 256)); A("s_add_u32 %s, %s, 0x%x" % (s(pT), s(pT), STB))
        for tt in range(2):
            A("buffer_load_dwordx2 %s, v%d, %s, %s offen offset:%d sc1" % (v(SR + 6 * tt, 2), vSt, s(pWS, 4), s(pT), 128 * tt))
            A("buffer_load_dwordx2 %s, v%d, %s, %s offen offset:%d sc1" % (v(SR + 6 * tt + 2, 2), vSt, s(pWS, 4), s(pT), 1024 + 128 * tt))
            A("buffer_load_dwordx2 %s, v%d, %s, %s offen offset:%d sc1" % (v(SR + 6 * tt + 4, 2), vSt8, s(pWS, 4), s(pT), 128 * tt))
    NST = 10
    top = A.newlab("r67_top"); pre = A.newlab("r67_pre"); go = A.newlab("r67_go")
    m0 = A.mark(); A.label(top)
    trace(A, 4)
    A("s_cmp_eq_u32 %s, 1" % s(sPRE)); A("s_cbranch_scc1 %s" % pre)
    poll_regs(pS)
    wait_flags(A, vPA, "0", "v%d" % vTgt, fail, TMP, pend_sc="sc1")
    trace(A, 0)
    fetch(pS, sBUF)
    A("s_waitcnt vmcnt(0)")
    A("s_branch %s" % go)
    A.label(pre)
    A("s_waitcnt vmcnt(%d)" % NST)
    A.label(go)
    A("s_barrier")
    trace(A, 1)
    A("s_add_u32 %s, %s, %d" % (s(sNX), s(pS), nsets))
    poll_regs(sNX)
    lk = A.newlab("r67_lk")
    A("s_cmp_eq_u32 %s, 0" % s(pWV)); A("s_cbranch_scc0 %s" % lk)
    A("buffer_load_dword v%d, v%d, %s, 0 offen sc1" % (vPR, vPA, s(pWS, 4)))
    A.label(lk)
    A("v_add_u32 v%d, %s, v%d" % (vBc, s(sBUF), vB0)); A("v_add_u32 v%d, %s, v%d" % (vBc + 1, s(sBUF), vB0 + 1))
    SA = Asm(); _A = A; A = SA
    for tt in range(2):
        b = SR + 6 * tt
        for k in range(2):
            A("v_add_f32 v%d, v%d, v%d" % (TMP + 6 * tt + k, b + k, b + 2 + k)); A("v_add_f32 v%d, v%d, v%d" % (TMP + 6 * tt + k, TMP + 6 * tt + k, b + 4 + k))
    st4 = [TMP, TMP + 1, TMP + 6, TMP + 7]
    for sw in ("v_permlane16_swap_b32", "v_permlane32_swap_b32"):
        for k in range(4): A("v_mov_b32 v%d, v%d" % (TMP + 12 + k, st4[k]))
        A("s_nop 0")
        for k in range(4): A("%s v%d, v%d" % (sw, st4[k], TMP + 12 + k))
        for k in range(4): A("v_add_f32 v%d, v%d, v%d" % (st4[k], st4[k], TMP + 12 + k))
    for tt in range(2):
        vsum, vsq = TMP + 6 * tt, TMP + 6 * tt + 1
        A("v_mul_f32 v%d, 0x%x, v%d" % (vsum, f2u(1.0 / 576), vsum)); A("v_mul_f32 v%d, 0x%x, v%d" % (vsq, f2u(1.0 / 576), vsq))
        A("v_fma_f32 v%d, -v%d, v%d, v%d" % (vsq, vsum, vsum, vsq)); A("v_max_f32 v%d, 0, v%d" % (vsq, vsq))
        rb16(A, vsum); rb16(A, vsq)
        A("v_add_f32 v%d, 0x%x, v%d" % (vsq, f2u(1e-5), vsq)); rb16(A, vsq)
        A("v_sqrt_f32 v%d, v%d" % (vsq, vsq)); A("s_nop 0"); rb16(A, vsq)
        A("v_rcp_f32 v%d, v%d" % (ST + 2 * tt, vsq)); A("v_mov_b32 v%d, v%d" % (ST + 2 * tt + 1, vsum))
    A = _A
    small_gemm(A, W3, ACC3, BF, vBc, 0, 2, fillers=list(SA.lines))
    trace(A, 5)
    A("s_nop 7")
    for tt in range(2):
        regs = []
        for i in range(2):
            for r in range(4):
                x = ACC3(i, tt) + r; regs.append(x)
                A("v_fma_f32 v%d, -v%d, v%d, v%d" % (x, ST + 2 * tt + 1, CS + 4 * i + r, x))
        for x in regs: A("v_mul_f32 v%d, v%d, v%d" % (x, x, ST + 2 * tt))
        for x in regs: rb16(A, x)
        gelu(A, regs, TMP)
        d = 92
        for q in range(4): A("v_cvt_pk_bf16_f32 v%d, v%d, v%d" % (d + q, regs[2 * q], regs[2 * q + 1]))
        A("s_lshl_b32 %s, %s, 10" % (s(pT), s(pWV))); A("v_add_u32 v%d, %s, v%d" % (TMP + 10, s(pT), vL16))
        A("ds_write_b128 v%d, %s offset:%d" % (TMP + 10, v(d, 4), L_O + tt * 4096))
        A("s_nop 1")
    A("s_waitcnt vmcnt(0)")
    vw = A.newlab("r67_vw")
    A("s_cmp_eq_u32 %s, 0" % s(pWV)); A("s_cbranch_scc0 %s" % vw)
    A("v_cmp_gt_u32 vcc, v%d, v%d" % (vTgt, vPR))
    A("s_cmp_lt_u32 %s, %d" % (s(sNX), nseg)); A("s_cselect_b32 %s, 1, 0" % s(pT + 6))
    A("s_cmp_eq_u64 vcc, 0"); A("s_cselect_b32 %s, %s, 0" % (s(pT + 6), s(pT + 6)))
    A("v_mov_b32 v%d, %s" % (vPR, s(pT + 6))); A("v_mov_b32 v%d, %d" % (vPA, L_V))
    A("ds_write_b32 v%d, v%d" % (vPA, vPR))
    A.label(vw)
    A("s_waitcnt lgkmcnt(0)"); A("s_barrier")
    A("v_mov_b32 v%d, %d" % (vPA, L_V)); A("ds_read_b32 v%d, v%d" % (vPR, vPA))
    for ks in range(4):
        for tt in range(2): A("ds_read_b128 %s, v%d offset:%d" % (v(OB(tt, ks), 4), vL16, L_O + tt * 4096 + ks * 1024))
    pb = A.newlab("r67_pb")
    A("s_cmp_eq_u32 %s, 0" % s(pPEND)); A("s_cbranch_scc1 %s" % pb)
    A("s_cmp_eq_u32 %s, 0" % s(pWV)); pb2 = A.newlab("r67_pb2"); A("s_cbranch_scc0 %s" % pb2)
    A("v_mov_b32 v%d, %s" % (TMP, s(pPEND))); A("buffer_store_dword v%d, off, %s, %s sc1" % (TMP, s(pWS, 4), s(pFOFF)))
    A.label(pb2); A("s_mov_b32 %s, 0" % s(pPEND))
    A.label(pb)
    A("s_waitcnt lgkmcnt(8)"); A("v_readfirstlane_b32 %s, v%d" % (s(sPRE), vPR))
    nf = A.newlab("r67_nf")
    A("s_sub_u32 %s, %d, %s" % (s(sBUF), 16384 + 53248, s(sBUF)))
    A("s_cmp_eq_u32 %s, 1" % s(sPRE)); A("s_cbranch_scc0 %s" % nf)
    A.c("lint-skip-begin")
    fetch(sNX, sBUF)
    A.c("lint-skip-end")
    A.label(nf)
    k128_gemm(A, W4, OB, ACC4, lambda ks: A("s_waitcnt lgkmcnt(%d)" % (6 - 2 * ks)))
    trace(A, 2)
    A("s_nop 7")
    A("s_and_b32 %s, %s, %d" % (s(pT), s(pS), RING - 1)); A("s_mul_i32 %s, %s, %d" % (s(pT), s(pT), 32 * 36 * PROW)); A("s_add_u32 %s, %s, %s" % (s(pT), s(pT), s(sOUT)))
    pstore(A, ACC4, vTok, vTok9, vBP, vBP9, pT, TMP, 36 * PROW, sLO8)
    trace(A, 6)
    A("s_add_u32 %s, %s, 1" % (s(pPEND), s(pS)))
    A("s_mov_b32 %s, %s" % (s(pS), s(sNX)))
    A("s_cmp_lt_u32 %s, %d" % (s(pS), nseg)); A("s_cbranch_scc1 %s" % top)
    m1 = A.mark()
    set_flag(A, s(pFOFF), s(pPEND), TMP)
    return (m0, m1)

def emit_r8(A, fail, nseg=64, nsets=2):
    A.c("=== R8")
    TRV[0] = 250
    vM, vX, vX2, vSm, vSx, vNm, vNx, vFl = 1, 2, 3, 4, 5, 6, 7, 8
    SEL, DM, DX, TMP = 12, 16, 20, 32
    HQ = [24, 152]; XQ = [28, 156]; LD = [48, 96]
    OUT = 48
    load_srd(A, OUT, "out")
    emit_sel(A, SEL, TMP)
    reduce_rows_consts(A, vM, vX, vX2, 36, TMP)
    rowpos_consts(A, vSm, vSx, vNm, vNx, TMP)
    A("v_and_b32 v%d, 63, v0" % TMP); A("v_min_u32 v%d, 35, v%d" % (vFl, TMP)); A("v_lshlrev_b32 v%d, 2, v%d" % (vFl, vFl))
    sIN, sROW, sFL = 44, 45, 46
    A("s_lshl_b32 %s, %s, 2" % (s(pFOFF), s(pID))); A("s_add_u32 %s, %s, 0x%x" % (s(pFOFF), s(pFOFF), F_R8))
    A("s_mov_b32 %s, 0" % s(pS))
    top = A.newlab("r8_top"); m0 = A.mark(); A.label(top)
    A("s_lshl_b32 %s, %s, 5" % (s(sROW), s(pS))); A("s_lshl_b32 %s, %s, 1" % (s(pT), s(pID))); A("s_add_u32 %s, %s, %s" % (s(sROW), s(sROW), s(pT))); A("s_mul_i32 %s, %s, %d" % (s(sROW), s(sROW), ROW))
    if nsets == 2:
        A("s_and_b32 %s, %s, 1" % (s(sFL), s(pS))); A("s_mul_i32 %s, %s, 144" % (s(sFL), s(sFL))); A("s_add_u32 %s, %s, 0x%x" % (s(sFL), s(sFL), F_R67))
    else: A("s_mov_b32 %s, 0x%x" % (s(sFL), F_R67))
    A("s_add_u32 %s, %s, 1" % (s(pT + 4), s(pS)))
    wait_flags(A, vFl, s(sFL), s(pT + 4), fail, TMP, pend_sc="sc1")
    trace(A, 0)
    A("s_and_b32 %s, %s, %d" % (s(sIN), s(pS), RING - 1)); A("s_mul_i32 %s, %s, %d" % (s(sIN), s(sIN), 32 * 36 * ROW)); A("s_mul_i32 %s, %s, %d" % (s(pT), s(pID), 2 * 36 * ROW))
    A("s_add_u32 %s, %s, %s" % (s(sIN), s(sIN), s(pT))); A("s_mul_i32 %s, %s, 288" % (s(pT), s(pWV))); A("s_add_u32 %s, %s, %s" % (s(sIN), s(sIN), s(pT)))
    A("s_add_u32 %s, %s, 0x%x" % (s(sIN), s(sIN), P67))
    for k in range(2):
        A("s_add_u32 %s, %s, 0x%x" % (s(pT), s(sROW), HB + k * ROW)); A("s_add_u32 %s, %s, 0x%x" % (s(pT + 1), s(sROW), X1B + k * ROW))
        A("buffer_load_dwordx2 %s, v%d, %s, %s offen sc1" % (v(HQ[k], 2), vSm, s(pWS, 4), s(pT))); A("buffer_load_dwordx2 %s, v%d, %s, %s offen sc1" % (v(HQ[k] + 2, 2), vSx, s(pWS, 4), s(pT)))
        A("buffer_load_dwordx2 %s, v%d, %s, %s offen sc1" % (v(XQ[k], 2), vSm, s(pWS, 4), s(pT + 1))); A("buffer_load_dwordx2 %s, v%d, %s, %s offen sc1" % (v(XQ[k] + 2, 2), vSx, s(pWS, 4), s(pT + 1)))
        if k == 1: A("s_add_u32 %s, %s, %d" % (s(sIN), s(sIN), 36 * ROW))
        reduce_issue(A, sIN, 36, vM, vX, vX2, LD[k])
    for k in range(2):
        reduce_consume(A, 36, LD[k], SEL, DM, DX, younger=(15 if k == 0 else 2))
        vals = [DM + r for r in range(4)] + [DX + r for r in range(4)]
        for r in vals: rb16(A, r)
        unpack4(A, XQ[k], TMP); unpack4(A, XQ[k] + 2, TMP + 4)
        for i, r in enumerate(vals): A("v_add_f32 v%d, v%d, v%d" % (r, r, TMP + i))
        for r in vals: rb16(A, r)
        unpack4(A, HQ[k], TMP); unpack4(A, HQ[k] + 2, TMP + 4)
        for i, r in enumerate(vals): A("v_add_f32 v%d, v%d, v%d" % (r, r, TMP + i))
        A("v_cvt_pk_bf16_f32 v%d, v%d, v%d" % (TMP + 8, DM, DM + 1)); A("v_cvt_pk_bf16_f32 v%d, v%d, v%d" % (TMP + 9, DM + 2, DM + 3))
        A("v_cvt_pk_bf16_f32 v%d, v%d, v%d" % (TMP + 10, DX, DX + 1)); A("v_cvt_pk_bf16_f32 v%d, v%d, v%d" % (TMP + 11, DX + 2, DX + 3))
        A("s_add_u32 %s, %s, %d" % (s(pT), s(sROW), k * ROW))
        A("buffer_store_dwordx2 %s, v%d, %s, %s offen" % (v(TMP + 8, 2), vNm, s(OUT, 4), s(pT)))
        A("buffer_store_dwordx2 %s, v%d, %s, %s offen" % (v(TMP + 10, 2), vNx, s(OUT, 4), s(pT)))
    trace(A, 1)
    A("s_add_u32 %s, %s, 1" % (s(pS), s(pS))); A("s_mov_b32 %s, %s" % (s(pPEND), s(pS)))
    A("s_cmp_lt_u32 %s, %d" % (s(pS), nseg)); A("s_cbranch_scc1 %s" % top)
    m1 = A.mark()
    A("s_waitcnt vmcnt(0)")
    trace(A, 3, 0)
    return (m0, m1)

def rw_consts(A, nprod, vM, vX, SEL, SEL2, vS, vN, tmp):
    emit_sel(A, SEL, tmp)
    A("s_nop 1")
    for q in range(4): A("v_mov_b32_dpp v%d, v%d row_shr:8 row_mask:0xf bank_mask:0xf bound_ctrl:1" % (SEL2 + q, SEL + q))
    A("v_and_b32 v%d, 63, v0" % tmp); A("v_lshrrev_b32 v%d, 4, v%d" % (tmp + 1, tmp)); A("v_and_b32 v%d, 15, v%d" % (tmp + 2, tmp))
    A("v_mul_u32_u24 v%d, %d, v%d" % (vM, PROW, tmp + 1)); A("v_lshl_add_u32 v%d, v%d, 4, v%d" % (vM, tmp + 2, vM))
    A("v_lshrrev_b32 v%d, 3, v%d" % (tmp + 3, tmp + 2)); A("v_lshl_add_u32 v%d, v%d, 2, v%d" % (vX, tmp + 3, tmp + 1)); A("v_mul_u32_u24 v%d, %d, v%d" % (vX, PROW, vX))
    A("v_bfe_u32 v%d, v%d, 1, 2" % (tmp + 4, tmp + 2)); A("v_mul_u32_u24 v%d, 384, v%d" % (tmp + 4, tmp + 4)); A("v_add_u32 v%d, v%d, v%d" % (vX, vX, tmp + 4))
    A("v_and_b32 v%d, 1, v%d" % (tmp + 4, tmp + 2)); A("v_lshl_add_u32 v%d, v%d, 4, v%d" % (vX, tmp + 4, vX)); A("v_add_u32 v%d, 256, v%d" % (vX, vX))
    for k in range(3):
        T_, gq = tmp + 3, tmp + 5
        A("v_and_b32 v%d, 1, v%d" % (tmp + 4, tmp + 1))
        if k < 2:
            A("v_lshrrev_b32 v%d, 1, v%d" % (T_, tmp + 1)); A("v_add_u32 v%d, %d, v%d" % (T_, 2 * k, T_)); A("v_mul_u32_u24 v%d, 9, v%d" % (T_, T_))
            A("v_lshrrev_b32 v%d, 2, v%d" % (gq, tmp + 2)); A("v_lshl_add_u32 v%d, v%d, 1, v%d" % (T_, gq, T_)); A("v_add_u32 v%d, v%d, v%d" % (T_, T_, tmp + 4))
            A("v_and_b32 v%d, 3, v%d" % (gq, tmp + 2))
        else:
            A("v_bfe_u32 v%d, v%d, 1, 2" % (T_, tmp + 2)); A("v_mul_u32_u24 v%d, 9, v%d" % (T_, T_)); A("v_add_u32 v%d, 8, v%d" % (T_, T_))
            A("v_and_b32 v%d, 1, v%d" % (gq, tmp + 2)); A("v_lshl_add_u32 v%d, v%d, 1, v%d" % (gq, gq, tmp + 4))
        A("v_lshrrev_b32 v%d, 1, v%d" % (vS[k], T_)); A("v_lshlrev_b32 v%d, 6, v%d" % (vS[k], vS[k])); A("v_lshl_add_u32 v%d, v%d, 4, v%d" % (vS[k], gq, vS[k]))
        A("v_and_b32 v%d, 1, v%d" % (tmp + 6, T_)); A("v_lshl_add_u32 v%d, v%d, 3, v%d" % (vS[k], tmp + 6, vS[k]))
        A("v_lshlrev_b32 v%d, 5, v%d" % (vN[k], T_)); A("v_lshl_add_u32 v%d, v%d, 3, v%d" % (vN[k], gq, vN[k]))
        if k == 2:
            A("v_cmp_gt_u32 vcc, 8, v%d" % (tmp + 2)); A("v_cmp_gt_u32 %s, 2, v%d" % (s(pT + 10, 2), tmp + 1)); A("s_nop 1")
            A("s_and_b64 vcc, vcc, %s" % s(pT + 10, 2)); A("v_mov_b32 v%d, 0x40000000" % (tmp + 6)); A("s_nop 0")
            A("v_cndmask_b32 v%d, v%d, v%d, vcc" % (vS[k], tmp + 6, vS[k])); A("v_cndmask_b32 v%d, v%d, v%d, vcc" % (vN[k], tmp + 6, vN[k]))

def rw_loads(nprod):
    nm = nprod // 4; nx = (nprod + 7) // 8
    return [("m", grp, n) for grp in range(4) for n in range(nm)] + [("x", 0, n) for n in range(nx)]
def rw_stream(A, sbases, nprod, vM, vX, vX9, SEL, SEL2, D, after_token, NS=56, pre=0):
    one = rw_loads(nprod)
    loads = [(k,) + l for k in range(len(sbases)) for l in one]
    n_all = len(loads)
    q = [None] * pre
    def issue(i):
        k, kind, grp, n = loads[i]
        if kind == "m":
            A("s_add_u32 %s, %s, %d" % (s(pT + 8), s(sbases[k]), n * 4 * PROW + grp * 384)); va = vM
        else:
            A("s_add_u32 %s, %s, %d" % (s(pT + 8), s(sbases[k]), n * 8 * PROW)); va = vX if (n + 1) * 8 <= nprod else vX9
        A("buffer_load_dwordx4 %s, v%d, %s, %s offen sc1" % (a(4 * (i % NS), 4), va, s(pWS, 4), s(pT + 8)))
        q.append(i)
    nxt = 0
    while nxt < min(NS, n_all) and len(q) < 60: issue(nxt); nxt += 1
    for i in range(n_all):
        pos = q.index(i)
        A("s_waitcnt vmcnt(%d)" % min(63, len(q) - 1 - pos)); del q[:pos + 1]
        k, kind, grp, n = loads[i]
        if kind == "m":
            d = D[grp >> 1]; sel = SEL if grp % 2 == 0 else SEL2; first = (grp % 2 == 0 and n == 0)
        else:
            d = D[2]; sel = SEL; first = (n == 0)
        A("v_mfma_f32_16x16x32_bf16 %s, %s, %s, %s" % (v(d, 4), v(sel, 4), a(4 * (i % NS), 4), "0" if first else v(d, 4)))
        while nxt < n_all and len(q) < 60 and nxt < i + 1 + NS - 1: issue(nxt); nxt += 1
        if i + 1 == n_all or loads[i + 1][0] != k:
            A("s_nop 7")
            for r in range(4): A("v_add_f32_dpp v%d, v%d, v%d row_shl:8 row_mask:0xf bank_mask:0xf bound_ctrl:1" % (D[2] + r, D[2] + r, D[2] + r))
            nst = after_token(k)
            q.extend([None] * nst)

def ln_wave(A, vals, t, vmask):
    vsum, vsq = t, t + 1
    A("v_add_f32 v%d, v%d, v%d" % (vsum, vals[0], vals[1])); A("v_mul_f32 v%d, v%d, v%d" % (vsq, vals[0], vals[0]))
    A("v_fma_f32 v%d, v%d, v%d, v%d" % (vsq, vals[1], vals[1], vsq))
    for r in vals[2:]:
        A("v_add_f32 v%d, v%d, v%d" % (vsum, vsum, r)); A("v_fma_f32 v%d, v%d, v%d, v%d" % (vsq, r, r, vsq))
    A("s_nop 0")
    wave_sum2(A, vsum, vsq, t + 2)
    A("v_mul_f32 v%d, 0x%x, v%d" % (vsum, f2u(1.0 / 576), vsum)); A("v_mul_f32 v%d, 0x%x, v%d" % (vsq, f2u(1.0 / 576), vsq))
    A("v_fma_f32 v%d, -v%d, v%d, v%d" % (vsq, vsum, vsum, vsq)); A("v_max_f32 v%d, 0, v%d" % (vsq, vsq))
    rb16(A, vsum); rb16(A, vsq)
    A("v_add_f32 v%d, 0x%x, v%d" % (vsq, f2u(1e-5), vsq)); rb16(A, vsq)
    A("v_sqrt_f32 v%d, v%d" % (vsq, vsq)); A("s_nop 0"); rb16(A, vsq)
    A("v_rcp_f32 v%d, v%d" % (vsq, vsq))
    for r in vals: A("v_sub_f32 v%d, v%d, v%d" % (r, r, vsum))
    for r in vals: rb16(A, r)
    for r in vals: A("v_mul_f32 v%d, v%d, v%d" % (r, r, vsq))
    for r in vals: rb16(A, r)
    A("v_cmp_gt_u32 vcc, 0x40000000, v%d" % vmask); A("s_nop 1")
    for r in vals[8:]: A("v_cndmask_b32 v%d, 0, v%d, vcc" % (r, r))

def wave_flag(A, soff, valreg, tmpv):
    A("s_waitcnt vmcnt(0)")
    A("v_mov_b32 v%d, %s" % (tmpv, valreg))
    A("buffer_store_dword v%d, off, %s, %s sc1" % (tmpv, s(pWS, 4), soff))

def emit_r3w(A, fail, nseg=64, hook=None):
    A.c("=== R3 (wave independent)")
    TRV[0] = 250
    vM, vX, vFl = 1, 2, 3
    vS, vN = [4, 5, 6], [7, 8, 9]
    SEL, SEL2, TMP = 12, 16, 20
    D = [36, 40, 44]; XQ = 48; LD = 56
    load_srd(A, pW, "x")
    rw_consts(A, 32, vM, vX, SEL, SEL2, vS, vN, TMP)
    A("v_and_b32 v%d, 63, v0" % TMP); A("v_min_u32 v%d, 31, v%d" % (vFl, TMP)); A("v_lshlrev_b32 v%d, 2, v%d" % (vFl, vFl))
    sIN, sROW, sFL = 44, 45, 46
    A("s_and_b32 %s, %s, 1" % (s(sFL), s(pWV))); A("s_lshl_b32 %s, %s, 7" % (s(sFL), s(sFL))); A("s_add_u32 %s, %s, 0x%x" % (s(sFL), s(sFL), F_R12))
    A("s_lshl_b32 %s, %s, 2" % (s(pFOFF), s(pID))); A("s_add_u32 %s, %s, %s" % (s(pFOFF), s(pFOFF), s(pWV))); A("s_lshl_b32 %s, %s, 2" % (s(pFOFF), s(pFOFF))); A("s_add_u32 %s, %s, 0x%x" % (s(pFOFF), s(pFOFF), F_R3))
    if hook: hook(A)
    A("s_mov_b32 %s, %s" % (s(pS), s(pWV))); A("s_mov_b32 %s, 0x07060302" % s(pT + 14))
    vals = [D[k] + r for k in range(3) for r in range(4)]
    top = A.newlab("r3_top"); m0 = A.mark(); A.label(top)
    A("s_lshl_b32 %s, %s, 5" % (s(sROW), s(pS))); A("s_add_u32 %s, %s, %s" % (s(sROW), s(sROW), s(pID))); A("s_mul_i32 %s, %s, %d" % (s(sROW), s(sROW), ROW))
    for k in range(3): A("buffer_load_dwordx2 %s, v%d, %s, %s offen" % (v(XQ + 2 * k, 2), vN[k], s(pW, 4), s(sROW)))
    A("s_add_u32 %s, %s, 1" % (s(pT + 4), s(pS)))
    wait_flags(A, vFl, s(sFL), s(pT + 4), fail, TMP)
    trace(A, 0, 60)
    A("s_and_b32 %s, %s, %d" % (s(sIN), s(pS), RING - 1)); A("s_mul_i32 %s, %s, %d" % (s(sIN), s(sIN), 32 * 32 * PROW)); A("s_mul_i32 %s, %s, %d" % (s(pT), s(pID), 32 * PROW))
    A("s_add_u32 %s, %s, %s" % (s(sIN), s(sIN), s(pT))); A("s_add_u32 %s, %s, 0x%x" % (s(sIN), s(sIN), P12))
    rw_stream(A, [sIN], 32, vM, vX, None, SEL, SEL2, D, lambda k: 0)
    trace(A, 1, 60)
    A("v_cmp_gt_u32 vcc, 0x40000000, v%d" % vS[2]); A("s_nop 1")
    for r in vals[8:]: A("v_cndmask_b32 v%d, 0, v%d, vcc" % (r, r))
    for r in vals: rb16(A, r)
    for k in range(3): unpack4(A, XQ + 2 * k, TMP + 4 * k)
    for i, r in enumerate(vals): A("v_add_f32 v%d, v%d, v%d" % (r, r, TMP + i))
    for r in vals: rb16(A, r)
    def store_row(base):
        A("s_add_u32 %s, %s, 0x%x" % (s(pT + 8), s(sROW), base))
        for k in range(3):
            A("v_perm_b32 v%d, v%d, v%d, %s" % (TMP + 2 * k, D[k] + 1, D[k], s(pT + 14))); A("v_perm_b32 v%d, v%d, v%d, %s" % (TMP + 2 * k + 1, D[k] + 3, D[k] + 2, s(pT + 14)))
            A("buffer_store_dwordx2 %s, v%d, %s, %s offen sc1" % (v(TMP + 2 * k, 2), vS[k], s(pWS, 4), s(pT + 8)))
    store_row(HB)
    ln_wave(A, vals, TMP + 8, vS[2]); store_row(HNB)
    ln_wave(A, vals, TMP + 8, vS[2]); store_row(TB)
    trace(A, 2, 60)
    A("s_add_u32 %s, %s, 1" % (s(pT + 4), s(pS)))
    wave_flag(A, s(pFOFF), s(pT + 4), TMP)
    A("s_add_u32 %s, %s, 4" % (s(pS), s(pS)))
    A("s_cmp_lt_u32 %s, %d" % (s(pS), nseg)); A("s_cbranch_scc1 %s" % top)
    m1 = A.mark()
    trace(A, 3, 0)
    return (m0, m1)

def emit_r8w(A, fail, nseg=64):
    A.c("=== R8 (wave independent)")
    TRV[0] = 250
    vM, vX, vX9, vFl = 1, 2, 10, 3
    vS, vN = [4, 5, 6], [7, 8, 9]
    SEL, SEL2, TMP = 12, 16, 20
    D = [36, 40, 44]; HQ, XQ, LD = 48, 152, 56
    OUT = 48
    load_srd(A, OUT, "out")
    rw_consts(A, 36, vM, vX, SEL, SEL2, vS, vN, TMP)
    A("v_and_b32 v%d, 8, v0" % TMP); A("v_mov_b32 v%d, 0x40000000" % (TMP + 1)); A("v_cmp_eq_u32 vcc, 0, v%d" % TMP); A("s_nop 1")
    A("v_cndmask_b32 v%d, v%d, v%d, vcc" % (vX9, TMP + 1, vX))
    A("v_and_b32 v%d, 63, v0" % TMP); A("v_min_u32 v%d, 35, v%d" % (vFl, TMP)); A("v_lshlrev_b32 v%d, 2, v%d" % (vFl, vFl))
    sIN, sROW, sFL = 44, 45, 46
    A("s_and_b32 %s, %s, 1" % (s(sFL), s(pWV))); A("s_mul_i32 %s, %s, 144" % (s(sFL), s(sFL))); A("s_add_u32 %s, %s, 0x%x" % (s(sFL), s(sFL), F_R67))
    A("s_lshl_b32 %s, %s, 2" % (s(pFOFF), s(pID))); A("s_add_u32 %s, %s, %s" % (s(pFOFF), s(pFOFF), s(pWV))); A("s_lshl_b32 %s, %s, 2" % (s(pFOFF), s(pFOFF))); A("s_add_u32 %s, %s, 0x%x" % (s(pFOFF), s(pFOFF), F_R8))
    A("s_mov_b32 %s, %s" % (s(pS), s(pWV)))
    vals = [D[k] + r for k in range(3) for r in range(4)]
    top = A.newlab("r8_top"); m0 = A.mark(); A.label(top)
    A("s_add_u32 %s, %s, 1" % (s(pT + 4), s(pS)))
    wait_flags(A, vFl, s(sFL), s(pT + 4), fail, TMP)
    trace(A, 0, 60)
    sROW2, sIN2 = 47, 52
    HQ2, XQ2 = [HQ, 160], [XQ, 166]
    for k2 in range(2):
        sr, si = (sROW, sROW2)[k2], (sIN, sIN2)[k2]
        A("s_lshl_b32 %s, %s, 5" % (s(sr), s(pS))); A("s_lshl_b32 %s, %s, 1" % (s(pT), s(pID))); A("s_add_u32 %s, %s, %s" % (s(sr), s(sr), s(pT)))
        A("s_add_u32 %s, %s, %d" % (s(sr), s(sr), k2)); A("s_mul_i32 %s, %s, %d" % (s(sr), s(sr), ROW))
        A("s_add_u32 %s, %s, 0x%x" % (s(pT), s(sr), HB)); A("s_add_u32 %s, %s, 0x%x" % (s(pT + 1), s(sr), X1B))
        for k in range(3):
            A("buffer_load_dwordx2 %s, v%d, %s, %s offen sc1" % (v(HQ2[k2] + 2 * k, 2), vS[k], s(pWS, 4), s(pT)))
            A("buffer_load_dwordx2 %s, v%d, %s, %s offen sc1" % (v(XQ2[k2] + 2 * k, 2), vS[k], s(pWS, 4), s(pT + 1)))
        A("s_and_b32 %s, %s, %d" % (s(si), s(pS), RING - 1)); A("s_mul_i32 %s, %s, %d" % (s(si), s(si), 32 * 36 * PROW))
        A("s_lshl_b32 %s, %s, 1" % (s(pT), s(pID))); A("s_add_u32 %s, %s, %d" % (s(pT), s(pT), k2)); A("s_mul_i32 %s, %s, %d" % (s(pT), s(pT), 36 * PROW))
        A("s_add_u32 %s, %s, %s" % (s(si), s(si), s(pT))); A("s_add_u32 %s, %s, 0x%x" % (s(si), s(si), P67))
    A("s_waitcnt vmcnt(6)") if False else None
    def fin(k2):
        for r in vals: rb16(A, r)
        for k in range(3): unpack4(A, XQ2[k2] + 2 * k, TMP + 4 * k)
        for i, r in enumerate(vals): A("v_add_f32 v%d, v%d, v%d" % (r, r, TMP + i))
        for r in vals: rb16(A, r)
        for k in range(3): unpack4(A, HQ2[k2] + 2 * k, TMP + 4 * k)
        for i, r in enumerate(vals): A("v_add_f32 v%d, v%d, v%d" % (r, r, TMP + i))
        for k in range(3):
            A("v_cvt_pk_bf16_f32 v%d, v%d, v%d" % (TMP + 12 + 2 * k - 12 + 0, D[k], D[k] + 1)) if False else None
        for k in range(3):
            A("v_cvt_pk_bf16_f32 v%d, v%d, v%d" % (TMP + 2 * k, D[k], D[k] + 1)); A("v_cvt_pk_bf16_f32 v%d, v%d, v%d" % (TMP + 2 * k + 1, D[k] + 2, D[k] + 3))
            A("buffer_store_dwordx2 %s, v%d, %s, %s offen" % (v(TMP + 2 * k, 2), vN[k], s(OUT, 4), s((sROW, sROW2)[k2])))
        return 3
    rw_stream(A, [sIN, sIN2], 36, vM, vX, vX9, SEL, SEL2, D, fin, pre=12)
    trace(A, 1, 60)
    A("s_add_u32 %s, %s, 1" % (s(pT + 4), s(pS)))
    A("v_mov_b32 v%d, %s" % (TMP + 8, s(pT + 4)))
    A("buffer_store_dword v%d, off, %s, %s sc1" % (TMP + 8, s(pWS, 4), s(pFOFF)))
    A("s_add_u32 %s, %s, 4" % (s(pS), s(pS)))
    A("s_cmp_lt_u32 %s, %d" % (s(pS), nseg)); A("s_cbranch_scc1 %s" % top)
    m1 = A.mark()
    A("s_waitcnt vmcnt(0)")
    trace(A, 3, 0)
    return (m0, m1)


KLAG = 8
def emit_r38(A, fail, nseg=64):
    A.c("=== R3 + R8 (wave independent)")
    TRV[0] = 250
    vM, vX, vX9, vFl3, vFl8 = 1, 2, 10, 3, 11
    vS, vN = [4, 5, 6], [7, 8, 9]
    SEL, SEL2, TMP = 12, 16, 20
    D = [36, 40, 44]; XQ, HQ = 48, 54
    OUT = 48
    load_srd(A, pW, "x"); load_srd(A, OUT, "out")
    rw_consts(A, 36, vM, vX, SEL, SEL2, vS, vN, TMP)
    A("v_and_b32 v%d, 8, v0" % TMP); A("v_mov_b32 v%d, 0x40000000" % (TMP + 1)); A("v_cmp_eq_u32 vcc, 0, v%d" % TMP); A("s_nop 1")
    A("v_cndmask_b32 v%d, v%d, v%d, vcc" % (vX9, TMP + 1, vX))
    A("v_and_b32 v%d, 63, v0" % TMP); A("v_min_u32 v%d, 31, v%d" % (vFl3, TMP)); A("v_lshlrev_b32 v%d, 2, v%d" % (vFl3, vFl3))
    A("v_min_u32 v%d, 35, v%d" % (vFl8, TMP)); A("v_lshlrev_b32 v%d, 2, v%d" % (vFl8, vFl8))
    sIN, sROW, sFL3, sFL8, sFO8, sS8 = 44, 45, 46, 47, 52, 53
    A("s_and_b32 %s, %s, 1" % (s(pT), s(pWV)))
    A("s_lshl_b32 %s, %s, 7" % (s(sFL3), s(pT))); A("s_add_u32 %s, %s, 0x%x" % (s(sFL3), s(sFL3), F_R12))
    A("s_mul_i32 %s, %s, 144" % (s(sFL8), s(pT))); A("s_add_u32 %s, %s, 0x%x" % (s(sFL8), s(sFL8), F_R67))
    A("s_lshl_b32 %s, %s, 2" % (s(pT), s(pID))); A("s_add_u32 %s, %s, %s" % (s(pT), s(pT), s(pWV))); A("s_lshl_b32 %s, %s, 2" % (s(pT), s(pT)))
    A("s_add_u32 %s, %s, 0x%x" % (s(pFOFF), s(pT), F_R3)); A("s_add_u32 %s, %s, 0x%x" % (s(sFO8), s(pT), F_R8))
    A("s_mov_b32 %s, %s" % (s(pS), s(pWV))); A("s_mov_b32 %s, 0x07060302" % s(pT + 14))
    vals = [D[k] + r for k in range(3) for r in range(4)]
    top = A.newlab("r38_top"); no3 = A.newlab("r38_no3"); no8 = A.newlab("r38_no8")
    m0 = A.mark(); A.label(top)
    A("s_cmp_lt_u32 %s, %d" % (s(pS), nseg)); A("s_cbranch_scc0 %s" % no3)
    A("s_lshl_b32 %s, %s, 5" % (s(sROW), s(pS))); A("s_add_u32 %s, %s, %s" % (s(sROW), s(sROW), s(pID))); A("s_mul_i32 %s, %s, %d" % (s(sROW), s(sROW), ROW))
    for k in range(3): A("buffer_load_dwordx2 %s, v%d, %s, %s offen" % (v(XQ + 2 * k, 2), vN[k], s(pW, 4), s(sROW)))
    A("s_add_u32 %s, %s, 1" % (s(pT + 4), s(pS)))
    wait_flags(A, vFl3, s(sFL3), s(pT + 4), fail, TMP)
    trace(A, 0, 60)
    A("s_and_b32 %s, %s, %d" % (s(sIN), s(pS), RING - 1)); A("s_mul_i32 %s, %s, %d" % (s(sIN), s(sIN), 32 * 32 * PROW)); A("s_mul_i32 %s, %s, %d" % (s(pT), s(pID), 32 * PROW))
    A("s_add_u32 %s, %s, %s" % (s(sIN), s(sIN), s(pT))); A("s_add_u32 %s, %s, 0x%x" % (s(sIN), s(sIN), P12))
    rw_stream(A, [sIN], 32, vM, vX, None, SEL, SEL2, D, lambda k: 0)
    trace(A, 1, 60)
    A("v_cmp_gt_u32 vcc, 0x40000000, v%d" % vS[2]); A("s_nop 1")
    for r in vals[8:]: A("v_cndmask_b32 v%d, 0, v%d, vcc" % (r, r))
    for r in vals: rb16(A, r)
    for k in range(3): unpack4(A, XQ + 2 * k, TMP + 4 * k)
    for i, r in enumerate(vals): A("v_add_f32 v%d, v%d, v%d" % (r, r, TMP + i))
    for r in vals: rb16(A, r)
    def store_row(base):
        A("s_add_u32 %s, %s, 0x%x" % (s(pT + 8), s(sROW), base))
        for k in range(3):
            A("v_perm_b32 v%d, v%d, v%d, %s" % (TMP + 2 * k, D[k] + 1, D[k], s(pT + 14))); A("v_perm_b32 v%d, v%d, v%d, %s" % (TMP + 2 * k + 1, D[k] + 3, D[k] + 2, s(pT + 14)))
            A("buffer_store_dwordx2 %s, v%d, %s, %s offen sc1" % (v(TMP + 2 * k, 2), vS[k], s(pWS, 4), s(pT + 8)))
    store_row(HB)
    ln_wave(A, vals, TMP + 8, vS[2]); store_row(HNB)
    ln_wave(A, vals, TMP + 8, vS[2]); store_row(TB)
    A("s_add_u32 %s, %s, 1" % (s(pT + 4), s(pS)))
    wave_flag(A, s(pFOFF), s(pT + 4), TMP)
    trace(A, 2, 60)
    A.label(no3)
    A("s_cmp_ge_u32 %s, %d" % (s(pS), KLAG)); A("s_cbranch_scc0 %s" % no8)
    A("s_sub_u32 %s, %s, %d" % (s(sS8), s(pS), KLAG))
    A("s_lshl_b32 %s, %s, 5" % (s(sROW), s(sS8))); A("s_add_u32 %s, %s, %s" % (s(sROW), s(sROW), s(pID))); A("s_mul_i32 %s, %s, %d" % (s(sROW), s(sROW), ROW))
    A("s_add_u32 %s, %s, 1" % (s(pT + 4), s(sS8)))
    wait_flags(A, vFl8, s(sFL8), s(pT + 4), fail, TMP)
    A("s_add_u32 %s, %s, 0x%x" % (s(pT), s(sROW), HB)); A("s_add_u32 %s, %s, 0x%x" % (s(pT + 1), s(sROW), X1B))
    for k in range(3):
        A("buffer_load_dwordx2 %s, v%d, %s, %s offen sc1" % (v(HQ + 2 * k, 2), vS[k], s(pWS, 4), s(pT)))
        A("buffer_load_dwordx2 %s, v%d, %s, %s offen sc1" % (v(XQ + 2 * k, 2), vS[k], s(pWS, 4), s(pT + 1)))
    A("s_and_b32 %s, %s, %d" % (s(sIN), s(sS8), RING - 1)); A("s_mul_i32 %s, %s, %d" % (s(sIN), s(sIN), 32 * 36 * PROW)); A("s_mul_i32 %s, %s, %d" % (s(pT), s(pID), 36 * PROW))
    A("s_add_u32 %s, %s, %s" % (s(sIN), s(sIN), s(pT))); A("s_add_u32 %s, %s, 0x%x" % (s(sIN), s(sIN), P67))
    def fin(k2):
        A("s_add_u32 %s, %s, 1" % (s(pT + 4), s(sS8)))
        A("v_mov_b32 v%d, %s" % (TMP + 14, s(pT + 4)))
        A("buffer_store_dword v%d, off, %s, %s sc1" % (TMP + 14, s(pWS, 4), s(sFO8)))
        for r in vals: rb16(A, r)
        for k in range(3): unpack4(A, XQ + 2 * k, TMP + 4 * k)
        for i, r in enumerate(vals): A("v_add_f32 v%d, v%d, v%d" % (r, r, TMP + i))
        for r in vals: rb16(A, r)
        for k in range(3): unpack4(A, HQ + 2 * k, TMP + 4 * k)
        for i, r in enumerate(vals): A("v_add_f32 v%d, v%d, v%d" % (r, r, TMP + i))
        for k in range(3):
            A("v_cvt_pk_bf16_f32 v%d, v%d, v%d" % (TMP + 2 * k, D[k], D[k] + 1)); A("v_cvt_pk_bf16_f32 v%d, v%d, v%d" % (TMP + 2 * k + 1, D[k] + 2, D[k] + 3))
            A("buffer_store_dwordx2 %s, v%d, %s, %s offen" % (v(TMP + 2 * k, 2), vN[k], s(OUT, 4), s(sROW)))
        return 4
    rw_stream(A, [sIN], 36, vM, vX, vX9, SEL, SEL2, D, fin, pre=6)
    A.label(no8)
    A("s_add_u32 %s, %s, 4" % (s(pS), s(pS)))
    A("s_cmp_lt_u32 %s, %d" % (s(pS), nseg + KLAG)); A("s_cbranch_scc1 %s" % top)
    m1 = A.mark()
    A("s_waitcnt vmcnt(0)")
    trace(A, 3, 0)
    return (m0, m1)


def emit_r8i(A, fail, ncu=20, hook=None):
    A.c("=== R8 (items)")
    TRV[0] = 250
    vM, vX, vX9, vFl = 1, 2, 10, 3
    vS, vN = [4, 5, 6], [7, 8, 9]
    SEL, SEL2, TMP = 12, 16, 20
    D = [36, 40, 44]; XQ, HQ = 48, 54
    OUT = 48
    load_srd(A, OUT, "out")
    rw_consts(A, 36, vM, vX, SEL, SEL2, vS, vN, TMP)
    A("v_and_b32 v%d, 8, v0" % TMP); A("v_mov_b32 v%d, 0x40000000" % (TMP + 1)); A("v_cmp_eq_u32 vcc, 0, v%d" % TMP); A("s_nop 1")
    A("v_cndmask_b32 v%d, v%d, v%d, vcc" % (vX9, TMP + 1, vX))
    A("v_and_b32 v%d, 63, v0" % TMP); A("v_min_u32 v%d, 35, v%d" % (vFl, TMP)); A("v_lshlrev_b32 v%d, 2, v%d" % (vFl, vFl))
    sIN, sROW, sFL, sIT, sTOK = 44, 45, 46, 47, 52
    if hook: hook(A)
    A("s_lshl_b32 %s, %s, 2" % (s(sIT), s(pID))); A("s_add_u32 %s, %s, %s" % (s(sIT), s(sIT), s(pWV)))
    vals = [D[k] + r for k in range(3) for r in range(4)]
    top = A.newlab("r8_top"); m0 = A.mark(); A.label(top)
    A("s_lshr_b32 %s, %s, 5" % (s(pS), s(sIT))); A("s_and_b32 %s, %s, 31" % (s(sTOK), s(sIT)))
    A("s_mul_i32 %s, %s, %d" % (s(sROW), s(sIT), ROW))
    A("s_and_b32 %s, %s, 1" % (s(sFL), s(pS))); A("s_mul_i32 %s, %s, 144" % (s(sFL), s(sFL))); A("s_add_u32 %s, %s, 0x%x" % (s(sFL), s(sFL), F_R67))
    A("s_add_u32 %s, %s, 1" % (s(pT + 4), s(pS)))
    wait_flags(A, vFl, s(sFL), s(pT + 4), fail, TMP)
    trace(A, 0, 62)
    A("s_add_u32 %s, %s, 0x%x" % (s(pT), s(sROW), HB)); A("s_add_u32 %s, %s, 0x%x" % (s(pT + 1), s(sROW), X1B))
    for k in range(3):
        A("buffer_load_dwordx2 %s, v%d, %s, %s offen sc1" % (v(HQ + 2 * k, 2), vS[k], s(pWS, 4), s(pT)))
        A("buffer_load_dwordx2 %s, v%d, %s, %s offen sc1" % (v(XQ + 2 * k, 2), vS[k], s(pWS, 4), s(pT + 1)))
    A("s_and_b32 %s, %s, %d" % (s(sIN), s(pS), RING - 1)); A("s_mul_i32 %s, %s, %d" % (s(sIN), s(sIN), 32 * 36 * PROW)); A("s_mul_i32 %s, %s, %d" % (s(pT), s(sTOK), 36 * PROW))
    A("s_add_u32 %s, %s, %s" % (s(sIN), s(sIN), s(pT))); A("s_add_u32 %s, %s, 0x%x" % (s(sIN), s(sIN), P67))
    A("s_and_b32 %s, %s, 7" % (s(pFOFF), s(pS))); A("s_lshl_b32 %s, %s, 5" % (s(pFOFF), s(pFOFF))); A("s_add_u32 %s, %s, %s" % (s(pFOFF), s(pFOFF), s(sTOK)))
    A("s_lshl_b32 %s, %s, 2" % (s(pFOFF), s(pFOFF))); A("s_add_u32 %s, %s, 0x%x" % (s(pFOFF), s(pFOFF), F_R8))
    def fin(k2):
        A("s_add_u32 %s, %s, 1" % (s(pT + 4), s(pS)))
        A("v_mov_b32 v%d, %s" % (TMP + 14, s(pT + 4)))
        A("buffer_store_dword v%d, off, %s, %s sc1" % (TMP + 14, s(pWS, 4), s(pFOFF)))
        for r in vals: rb16(A, r)
        for k in range(3): unpack4(A, XQ + 2 * k, TMP + 4 * k)
        for i, r in enumerate(vals): A("v_add_f32 v%d, v%d, v%d" % (r, r, TMP + i))
        for r in vals: rb16(A, r)
        for k in range(3): unpack4(A, HQ + 2 * k, TMP + 4 * k)
        for i, r in enumerate(vals): A("v_add_f32 v%d, v%d, v%d" % (r, r, TMP + i))
        for k in range(3):
            A("v_cvt_pk_bf16_f32 v%d, v%d, v%d" % (TMP + 2 * k, D[k], D[k] + 1)); A("v_cvt_pk_bf16_f32 v%d, v%d, v%d" % (TMP + 2 * k + 1, D[k] + 2, D[k] + 3))
            A("buffer_store_dwordx2 %s, v%d, %s, %s offen" % (v(TMP + 2 * k, 2), vN[k], s(OUT, 4), s(sROW)))
        return 4
    rw_stream(A, [sIN], 36, vM, vX, vX9, SEL, SEL2, D, fin, pre=6)
    trace(A, 1, 62)
    A("s_add_u32 %s, %s, %d" % (s(sIT), s(sIT), 4 * ncu))
    A("s_cmp_lt_u32 %s, 2048" % s(sIT)); A("s_cbranch_scc1 %s" % top)
    m1 = A.mark()
    A("s_waitcnt vmcnt(0)")
    trace(A, 3, 0)
    return (m0, m1)
```

```python
from gen_common import *

sWS, sW, sDBG = 4, 8, 12
sH, sWV, sS, sFAST, sVX, sVT, sBYTE = 16, 17, 18, 19, 20, 21, 22
sT = 24
sEXC = 40
sKoff, sVoff, sKM, sVM, sSpin = 42, 43, 44, 45, 46
sPRc, sPRo, sPWc, sPWo, sP9c, sP9o, sMc, sMo = 47, 48, 49, 50, 51, 52, 53, 54
sPXc, sPXo, sXTRA, sM3, sMW1 = 55, 56, 57, 58, 59
sFKM = 62
sSTASH, sVMp = 63, 61
sMQ, sODD = 80, 88
sW4096 = 60
sHoff = 61
sPROF = 64
sSRD = dict(Wq=80, Wk=84, Wv=88, Wo=92)
vL16, vIdx, vSel, vLW, vSw, vSw0, vSr, vSr0, vOw, vPL, vP9, vMx, vMst, vPf, vDum = 0, 1, 2, 4, 5, 6, 7, 8, 9, 10, 11, 12, 13, 14, 15
Ks, Vs = 16, 24
Msp = [32, 36, 40]
accQ = [44, 48, 52, 56]
accV = [72, 76]
LWA, LWB = 64, 72
L_M, L_S, L_O, L_V1, L_W1 = 0, 9216, 14336, 16384, 90112
def Wq_t(t, et): return ('a', (t * 2 + et) * 8)
def Wv_t(t, et):
    i = t * 2 + et
    return ('a', 144 + 8 * i) if i < 14 else ('v', 80 + 8 * (i - 14))
def Wk0_t(t): return ('v', 112 + 8 * t)
def Wo0_t(tau): return ('v', 184 + 8 * tau)
def RR(spec, cnt, off=0): return R((spec[0], spec[1] + off), cnt)

class Q:
    def __init__(self, A, name): self.A, self.name, self.q = A, name, []
    def add(self, tag): self.q.append(tag)
    def wait(self, tag):
        idx = max(i for i, t in enumerate(self.q) if t == tag) if tag in self.q else -1
        if idx < 0: return
        n = len(self.q) - 1 - idx
        assert n <= (15 if self.name == "lgkmcnt" else 63), (self.name, n)
        self.A("s_waitcnt %s(%d)" % (self.name, n))
        self.q = self.q[idx + 1:]
    def waitall(self):
        self.A("s_waitcnt %s(0)" % self.name); self.q = []

def emit_rec_prologue(A, fail):
    A.c("=== REC prologue: lane constants for the weight loads")
    vLane, vG, vRho, vSlot, vA, vB, vA8, vB8, vAo, vBo, vN0, vN1, vT, vTn, vTmp, vTmp2 = range(16, 32)
    A("v_and_b32 v%d, 63, v0" % vLane)
    A("v_lshrrev_b32 v%d, 4, v%d" % (vRho, vLane))
    A("v_and_b32 v%d, 15, v%d" % (vSlot, vLane))
    A("v_lshlrev_b32 v%d, 1, v%d" % (vTmp, vRho))
    A("v_xor_b32 v%d, v%d, v%d" % (vTmp, vSlot, vTmp))
    A("v_lshlrev_b32 v%d, 4, v%d" % (vTmp, vTmp))
    A("v_and_b32 v%d, 1, v%d" % (vTmp2, vRho))
    A("v_lshlrev_b32 v%d, 4, v%d" % (vTmp2, vTmp2))
    A("v_lshrrev_b32 v%d, 1, v%d" % (vA, vRho))
    A("v_add_u32 v%d, v%d, v%d" % (vA, vA, vTmp2))
    A("s_lshl_b32 %s, %s, 1" % (s(sT), s(sWV)))
    A("v_add_u32 v%d, %s, v%d" % (vA, s(sT), vA))
    A("v_lshlrev_b32 v%d, 13, v%d" % (vA, vA))
    A("v_add_u32 v%d, v%d, v%d" % (vA, vA, vTmp))
    A("v_xor_b32 v%d, 128, v%d" % (vB, vA))
    A("s_mul_i32 %s, %s, 144" % (s(sT), s(sWV)))
    A("v_lshrrev_b32 v%d, 1, v%d" % (vA8, vRho))
    A("v_lshlrev_b32 v%d, 3, v%d" % (vA8, vA8))
    A("v_and_b32 v%d, 1, v%d" % (vB8, vRho))
    A("v_add3_u32 v%d, v%d, v%d, %s" % (vA8, vA8, vB8, s(sT)))
    A("v_lshlrev_b32 v%d, 13, v%d" % (vA8, vA8))
    A("v_add_u32 v%d, v%d, v%d" % (vA8, vA8, vTmp))
    A("v_xor_b32 v%d, 128, v%d" % (vB8, vA8))
    A("s_lshr_b32 %s, %s, 1" % (s(sT), s(sWV)))
    A("s_lshl_b32 %s, %s, 5" % (s(sT), s(sT)))
    A("s_and_b32 %s, %s, 1" % (s(sT + 1), s(sWV)))
    A("s_lshl_b32 %s, %s, 3" % (s(sT + 1), s(sT + 1)))
    A("s_add_u32 %s, %s, %s" % (s(sT + 2), s(sT), s(sT + 1)))
    A("v_lshrrev_b32 v%d, 1, v%d" % (vAo, vRho))
    A("v_lshlrev_b32 v%d, 2, v%d" % (vAo, vAo))
    A("v_and_b32 v%d, 1, v%d" % (vTmp2, vRho))
    A("v_add3_u32 v%d, v%d, v%d, %s" % (vAo, vAo, vTmp2, s(sT + 2)))
    A("s_movk_i32 %s, 1152" % s(sT + 3))
    A("v_mul_lo_u32 v%d, v%d, %s" % (vAo, vAo, s(sT + 3)))
    A("v_xor_b32 v%d, 128, v%d" % (vTmp2, vTmp))
    A("v_add_u32 v%d, v%d, v%d" % (vBo, vAo, vTmp2))
    A("v_add_u32 v%d, v%d, v%d" % (vAo, vAo, vTmp))
    A("v_lshrrev_b32 v%d, 3, v%d" % (vTmp, vLane))
    A("v_bfe_u32 v%d, v%d, 1, 1" % (vTmp2, vTmp))
    A("v_lshlrev_b32 v%d, 2, v%d" % (vN0, vTmp2))
    A("v_lshrrev_b32 v%d, 2, v%d" % (vN1, vTmp))
    A("v_lshl_add_u32 v%d, v%d, 1, v%d" % (vN0, vN1, vN0))
    A("v_and_b32 v%d, 1, v%d" % (vN1, vTmp))
    A("v_add3_u32 v%d, v%d, v%d, %s" % (vN0, vN0, vN1, s(sT + 2)))
    A("v_mul_lo_u32 v%d, v%d, %s" % (vN0, vN0, s(sT + 3)))
    A("v_and_b32 v%d, 1, v%d" % (vTmp, vLane))
    A("v_lshl_add_u32 v%d, v%d, 4, v%d" % (vN0, vTmp, vN0))
    A("v_bfe_u32 v%d, v%d, 1, 2" % (vTmp, vLane))
    A("v_xor_b32 v%d, v%d, v%d" % (vTmp, vTmp, vTmp2))
    A("s_movk_i32 %s, 288" % s(sT + 4))
    A("v_xor_b32 v%d, 2, v%d" % (vTmp2, vTmp))
    A("v_mul_lo_u32 v%d, v%d, %s" % (vTmp, vTmp, s(sT + 4)))
    A("v_mul_lo_u32 v%d, v%d, %s" % (vTmp2, vTmp2, s(sT + 4)))
    A("v_add_u32 v%d, v%d, v%d" % (vN1, vN0, vTmp2))
    A("v_add_u32 v%d, v%d, v%d" % (vN0, vN0, vTmp))
    A("v_bfe_u32 v%d, v%d, 2, 2" % (vTmp, vLane))
    A("v_lshl_add_u32 v%d, v%d, 3, v%d" % (vTmp2, vRho, vTmp))
    A("v_lshlrev_b32 v%d, 8, v%d" % (vT, vTmp2))
    A("v_lshlrev_b32 v%d, 7, v%d" % (vTn, vTmp2))
    A("v_and_b32 v%d, 1, v%d" % (vTmp2, vRho))
    A("v_lshl_or_b32 v%d, v%d, 2, v%d" % (vSlot, vTmp2, vTmp))
    A("v_lshl_add_u32 v%d, v%d, 5, v%d" % (vT, vSlot, vT))
    A("v_lshrrev_b32 v%d, 1, v%d" % (vTmp, vTmp))
    A("v_lshl_or_b32 v%d, v%d, 1, v%d" % (vTmp, vTmp2, vTmp))
    A("v_xor_b32 v%d, %s, v%d" % (vTmp, s(sWV), vTmp))
    A("v_lshl_add_u32 v%d, v%d, 5, v%d" % (vTn, vTmp, vTn))
    A("v_and_b32 v%d, 3, v%d" % (vTmp, vLane))
    A("v_lshl_add_u32 v%d, v%d, 3, v%d" % (vT, vTmp, vT))
    A("v_lshl_add_u32 v%d, v%d, 3, v%d" % (vTn, vTmp, vTn))
    A("v_lshlrev_b32 v%d, 4, v%d" % (vL16, vLane))
    A("s_mul_i32 %s, %s, 18432" % (s(sT), s(sWV)))
    A("s_add_u32 %s, %s, %d" % (s(sT), s(sT), L_V1))
    A("v_add_u32 v%d, %s, v%d" % (vLW, s(sT), vL16))
    A("s_lshl_b32 %s, %s, 12" % (s(sW4096), s(sWV)))
    A("s_lshl_b32 %s, %s, 8" % (s(sHoff), s(sH)))
    A("s_mul_i32 %s, %s, %d" % (s(sT + 5), s(sH), 128 * 1152))
    sWoH = sT + 5

    vm = Q(A, "vmcnt")
    SL = [L_W1 + 16384 * i for i in range(4)] + [0]
    TAIL = L_W1 + 65536
    cur = [None]
    for nm, r in sSRD.items(): load_srd(A, r, nm)
    def setW(name): cur[0] = sSRD[name]
    def dma(vaddr, soff_imm, sbase, m0_imm, tag, wave_m0=True):
        if wave_m0: A("s_add_u32 m0, %s, %d" % (s(sW4096), m0_imm))
        A("s_add_u32 %s, %s, %d" % (s(sT + 8), s(sbase), soff_imm))
        A("buffer_load_dwordx4 v%d, %s, %s offen lds" % (vaddr, s(cur[0], 4), s(sT + 8)))
        vm.add(tag)
    def issue(slab, base):
        kind = slab[0]
        if kind in "vqk" and len(kind) == 1:
            t = slab[1]; setW({"v": "Wv", "q": "Wq", "k": "Wk"}[kind])
            for i in range(4):
                if t < 8:
                    U = 144 * (t >> 1) + 8 * (t & 1) + 32 * i; va = vA if i < 2 else vB
                else:
                    U = 128 + 2 * i; va = vA8 if i < 2 else vB8
                dma(va, U * 8192, sHoff, base + i * 1024, slab)
        elif kind == "om":
            tp, wo = slab[1], slab[2]; setW("Wo")
            for i in range(4):
                e = 64 * tp + 16 * (i >> 1) + 2 * (i & 1)
                dma(vAo if i < 2 else vBo, e * 1152 + 288 * wo, sWoH, base + i * 1024, slab)
        elif kind == "on":
            tp = slab[1]; setW("Wo")
            A("s_lshl_b32 %s, %s, 11" % (s(sT + 9), s(sWV)))
            for i in range(2):
                A("s_add_u32 m0, %s, %d" % (s(sT + 9), base + i * 1024))
                dma(vN0 if i == 0 else vN1, (64 * tp + 16 * i) * 1152 + 256, sWoH, 0, slab, wave_m0=False)
    OFFS = [0, 4 * 256, 32 * 256, 36 * 256]
    OFFN = [0, 4 * 128, 32 * 128, 36 * 128]
    vX, vY = 32, 33
    vTB = 36
    def trtile(dst, vaddr, offs):
        for u in range(4):
            A("ds_read_b64_tr_b16 %s, v%d offset:%d" % (RR(dst, 2, 2 * u), vaddr, offs[u]))
    def consume(slab, base):
        kind = slab[0]
        if kind in "vqk" and len(kind) == 1:
            t = slab[1]
            A("s_lshl_b32 %s, %s, 6" % (s(sT + 9), s(sWV)))
            A("v_xor_b32 v%d, %s, v%d" % (vX, s(sT + 9), vT))
            A("v_add_u32 v%d, %d, v%d" % (vX, base, vX) if base else "v_mov_b32 v%d, v%d" % (vX, vX))
            A("v_xor_b32 v%d, 32, v%d" % (vY, vX)) if base % 64 == 0 else None
            if kind == "q": d0, d1 = Wq_t(t, 0), Wq_t(t, 1)
            elif kind == "v": d0, d1 = Wv_t(t, 0), Wv_t(t, 1)
            else: d0, d1 = Wk0_t(t), ('v', vTB)
            trtile(d0, vX, OFFS); trtile(d1, vY, OFFS)
            A("s_waitcnt lgkmcnt(0)")
            if kind == "k":
                A("ds_write_b128 v%d, %s offset:%d" % (vLW, v(vTB, 4), t * 2048))
                A("ds_write_b128 v%d, %s offset:%d" % (vLW, v(vTB + 4, 4), t * 2048 + 1024))
                A("s_waitcnt lgkmcnt(0)")
        elif kind == "om":
            tp, wo = slab[1], slab[2]
            skip = A.newlab("om_skip")
            A("s_cmp_eq_u32 %s, %d" % (s(sWV), wo))
            A("s_cbranch_scc0 %s" % skip)
            for tau in range(8):
                A("v_xor_b32 v%d, %d, v%d" % (vX, tau << 5, vT))
                if base: A("v_add_u32 v%d, %d, v%d" % (vX, base, vX))
                trtile(Wo0_t(tau), vX, OFFS)
                if tau % 2 == 1: A("s_waitcnt lgkmcnt(0)")
            A.label(skip)
        elif kind == "on":
            A("v_add_u32 v%d, %d, v%d" % (vX, base, vTn) if base else "v_mov_b32 v%d, v%d" % (vX, vTn))
            trtile(Wo0_t(8), vX, OFFN)
            A("s_waitcnt lgkmcnt(0)")
    slabs = [("k", t) for t in range(9)] + [("q", t) for t in range(9)] + [("v", t) for t in range(9)] + \
            [("om", 0, w) for w in range(4)] + [("on", 0)]
    assert len(slabs) == 32
    for n in range(5): issue(slabs[n], SL[n % 5])
    follow = {27: (("om", 1, 2), SL[2]), 28: (("om", 1, 3), SL[3]), 29: (("on", 1), TAIL), 30: (("om", 1, 0), SL[0]), 31: (("om", 1, 1), SL[1])}
    for n in range(32):
        vm.wait(slabs[n])
        A("s_barrier")
        consume(slabs[n], SL[n % 5])
        A("s_barrier")
        if n + 5 < 32: issue(slabs[n + 5], SL[n % 5])
        else: issue(*follow[n])
    vm.waitall()
    A("s_barrier")
    A.c("re-layout Wo t'=1 tiles: natural -> linear (through v8..v79); own slab base = L_W1 + 16384*w")
    A("s_lshl_b32 %s, %s, 14" % (s(sT + 9), s(sWV)))
    A("s_add_u32 %s, %s, %d" % (s(sT + 9), s(sT + 9), L_W1))
    A("v_add_u32 v1, %s, v%d" % (s(sT + 9), vT))
    A("v_add_u32 v2, %d, v%d" % (TAIL, vTn))
    for tau in range(8):
        A("v_xor_b32 v3, %d, v1" % (tau << 5))
        trtile(('v', 8 + 8 * tau), 3, OFFS)
        if tau % 2 == 1: A("s_waitcnt lgkmcnt(0)")
    trtile(('v', 72), 2, OFFN)
    A("s_waitcnt lgkmcnt(0)")
    A("s_barrier")
    A("v_add_u32 v1, %d, v%d" % (L_W1 - L_V1, vLW))
    for tau in range(9):
        A("ds_write_b128 v1, %s offset:%d" % (v(8 + 8 * tau, 4), tau * 2048))
        A("ds_write_b128 v1, %s offset:%d" % (v(12 + 8 * tau, 4), tau * 2048 + 1024))
        if tau % 4 == 3: A("s_waitcnt lgkmcnt(0)")
    A("s_waitcnt lgkmcnt(0)")

def emit_rec_consts(A):
    A.c("=== persistent lane constants")
    t0, t1, t2, t3, t4 = 16, 17, 18, 19, 20
    lane, g, c = 21, 22, 23
    A("v_lshrrev_b32 v%d, 4, v%d" % (lane, vL16))
    A("v_lshrrev_b32 v%d, 4, v%d" % (g, lane))
    A("v_and_b32 v%d, 15, v%d" % (c, lane))
    A("v_mov_b32 v%d, 0x4444" % t0)
    A("v_mov_b32 v%d, 0xeeee" % t1)
    A("v_and_b32 v%d, 2, v%d" % (t2, c))
    A("v_cmp_eq_u32 vcc, 0, v%d" % t2)
    A("s_nop 1")
    A("v_cndmask_b32 v%d, v%d, v%d, vcc" % (vIdx, t1, t0))
    A("v_lshlrev_b32 v%d, 2, v%d" % (t0, g))
    A("v_sub_u32 v%d, v%d, v%d" % (t0, c, t0))
    A("v_mov_b32 v%d, 0x3f80" % t1)
    A("v_mov_b32 v%d, 0x3f800000" % t2)
    A("v_mov_b32 v%d, 0" % t3)
    for dst, (dl, dh) in ((vSel, (2, 3)), (vSel + 1, (0, 1))):
        A("v_cmp_eq_u32 vcc, %d, v%d" % (dl, t0))
        A("s_nop 1")
        A("v_cndmask_b32 v%d, v%d, v%d, vcc" % (dst, t3, t1))
        A("v_cmp_eq_u32 vcc, %d, v%d" % (dh, t0))
        A("s_nop 1")
        A("v_cndmask_b32 v%d, v%d, v%d, vcc" % (dst, dst, t2))
    A("v_lshrrev_b32 v%d, 2, v%d" % (t0, c))
    A("v_lshlrev_b32 v%d, 1, v%d" % (t0, t0))
    A("v_lshl_add_u32 v%d, v%d, 3, v%d" % (t0, g, t0))
    A("v_and_b32 v%d, 1, v%d" % (t1, c))
    A("v_add_u32 v%d, v%d, v%d" % (t0, t0, t1))
    A("s_mul_i32 %s, %s, 1280" % (s(sT), s(sWV)))
    A("s_add_u32 %s, %s, %d" % (s(sT), s(sT), L_S))
    A("v_lshl_add_u32 v%d, v%d, 4, %s" % (vSw, t0, s(sT)))
    A("v_lshl_add_u32 v%d, v%d, 3, %s" % (vSw0, t0, s(sT)))
    A("v_and_b32 v%d, 2, v%d" % (t1, c))
    A("v_xor_b32 v%d, 2, v%d" % (t1, t1))
    A("v_lshlrev_b32 v%d, 4, v%d" % (t2, t0))
    A("v_lshlrev_b32 v%d, 6, v%d" % (t3, t1))
    A("v_xor_b32 v%d, v%d, v%d" % (t2, t2, t3))
    A("v_lshl_add_u32 v%d, v%d, 8, v%d" % (t2, t1, t2))
    A("v_add_u32 v%d, %d, v%d" % (vSr, L_S + 256, t2))
    A("v_lshlrev_b32 v%d, 1, v%d" % (t2, t1))
    A("v_lshl_add_u32 v%d, v%d, 3, v%d" % (t2, t0, t2))
    A("v_add_u32 v%d, %d, v%d" % (vSr0, L_S, t2))
    A("v_lshrrev_b32 v%d, 1, v%d" % (t0, g))
    A("v_lshlrev_b32 v%d, 4, v%d" % (t0, t0))
    A("v_lshrrev_b32 v%d, 2, v%d" % (t1, c))
    A("v_lshl_add_u32 v%d, v%d, 2, v%d" % (t0, t1, t0))
    A("v_and_b32 v%d, 1, v%d" % (t1, g))
    A("v_lshl_add_u32 v%d, v%d, 1, v%d" % (t0, t1, t0))
    A("v_and_b32 v%d, 1, v%d" % (t1, c))
    A("v_add_u32 v%d, v%d, v%d" % (t0, t0, t1))
    A("s_and_b32 %s, %s, 1" % (s(sT), s(sWV)))
    A("s_lshl_b32 %s, %s, 9" % (s(sT), s(sT)))
    A("s_lshr_b32 %s, %s, 1" % (s(sT + 1), s(sWV)))
    A("s_lshl_b32 %s, %s, 10" % (s(sT + 1), s(sT + 1)))
    A("s_add_u32 %s, %s, %s" % (s(sT), s(sT), s(sT + 1)))
    A("s_add_u32 %s, %s, %d" % (s(sT), s(sT), L_O))
    A("v_lshl_add_u32 v%d, v%d, 4, %s" % (vOw, t0, s(sT)))
    A("v_lshrrev_b32 v%d, 2, v%d" % (t0, c))
    A("v_lshl_add_u32 v%d, v%d, 2, v%d" % (t0, t0, g))
    A("s_movk_i32 %s, %d" % (s(sT + 3), PSTR))
    A("v_mul_lo_u32 v%d, v%d, %s" % (t0, t0, s(sT + 3)))
    A("v_and_b32 v%d, 3, v%d" % (t1, c))
    A("v_lshl_add_u32 v%d, v%d, 4, v%d" % (vPL, t1, t0))
    A("v_mov_b32 v%d, 0x40000000" % t4)
    A("v_lshrrev_b32 v%d, 2, v%d" % (t0, c))
    A("v_lshlrev_b32 v%d, 1, v%d" % (t0, t0))
    A("v_and_b32 v%d, 1, v%d" % (t1, c))
    A("v_add_u32 v%d, v%d, v%d" % (t0, t0, t1))
    A("v_lshrrev_b32 v%d, 1, v%d" % (t1, g))
    A("v_lshl_add_u32 v%d, v%d, 1, v%d" % (t0, t0, t1))
    A("v_lshlrev_b32 v%d, 4, v%d" % (t0, t0))
    A("v_and_b32 v%d, 1, v%d" % (t1, g))
    A("v_lshl_add_u32 v%d, v%d, 3, v%d" % (t0, t1, t0))
    A("v_and_b32 v%d, 2, v%d" % (t1, c))
    A("v_cmp_ne_u32 vcc, 0, v%d" % t1)
    A("s_nop 1")
    A("v_cndmask_b32 v%d, v%d, v%d, vcc" % (vP9, t4, t0))
    A("s_lshl_b32 %s, %s, 2" % (s(sT), s(sWV)))
    A("v_add_u32 v%d, %s, v%d" % (t0, s(sT), c))
    A("v_bfe_u32 v%d, v%d, 1, 2" % (t1, t0))
    A("v_lshlrev_b32 v%d, 4, v%d" % (t1, t1))
    A("v_and_b32 v%d, 1, v%d" % (t2, t0))
    A("v_lshl_add_u32 v%d, v%d, 1, v%d" % (t1, t2, t1))
    A("s_and_b32 %s, %s, 3" % (s(sT + 1), s(sH)))
    A("s_lshl_b32 %s, %s, 2" % (s(sT + 1), s(sT + 1)))
    A("v_add3_u32 v%d, v%d, v%d, %s" % (t1, t1, g, s(sT + 1)))
    A("s_lshr_b32 %s, %s, 2" % (s(sT + 2), s(sH)))
    A("s_and_b32 %s, %s, 1" % (s(sT + 2), s(sT + 2)))
    A("s_lshl_b32 %s, %s, 1" % (s(sT + 2), s(sT + 2)))
    A("v_lshlrev_b32 v%d, 2, v%d" % (t1, t1))
    A("v_add_u32 v%d, %s, v%d" % (t1, s(sT + 2), t1))
    A("v_and_b32 v%d, 63, v%d" % (t2, t1))
    A("v_lshrrev_b32 v%d, 6, v%d" % (t1, t1))
    A("v_lshl_add_u32 v%d, v%d, 2, v%d" % (t1, t2, t1))
    A("v_lshlrev_b32 v%d, 2, v%d" % (t1, t1))
    A("v_lshrrev_b32 v%d, 3, v%d" % (t2, t0))
    A("s_lshr_b32 %s, %s, 3" % (s(sT + 2), s(sH)))
    A("s_lshl_b32 %s, %s, 1" % (s(sT + 2), s(sT + 2)))
    A("v_add_u32 v%d, %s, v%d" % (t2, s(sT + 2), t2))
    A("v_lshl_add_u32 v%d, v%d, 10, v%d" % (t1, t2, t1))
    A("v_and_b32 v%d, 1, v%d" % (t0, c))
    A("v_lshrrev_b32 v%d, 1, v%d" % (t2, c))
    A("v_lshl_add_u32 v%d, v%d, 1, v%d" % (t0, t0, t2))
    A("s_lshr_b32 %s, %s, 2" % (s(sT), s(sH)))
    A("s_lshl_b32 %s, %s, 4" % (s(sT), s(sT)))
    A("s_and_b32 %s, %s, 3" % (s(sT + 1), s(sH)))
    A("s_lshl_b32 %s, %s, 2" % (s(sT + 1), s(sT + 1)))
    A("s_add_u32 %s, %s, %s" % (s(sT), s(sT), s(sT + 1)))
    A("v_add_u32 v%d, %s, v%d" % (t0, s(sT), t0))
    A("v_lshlrev_b32 v%d, 4, v%d" % (t0, t0))
    A("v_and_b32 v%d, 1, v%d" % (t2, g))
    A("v_lshl_add_u32 v%d, v%d, 3, v%d" % (t3, t2, t0))
    A("v_add_u32 v%d, 8192, v%d" % (t3, t3))
    A("s_cmp_lt_u32 %s, 16" % s(sH)); A("s_cselect_b32 %s, 1, 0" % s(sT + 3)); A("s_cmp_eq_u32 %s, 0" % s(sWV)); A("s_cselect_b32 %s, %s, 0" % (s(sT + 3), s(sT + 3)))
    A("s_cmp_eq_u32 %s, 1" % s(sT + 3)); A("s_cselect_b64 vcc, -1, 0")
    A("v_cndmask_b32 v%d, v%d, v%d, vcc" % (t3, t4, t3))
    A("v_add_u32 v%d, 16, v%d" % (t0, t1)); A("v_add_u32 v%d, 4, v%d" % (t2, t3))
    A("v_cmp_gt_u32 vcc, 2, v%d" % g); A("s_nop 1")
    A("v_cndmask_b32 v%d, v%d, v%d, vcc" % (vMst, t3, t1)); A("v_cndmask_b32 v%d, v%d, v%d, vcc" % (vMx, t2, t0))
    A("v_cmp_gt_u32 vcc, 4, v%d" % c); A("s_nop 1")
    A("v_cndmask_b32 v%d, v%d, v%d, vcc" % (vMst, t4, vMst)); A("v_cndmask_b32 v%d, v%d, v%d, vcc" % (vMx, t4, vMx))
    A("v_lshlrev_b32 v%d, 3, v%d" % (t0, vL16))
    A("v_mov_b32 v%d, 0x%x" % (t1, VOP - 2048))
    A("v_cmp_lt_u32 vcc, 15, v%d" % lane)
    A("s_nop 1")
    A("v_cndmask_b32 v%d, 0, v%d, vcc" % (t1, t1))
    A("v_add_u32 v%d, v%d, v%d" % (t0, t0, t1))
    A("v_cmp_lt_u32 vcc, 31, v%d" % lane)
    A("s_nop 1")
    A("v_cndmask_b32 v%d, v%d, v%d, vcc" % (vPf, t0, t4))
    A("s_mov_b32 %s, 0xcccccccc" % s(sEXC))
    A("s_mov_b32 %s, 0xcccccccc" % s(sEXC + 1))
    def setmask(r, m):
        A("s_mov_b32 %s, 0x%x" % (s(r), m & 0xffffffff)); A("s_mov_b32 %s, 0x%x" % (s(r + 1), m >> 32))
    rows = lambda m16: m16 | (m16 << 16) | (m16 << 32) | (m16 << 48)
    for q in range(4): setmask(sMQ + 2 * q, rows(3 << (2 * q)))
    setmask(sODD, rows(0xaaaa))

def emit_rec_mem0(A):
    A.c("=== mem0 -> M staging")
    load_srd(A, sW, "mem0")
    lane, m, hi, gA, off, o8 = 16, 17, 18, 19, 20, 21
    A("v_lshrrev_b32 v%d, 4, v%d" % (lane, vL16))
    A("v_bfe_u32 v%d, v%d, 2, 2" % (m, lane))
    A("v_lshlrev_b32 v%d, 1, v%d" % (m, m))
    A("v_and_b32 v%d, 1, v%d" % (hi, lane))
    A("v_add_u32 v%d, v%d, v%d" % (m, m, hi))
    A("v_bfe_u32 v%d, v%d, 1, 1" % (hi, lane))
    A("v_lshrrev_b32 v%d, 4, v%d" % (gA, lane))
    A("v_lshl_add_u32 v%d, v%d, 1, v%d" % (hi, gA, hi))
    A("v_mul_u32_u24 v%d, 1152, v%d" % (m, m))
    A("s_lshr_b32 %s, %s, 1" % (s(sT), s(sWV)))
    A("s_mul_i32 %s, %s, 144" % (s(sT), s(sT)))
    A("s_and_b32 %s, %s, 1" % (s(sT + 1), s(sWV)))
    A("s_lshl_b32 %s, %s, 3" % (s(sT + 1), s(sT + 1)))
    A("s_add_u32 %s, %s, %s" % (s(sT), s(sT), s(sT + 1)))
    A("v_add_u32 v%d, %s, v%d" % (off, s(sT), hi))
    A("v_lshl_add_u32 v%d, v%d, 1, v%d" % (off, off, m))
    A("v_mul_u32_u24 v%d, 288, v%d" % (o8, gA))
    A("v_bfe_u32 v%d, v%d, 1, 1" % (22, lane))
    A("v_lshl_add_u32 v%d, v%d, 4, v%d" % (o8, 22, o8))
    A("v_add3_u32 v%d, v%d, v%d, 0" % (o8, o8, m))
    for k, (base, extra) in enumerate(((24, 0), (28, 576))):
        for j in range(8):
            A("buffer_load_ushort v%d, v%d, %s, 0 offen offset:%d" % (40 + j, off, s(sW, 4), extra + 32 * j))
        A("s_waitcnt vmcnt(0)")
        for j in range(4):
            A("v_lshl_or_b32 v%d, v%d, 16, v%d" % (base + j, 41 + 2 * j, 40 + 2 * j))
    A("buffer_load_dwordx4 v[32:35], v%d, %s, 0 offen offset:256" % (o8, s(sW, 4)))
    A("s_waitcnt vmcnt(0)")
    A("s_lshl_b32 %s, %s, 10" % (s(sT), s(sWV)))
    A("v_add_u32 v36, %s, v%d" % (s(sT), vL16))
    A("ds_write_b128 v36, v[24:27] offset:%d" % L_M)
    A("ds_write_b128 v36, v[28:31] offset:%d" % (L_M + 4096))
    A("ds_write_b128 v%d, v[32:35] offset:%d" % (vL16, L_M + 8192))
    A("s_waitcnt lgkmcnt(0)")
    A("s_barrier")

DUMPMAP = []
SCALE_LOG2E = 0.08838834764831845 * 1.4426950408889634
import struct
def f2u(x): return struct.unpack("<I", struct.pack("<f", x))[0]

def smf(A, acc, a_op, b_spec):
    A("v_smfmac_f32_16x16x64_bf16 %s, %s, %s, v%d" % (v(acc, 4), v(a_op, 4), RR(b_spec, 8), vIdx))

def zero_regs(A, r0, n):
    assert r0 % 2 == 0 and n % 2 == 0
    for i in range(0, n, 2): A("v_mov_b64 %s, 0" % v(r0 + i, 2))

DBGBUF = 0x4000000
PFD = 2
DELAY_P = 0
DELAY_M = 0
def emit_rec_loop(A, fail, fast=True, prof=False, nsteps=64, dump=None, exp=(), pubflag=False):
    st = "" if fast else " sc1"
    WSR = s(sWS, 4)
    lg = Q(A, "lgkmcnt"); vm = Q(A, "vmcnt")
    def stamp(i):
        if prof:
            A("s_memtime %s" % s(sPROF + 14, 2))
            A("s_waitcnt lgkmcnt(0)")
            A("s_sub_u32 %s, %s, %s" % (s(sPROF + 12), s(sPROF + 14), s(sPROF + 13)))
            A("s_add_u32 %s, %s, %s" % (s(sPROF + i), s(sPROF + i), s(sPROF + 12)))
            A("s_mov_b32 %s, %s" % (s(sPROF + 13), s(sPROF + 14)))
            lg.q = []
    dumpslot = [0]
    def dbg(tag, regs):
        if dump is None: return
        lab = A.newlab("dump")
        A.c("lint-skip-begin")
        A("s_cmp_eq_u32 %s, %d" % (s(sS), dump))
        A("s_cbranch_scc0 %s" % lab)
        A("s_lshl_b32 s60, %s, 2" % s(sH))
        A("s_add_u32 s60, s60, %s" % s(sWV))
        A("s_lshl_b32 s60, s60, 15")
        A("s_add_u32 s60, s60, 0x%x" % DBGBUF)
        A("s_nop 7")
        A("s_nop 7")
        A("s_waitcnt vmcnt(0) lgkmcnt(0)")
        A("v_lshrrev_b32 v%d, 2, v%d" % (vDum, vL16))
        for r in regs:
            A("s_add_u32 s61, s60, %d" % (dumpslot[0] * 256))
            A("buffer_store_dword v%d, v%d, %s, s61 offen" % (r, vDum, WSR))
            DUMPMAP.append((tag, r, dumpslot[0])); dumpslot[0] += 1
        A("s_waitcnt vmcnt(0)")
        A.label(lab)
        A.c("lint-skip-end")
    A.c("=== REC main loop")
    A("s_mov_b32 %s, 0" % s(sS))
    A("s_lshl_b32 %s, %s, 13" % (s(sT), s(sH)))
    A("s_lshl_b32 %s, %s, 11" % (s(sT + 1), s(sWV)))
    A("s_add_u32 %s, %s, %s" % (s(sKoff), s(sT), s(sT + 1)))
    A("s_add_u32 %s, %s, 0x%x" % (s(sVoff), s(sKoff), VOP))
    A("s_lshl_b32 %s, %s, 12" % (s(sT), s(sH)))
    A("s_lshl_b32 %s, %s, 10" % (s(sT + 2), s(sWV)))
    A("s_add_u32 %s, %s, %s" % (s(sKM), s(sT), s(sT + 2)))
    A("s_add_u32 %s, %s, 0x%x" % (s(sKM), s(sKM), KMEM))
    A("s_lshl_b32 %s, %s, 11" % (s(sT), s(sH)))
    A("s_lshl_b32 %s, %s, 9" % (s(sT + 2), s(sWV)))
    A("s_add_u32 %s, %s, %s" % (s(sVM), s(sT), s(sT + 2)))
    A("s_add_u32 %s, %s, 0x%x" % (s(sVM), s(sVM), VMEM))
    A("s_lshl_b32 %s, %s, 2" % (s(sT + 4), s(sH)))
    A("s_add_u32 %s, %s, %s" % (s(sT + 4), s(sT + 4), s(sWV)))
    A("s_lshl_b32 %s, %s, 6" % (s(sT + 4), s(sT + 4)))
    A("s_add_u32 %s, %s, 0x%x" % (s(sPRc), s(sT + 4), PBUF))
    A("s_add_u32 %s, %s, 0x%x" % (s(sPRo), s(sT + 4), PBUF + PSLOT))
    A("s_lshl_b32 %s, %s, 6" % (s(sT + 4), s(sH)))
    A("s_add_u32 %s, %s, 0x%x" % (s(sPXc), s(sT + 4), PBUF + 8192))
    A("s_add_u32 %s, %s, 0x%x" % (s(sPXo), s(sT + 4), PBUF + PSLOT + 8192))
    A("s_cmp_lt_u32 %s, 16" % s(sH))
    A("s_cselect_b32 %s, 1, 0" % s(sXTRA))
    A("s_cmp_eq_u32 %s, 0" % s(sWV))
    A("s_cselect_b32 %s, %s, 0" % (s(sXTRA), s(sXTRA)))
    A("s_mul_i32 %s, %s, %d" % (s(sT), s(sH), PSTR))
    A("s_add_u32 %s, %s, %s" % (s(sT + 2), s(sT), s(sT + 1)))
    A("s_add_u32 %s, %s, 0x%x" % (s(sPWc), s(sT + 2), PBUF))
    A("s_add_u32 %s, %s, 0x%x" % (s(sPWo), s(sT + 2), PBUF + PSLOT))
    A("s_lshl_b32 %s, %s, 8" % (s(sT + 3), s(sWV)))
    A("s_add_u32 %s, %s, 8192" % (s(sM3), s(sT + 3)))
    A("s_add_u32 %s, %s, %s" % (s(sT + 3), s(sT + 3), s(sT)))
    A("s_add_u32 %s, %s, 0x%x" % (s(sP9c), s(sT + 3), PBUF + 8192))
    A("s_add_u32 %s, %s, 0x%x" % (s(sP9o), s(sT + 3), PBUF + PSLOT + 8192))
    A("s_lshl_b32 %s, %s, 2" % (s(sFKM), s(sH))); A("s_add_u32 %s, %s, %s" % (s(sFKM), s(sFKM), s(sWV)))
    A("s_lshl_b32 %s, %s, 2" % (s(sFKM), s(sFKM))); A("s_add_u32 %s, %s, 0x%x" % (s(sFKM), s(sFKM), F_KM))
    A("s_mul_i32 %s, %s, 1280" % (s(sSTASH), s(sWV))); A("s_add_u32 %s, %s, %d" % (s(sSTASH), s(sSTASH), L_S))
    A("s_lshl_b32 %s, %s, 10" % (s(sMW1), s(sWV)))
    A("s_mov_b32 %s, 0x%x" % (s(sMc), MBUF + 9216))
    A("s_mov_b32 %s, 0x%x" % (s(sMo), MBUF))
    if prof:
        for i in range(12): A("s_mov_b32 %s, 0" % s(sPROF + i))
        A("s_memtime %s" % s(sPROF + 14, 2))
        A("s_waitcnt lgkmcnt(0)")
        A("s_mov_b32 %s, %s" % (s(sPROF + 13), s(sPROF + 14)))
    zero_regs(A, 44, 16)
    def loadKV():
        A("buffer_load_dwordx4 %s, v%d, %s, %s offen" % (v(Ks, 4), vL16, WSR, s(sKoff))); vm.add("ks")
    loadKV()
    top = A.newlab("rec_top"); done = A.newlab("rec_done")
    m0 = A.mark()
    A.label(top)
    vm.q = ["ks"]
    def rdM(t, tag):
        A("ds_read_b128 %s, v%d offset:%d" % (v(Msp[t % 3], 4), vL16, L_M + t * 1024)); lg.add(tag)
    def rdLWh(buf, tile, half, tag):
        A("ds_read_b128 %s, v%d offset:%d" % (v(buf + 4 * half, 4), vLW, tile * 2048 + 1024 * half)); lg.add(tag)
    LW = lambda i: LWA if i % 2 == 0 else LWB
    A.c("SEC qk")
    rdM(0, ("mq", 0)); rdLWh(LWA, 0, 0, ("lw", 0)); rdLWh(LWA, 0, 1, ("lw", 0)); rdM(1, ("mq", 1)); rdM(2, ("mq", 2))
    SENT = 60
    A("v_mov_b64 v[60:61], -1")
    A("v_mov_b64 v[62:63], -1")
    def vfill(t):
        if t == 0: A("buffer_load_dwordx4 %s, v%d, %s, %s offen offset:1024" % (v(Ks + 4, 4), vL16, WSR, s(sKoff))); vm.add("ks")
        if t == 1: A("buffer_load_dwordx4 %s, v%d, %s, %s offen" % (v(Vs, 4), vL16, WSR, s(sVoff))); vm.add("vs")
        if t == 2: A("buffer_load_dwordx4 %s, v%d, %s, %s offen offset:1024" % (v(Vs + 4, 4), vL16, WSR, s(sVoff))); vm.add("vs")
        if t == 3: A("buffer_store_dwordx4 %s, v%d, %s, %s offen%s" % (v(SENT, 4), vL16, WSR, s(sPWo), st)); vm.add("rst")
        if t == 4: A("buffer_store_dwordx4 %s, v%d, %s, %s offen offset:1024%s" % (v(SENT, 4), vL16, WSR, s(sPWo), st)); vm.add("rst")
        if t == 5: A("buffer_store_dwordx2 %s, v%d, %s, %s offen%s" % (v(SENT, 2), vP9, WSR, s(sP9o), st)); vm.add("rst")
        if t == 6: A("buffer_store_dword v%d, v%d, %s, %s offen%s" % (SENT, vMst, WSR, s(sMc), st)); vm.add("rst")
        if t == 7: A("buffer_store_dword v%d, v%d, %s, %s offen%s" % (SENT, vMx, WSR, s(sMc), st)); vm.add("rst")
    for t in range(9):
        lg.wait(("mq", t))
        b = Msp[t % 3]
        smf(A, accQ[0], b, Wq_t(t, 0))
        if t + 1 < 9: rdLWh(LW(t + 1), t + 1, 0, ("lw", t + 1))
        else: zero_regs(A, 72, 2)
        smf(A, accQ[1], b, Wq_t(t, 1))
        if t + 1 < 9: rdLWh(LW(t + 1), t + 1, 1, ("lw", t + 1))
        else: zero_regs(A, 74, 2)
        smf(A, accQ[2], b, Wk0_t(t))
        vfill(t)
        if t == 8: zero_regs(A, 76, 2)
        lg.wait(("lw", t))
        smf(A, accQ[3], b, ('v', LW(t)))
        if t + 3 < 9: rdM(t + 3, ("mq", t + 3))
        else: rdM(t - 6, ("mv", t - 6))
    zero_regs(A, 78, 2)
    stamp(0)
    def VS(i):
        t, et = i // 2, i % 2
        if et == 0: lg.wait(("mv", t))
        smf(A, accV[et], Msp[t % 3], Wv_t(t, et))
        if et == 1 and t + 3 < 9: rdM(t + 3, ("mv", t + 3))
    A.c("SEC fix")
    A("s_nop 0")
    VS(0); VS(1)
    for x in (44, 48, 52, 56):
        A("v_add_f32 v%d, v%d, v%d" % (x, x, x + 2)); A("v_add_f32 v%d, v%d, v%d" % (x + 1, x + 1, x + 3))
    A("v_cvt_pk_bf16_f32 v44, v44, v45")
    A("v_cvt_pk_bf16_f32 v48, v48, v49")
    A("v_cvt_pk_bf16_f32 v45, v52, v53")
    A("v_cvt_pk_bf16_f32 v49, v56, v57")
    A("s_nop 1")
    A("v_mfma_f32_16x16x16_bf16 v[52:55], v[44:45], %s, 0" % v(vSel, 2))
    A("v_mfma_f32_16x16x16_bf16 v[56:59], v[48:49], %s, 0" % v(vSel, 2))
    VS(2); VS(3)
    A("s_nop 3")
    A("v_cvt_pk_bf16_f32 v44, v52, v53")
    A("v_cvt_pk_bf16_f32 v45, v54, v55")
    A("v_cvt_pk_bf16_f32 v46, v56, v57")
    A("v_cvt_pk_bf16_f32 v47, v58, v59")
    A("v_xor_b32 v60, 128, v%d" % vSw)
    vm.wait("ks")
    A("s_nop 0")
    A("v_mfma_f32_16x16x32_bf16 v[48:51], v[44:47], v[44:47], 0")
    A("v_mfma_f32_16x16x32_bf16 v[52:55], %s, v[44:47], 0" % v(Ks, 4))
    A("v_mfma_f32_16x16x32_bf16 v[56:59], %s, v[44:47], 0" % v(Ks + 4, 4))
    VS(4); VS(5)
    A("s_mov_b64 exec, %s" % s(sEXC, 2))
    A("s_nop 2")
    A("ds_write_b64 v%d, v[48:49]" % vSw0); lg.add("sw")
    A("ds_write_b128 v%d, v[52:55] offset:256" % vSw); lg.add("sw")
    A("ds_write_b128 v60, v[56:59] offset:768"); lg.add("sw")
    A("s_mov_b64 exec, -1")
    if "nopub" not in exp and "nokm" not in exp:
        A("buffer_store_dwordx4 v[44:47], v%d, %s, %s offen%s" % (vL16, WSR, s(sKM), "" if "plainpub" in exp else " sc1")); vm.add("km")
    if pubflag:
        A("v_mov_b32 v61, %s" % s(sS))
        A("buffer_store_dword v61, off, %s, %s sc1" % (WSR, s(sFKM))); vm.add("flg")
    if "nopf" not in exp:
        A("s_add_u32 %s, %s, 0x%x" % (s(sT + 5), s(sKoff), PFD * 32 * 8192))
        A("buffer_load_dword v%d, v%d, %s, %s offen" % (vDum, vPf, WSR, s(sT + 5))); vm.add("pf")
    VS(6); VS(7)
    lg.waitall()
    A("s_barrier")
    stamp(1)
    A.c("SEC soft")
    RA = [52, 56, 16, 20]; R0 = [48, 49, 50, 51]
    for w_ in range(4):
        A("ds_read_b128 %s, v%d offset:%d" % (v(RA[w_], 4), vSr, 1280 * w_)); lg.add("sr")
    for w_ in range(4):
        A("ds_read_b32 v%d, v%d offset:%d" % (R0[w_], vSr0, 1280 * w_)); lg.add("sr")
    VS(8); VS(9); VS(10); VS(11)
    lg.wait("sr")
    for i in range(4): A("v_add_f32 v%d, v%d, v%d" % (52 + i, 52 + i, 56 + i))
    for i in range(4): A("v_add_f32 v%d, v%d, v%d" % (16 + i, 16 + i, 20 + i))
    A("v_add_f32 v48, v48, v49")
    A("v_add_f32 v50, v50, v51")
    for i in range(4): A("v_add_f32 v%d, v%d, v%d" % (52 + i, 52 + i, 16 + i))
    A("v_add_f32 v48, v48, v50")
    dbg("S", [48, 52, 53, 54, 55])
    A("v_max3_f32 v44, v52, v53, v54")
    A("v_max3_f32 v44, v44, v55, v48")
    VS(12)
    A("s_nop 0")
    A("v_max_f32_dpp v44, v44, v44 quad_perm:[2,3,0,1] row_mask:0xf bank_mask:0xf")
    A("v_mov_b32 v45, v44")
    VS(13)
    A("s_nop 0")
    A("v_permlane16_swap_b32 v44, v45")
    A("v_max_f32 v44, v44, v45")
    A("v_mov_b32 v45, v44")
    VS(14)
    A("s_nop 0")
    A("v_permlane32_swap_b32 v44, v45")
    A("v_max_f32 v44, v44, v45")
    A("s_mov_b32 %s, 0x%x" % (s(sT + 6), f2u(SCALE_LOG2E)))
    A("v_mul_f32 v44, %s, v44" % s(sT + 6))
    vals = [52, 53, 54, 55, 48]
    for r in vals: A("v_fma_f32 v%d, v%d, %s, -v44" % (r, r, s(sT + 6)))
    for r in vals: A("v_exp_f32 v%d, v%d" % (r, r))
    for i in range(4): A("v_mov_b32 v%d, 0x3f803f80" % (44 + i))
    VS(15)
    A("v_cvt_pk_bf16_f32 v16, v52, v53")
    A("v_cvt_pk_bf16_f32 v17, v54, v55")
    A("v_mov_b32_dpp v49, v48 quad_perm:[2,3,0,1] row_mask:0xf bank_mask:0xf")
    VS(16)
    A("v_mov_b32_dpp v18, v16 quad_perm:[2,3,0,1] row_mask:0xf bank_mask:0xf")
    A("v_mov_b32_dpp v19, v17 quad_perm:[2,3,0,1] row_mask:0xf bank_mask:0xf")
    A("v_cvt_pk_bf16_f32 v20, v48, v49")
    VS(17)
    A("v_cvt_pk_bf16_f32 v23, v48, v49")
    A("v_mov_b32 v21, 0")
    A("v_mov_b32 v22, 0")
    vm.wait("vs")
    A("s_nop 0")
    A("v_mfma_f32_16x16x32_bf16 v[48:51], v[44:47], v[16:19], 0")
    A("v_mfma_f32_16x16x32_bf16 v[52:55], %s, v[16:19], 0" % v(Vs, 4))
    A("v_add_f32 v72, v72, v74"); A("v_add_f32 v73, v73, v75")
    A("v_mfma_f32_16x16x32_bf16 v[56:59], %s, v[16:19], 0" % v(Vs + 4, 4))
    A("v_add_f32 v76, v76, v78"); A("v_add_f32 v77, v77, v79")
    A("v_cvt_pk_bf16_f32 v60, v72, v73")
    A("v_mfma_f32_16x16x16_bf16 v[48:51], v[44:45], v[20:21], v[48:51]")
    A("v_cvt_pk_bf16_f32 v61, v76, v77")
    A("v_add_u32 v%d, %d, v%d" % (vLW, L_W1 - L_V1, vLW))
    A("v_lshrrev_b32 v62, 1, v%d" % vL16)
    A("v_mfma_f32_16x16x16_bf16 v[52:55], v[60:61], v[20:21], v[52:55]")
    A("v_mfma_f32_16x16x16_bf16 v[56:59], v[60:61], v[22:23], v[56:59]")
    if "nopub" not in exp and "nokm" not in exp:
        A("buffer_store_dwordx2 v[60:61], v62, %s, %s offen%s" % (WSR, s(sVM), "" if "plainpub" in exp else " sc1")); vm.add("vmem")
    A("s_cmp_eq_u32 %s, %d" % (s(sS), nsteps - 1))
    A("s_cbranch_scc1 %s" % done)
    A.c("SEC oex")
    order = [8, 0, 1, 2, 3, 4, 5, 6, 7]
    rdLWh(LWA, order[0], 0, ("wo", 0)); rdLWh(LWA, order[0], 1, ("wo", 0))
    A("v_rcp_f32 v46, v48")
    rdLWh(LWB, order[1], 0, ("wo", 1)); rdLWh(LWB, order[1], 1, ("wo", 1))
    dbg("P", [16, 17, 18, 19, 20, 21, 22, 23, 46])
    dbg("oT", [52, 53, 54, 55, 56, 57, 58, 59])
    zero_regs(A, 24, 4)
    for i in range(8): A("v_mul_f32 v%d, v%d, v46" % (52 + i, 52 + i))
    A("v_cvt_pk_bf16_f32 v44, v52, v53")
    A("v_cvt_pk_bf16_f32 v45, v54, v55")
    A("v_cvt_pk_bf16_f32 v46, v56, v57")
    A("v_cvt_pk_bf16_f32 v47, v58, v59")
    A("s_mov_b64 exec, %s" % s(sEXC, 2))
    A("ds_write_b128 v%d, v[44:47]" % vOw); lg.add("ow")
    A("s_mov_b64 exec, -1")
    zero_regs(A, 28, 16)
    lg.waitall()
    A("s_barrier")
    stamp(2)
    A.c("SEC wo")
    A("ds_read_b128 v[52:55], v%d offset:%d" % (vL16, L_O)); lg.add("or0")
    A("ds_read_b128 v[56:59], v%d offset:%d" % (vL16, L_O + 1024)); lg.add("or1")
    zero_regs(A, 48, 4)
    zero_regs(A, 16, 8)
    zero_regs(A, 44, 4)
    A("v_mov_b32 v61, 0")
    dbg("Oop", [52, 53, 54, 55, 56, 57, 58, 59])
    acc = lambda tau: 16 + 4 * tau
    def post(i):
        tau = order[i]; x = acc(tau)
        A("v_add_f32 v%d, v%d, v%d" % (x, x, x + 2)); A("v_add_f32 v%d, v%d, v%d" % (x + 1, x + 1, x + 3))
        if tau == 8:
            A("v_cvt_pk_bf16_f32 v60, v48, v49")
        elif tau % 2 == 1:
            base = 16 if tau < 4 else 32
            j = (tau % 4) // 2
            A("v_cvt_pk_bf16_f32 v%d, v%d, v%d" % (base + j, acc(tau - 1), acc(tau))) if j == 0 else None
            A("v_cvt_pk_bf16_f32 v%d, v%d, v%d" % (base + 2 + j, acc(tau - 1) + 1, acc(tau) + 1))
            A("v_cvt_pk_bf16_f32 v%d, v%d, v%d" % (base + j, acc(tau - 1), acc(tau))) if j == 1 else None
    for i, tau in enumerate(order):
        if i == 0: lg.wait("or0")
        smf(A, acc(tau), 52, Wo0_t(tau))
        if i >= 1 and i + 1 < 9: rdLWh(LW(i + 1), order[i + 1], 1, ("wo", i + 1))
        if i == 0: lg.wait("or1")
        lg.wait(("wo", i))
        smf(A, acc(tau), 56, ('v', LW(i)))
        if i + 2 < 9: rdLWh(LW(i), order[i + 2], 0, ("wo", i + 2, 0))
        if i >= 2: post(i - 2)
        if i == 2:
            A("s_nop 1")
            A("v_mfma_f32_16x16x16_bf16 v[48:51], v[60:61], %s, 0" % v(vSel, 2))
        if i == 4:
            A("v_cvt_pk_bf16_f32 v60, v48, v49")
            A("v_cvt_pk_bf16_f32 v61, v50, v51")
            vm.wait("rst")
            A("buffer_store_dwordx2 v[60:61], v%d, %s, %s offen%s" % (vP9, WSR, s(sP9c), st)); vm.add("pst")
        if i == 6:
            A("buffer_store_dwordx4 v[16:19], v%d, %s, %s offen%s" % (vL16, WSR, s(sPWc), st)); vm.add("pst")
    A("v_add_u32 v%d, %d, v%d" % (vLW, -(L_W1 - L_V1) & 0xffffffff, vLW))
    A("s_nop 2")
    post(7)
    A("s_nop 1")
    post(8)
    dbg("Pout", [16, 17, 18, 19, 32, 33, 34, 35, 60, 61])
    A("buffer_store_dwordx4 v[32:35], v%d, %s, %s offen offset:1024%s" % (vL16, WSR, s(sPWc), st)); vm.add("pst")
    stamp(3)
    A.c("SEC pp")
    A("s_add_u32 %s, %s, %d" % (s(sT), s(sPRc), 16 * PSTR))
    A("s_add_u32 %s, %s, %d" % (s(sT + 1), s(sPXc), 16 * PSTR))
    def issueP():
        A("buffer_load_dwordx4 v[24:27], v%d, %s, %s offen sc1" % (vPL, WSR, s(sPRc)))
        A("buffer_load_dwordx4 v[28:31], v%d, %s, %s offen sc1" % (vPL, WSR, s(sT)))
        lab = A.newlab("nx")
        A("s_cmp_eq_u32 %s, 0" % s(sXTRA))
        A("s_cbranch_scc1 %s" % lab)
        A("buffer_load_dwordx4 v[52:55], v%d, %s, %s offen sc1" % (vPL, WSR, s(sPXc)))
        A("buffer_load_dwordx4 v[56:59], v%d, %s, %s offen sc1" % (vPL, WSR, s(sT + 1)))
        A.label(lab)
    A("v_mov_b32 v46, 0x3f80")
    A("v_mov_b32 v47, 0x3f800000")
    A("v_lshrrev_b32 v51, 2, v%d" % vL16)
    A("v_cndmask_b32 v46, v46, v47, %s" % s(sODD, 2))
    for q in range(4): A("v_cndmask_b32 v%d, 0, v46, %s" % (36 + q, s(sMQ + 2 * q, 2)))
    A("s_nop 1")
    for q in range(4): A("v_mov_b32_dpp v%d, v%d row_shr:8 row_mask:0xf bank_mask:0xf bound_ctrl:1" % (60 + q, 36 + q))
    for i in range(DELAY_P): A("s_nop 7")
    issueP()
    A("s_mov_b32 %s, %d" % (s(sSpin), SPIN_MAX))
    pl = A.newlab("p_poll"); pok = A.newlab("p_ok")
    A.label(pl)
    vm.waitall()
    A("v_max3_u32 v40, v24, v25, v26")
    A("v_max3_u32 v41, v27, v28, v29")
    A("v_max3_u32 v40, v40, v30, v31")
    xc = A.newlab("xchk")
    A("s_cmp_eq_u32 %s, 0" % s(sXTRA))
    A("s_cbranch_scc1 %s" % xc)
    A("v_max3_u32 v42, v52, v53, v54")
    A("v_max3_u32 v43, v55, v56, v57")
    A("v_max3_u32 v41, v41, v58, v59")
    A("v_max3_u32 v41, v41, v42, v43")
    A.label(xc)
    A("v_max_u32 v40, v40, v41")
    A("v_cmp_eq_u32 vcc, -1, v40")
    if "nosync" in exp: A("s_branch %s" % pok)
    A("s_cbranch_vccz %s" % pok)
    A.c("lint-skip-begin")
    issueP()
    if prof: A("s_add_u32 %s, %s, 1" % (s(sPROF + 8), s(sPROF + 8)))
    A("s_sub_u32 %s, %s, 1" % (s(sSpin), s(sSpin)))
    A("s_cmp_lg_u32 %s, 0" % s(sSpin))
    A("s_cbranch_scc1 %s" % pl)
    A("s_branch %s" % fail)
    A.c("lint-skip-end")
    A.label(pok)
    stamp(4)
    A.c("SEC red")
    A("v_mfma_f32_16x16x32_bf16 v[40:43], v[36:39], v[24:27], 0")
    A("v_mfma_f32_16x16x32_bf16 v[40:43], v[36:39], v[28:31], v[40:43]")
    xl = A.newlab("xtra")
    A("s_cmp_eq_u32 %s, 0" % s(sXTRA))
    A("s_cbranch_scc1 %s" % xl)
    A("v_mfma_f32_16x16x32_bf16 v[40:43], v[60:63], v[52:55], v[40:43]")
    A("v_mfma_f32_16x16x32_bf16 v[40:43], v[60:63], v[56:59], v[40:43]")
    A.label(xl)
    A("s_add_u32 %s, %s, %s" % (s(sT), s(sMc), s(sMW1)))
    A("s_add_u32 %s, %s, 4096" % (s(sT + 2), s(sT)))
    A("s_add_u32 %s, %s, %s" % (s(sT + 1), s(sMc), s(sM3)))
    A("s_add_u32 %s, %s, 1" % (s(sS), s(sS)))
    if "nokv" not in exp:
        A("s_add_u32 %s, %s, 0x%x" % (s(sKoff), s(sKoff), 32 * 8192))
        A("s_add_u32 %s, %s, 0x%x" % (s(sVoff), s(sVoff), 32 * 8192))
    A("s_add_u32 %s, %s, 0x%x" % (s(sKM), s(sKM), 32 * 4096))
    A("s_add_u32 %s, %s, 0x%x" % (s(sVM), s(sVM), 32 * 2048))
    if "nokv" in exp: A("s_nop 1")
    for r in range(4): A("v_add_f32_dpp v%d, v%d, v%d row_shl:4 row_mask:0xf bank_mask:0xf" % (44 + r, 40 + r, 40 + r))
    for r in range(4): A("v_add_f32_dpp v%d, v%d, v%d row_shl:8 row_mask:0xf bank_mask:0xf" % (44 + r, 44 + r, 44 + r))
    A("v_cvt_pk_bf16_f32 v44, v44, v45")
    A("v_cvt_pk_bf16_f32 v45, v46, v47")
    A("buffer_store_dword v44, v%d, %s, %s offen%s" % (vMst, WSR, s(sMc), st))
    A("buffer_store_dword v45, v%d, %s, %s offen%s" % (vMx, WSR, s(sMc), st))
    stamp(5)
    A.c("SEC mp")
    def issueM():
        A("buffer_load_dwordx4 v[32:35], v%d, %s, %s offen sc1" % (vL16, WSR, s(sT)))
        A("buffer_load_dwordx4 v[36:39], v%d, %s, %s offen sc1" % (vL16, WSR, s(sT + 2)))
        A("buffer_load_dword v40, v51, %s, %s offen sc1" % (WSR, s(sT + 1)))
    zero_regs(A, 44, 6)
    zero_regs(A, 52, 8)
    for i in range(DELAY_M): A("s_nop 7")
    issueM()
    A("s_mov_b32 %s, %d" % (s(sSpin), SPIN_MAX))
    ml = A.newlab("m_poll"); mok = A.newlab("m_ok")
    A.label(ml)
    A("s_waitcnt vmcnt(0)")
    A("v_max3_u32 v68, v32, v33, v34")
    A("v_max3_u32 v69, v35, v36, v37")
    A("v_max3_u32 v70, v38, v39, v40")
    A("v_max3_u32 v68, v68, v69, v70")
    A("v_cmp_eq_u32 vcc, -1, v68")
    if "nosync" in exp: A("s_branch %s" % mok)
    A("s_cbranch_vccz %s" % mok)
    A.c("lint-skip-begin")
    issueM()
    if prof: A("s_add_u32 %s, %s, 1" % (s(sPROF + 9), s(sPROF + 9)))
    A("s_sub_u32 %s, %s, 1" % (s(sSpin), s(sSpin)))
    A("s_cmp_lg_u32 %s, 0" % s(sSpin))
    A("s_cbranch_scc1 %s" % ml)
    A("s_branch %s" % fail)
    A.c("lint-skip-end")
    A.label(mok)
    stamp(6)
    vm.q = []
    A.c("SEC stage")
    A("s_lshl_b32 m0, %s, 10" % s(sWV))
    A("s_nop 0")
    for j in range(4): A("ds_write_addtid_b32 v%d offset:%d" % (32 + j, L_M + 256 * j))
    for j in range(4): A("ds_write_addtid_b32 v%d offset:%d" % (36 + j, L_M + 4096 + 256 * j))
    A("s_lshl_b32 m0, %s, 8" % s(sWV))
    A("s_nop 0")
    A("ds_write_addtid_b32 v40 offset:%d" % (L_M + 8192))
    loadKV()
    zero_regs(A, 50, 2)
    for a_, b_ in ((sPRc, sPRo), (sPWc, sPWo), (sP9c, sP9o), (sMc, sMo), (sPXc, sPXo)):
        A("s_mov_b32 %s, %s" % (s(sT), s(a_))); A("s_mov_b32 %s, %s" % (s(a_), s(b_))); A("s_mov_b32 %s, %s" % (s(b_), s(sT)))
    A("s_waitcnt lgkmcnt(0)")
    A("s_barrier")
    stamp(7)
    A("s_branch %s" % top)
    m1 = A.mark()
    A.label(done)
    A("s_waitcnt vmcnt(0) lgkmcnt(0)")
    if pubflag:
        A("v_mov_b32 v48, %d" % nsteps)
        A("buffer_store_dword v48, off, %s, %s sc1" % (WSR, s(sFKM)))
    return (m0, m1)

PROFBUF = 0x3E00000
def build_rec_test(prof=False, fast=True, nsteps=64, dump=None, exp=()):
    A = Asm()
    name = "rec_kernel"
    kstart(A, name)
    fail = "L_fail"; end = "L_end"
    A("s_cmp_ge_u32 s2, 256")
    A("s_cbranch_scc1 %s" % end)
    load_srd(A, sDBG, "dbg"); load_srd(A, sWS, "ws")
    A("v_lshrrev_b32 v1, 6, v0")
    A("s_nop 0")
    A("v_readfirstlane_b32 %s, v1" % s(sWV))
    emit_election(A, sDBG, sVX, sVT, sFAST, sBYTE, sT, fail)
    A("s_cmp_eq_u32 %s, 0" % s(sVX))
    A("s_cbranch_scc0 %s" % end)
    A("s_mov_b32 %s, %s" % (s(sH), s(sVT)))
    A("s_memrealtime s[96:97]")
    emit_rec_prologue(A, fail)
    emit_rec_consts(A)
    emit_rec_mem0(A)
    A("s_memrealtime s[98:99]")
    A("s_waitcnt lgkmcnt(0)")
    mm = emit_rec_loop(A, fail, fast=fast, prof=prof, nsteps=nsteps, dump=dump, exp=exp)
    A("s_memrealtime s[100:101]")
    A("s_waitcnt lgkmcnt(0)")
    A("s_sub_u32 %s, s98, s96" % s(sPROF + 10))
    A("s_sub_u32 %s, s100, s98" % s(sPROF + 11))
    for i in range(12): A("v_mov_b32 v%d, %s" % (16 + i, s(sPROF + i)))
    A("s_lshl_b32 %s, %s, 2" % (s(sT), s(sH)))
    A("s_add_u32 %s, %s, %s" % (s(sT), s(sT), s(sWV)))
    A("s_lshl_b32 %s, %s, 6" % (s(sT), s(sT)))
    A("s_add_u32 %s, %s, 0x%x" % (s(sT), s(sT), PROFBUF))
    A("v_mov_b32 v1, 0")
    A("s_mov_b64 exec, 1")
    for i in range(3): A("buffer_store_dwordx4 %s, v1, %s, %s offen offset:%d" % (v(16 + 4 * i, 4), s(sWS, 4), s(sT), 16 * i))
    A("s_endpgm")
    A.label(fail)
    A("v_mov_b32 v1, 0xf0")
    A("v_mov_b32 v2, 0xdead")
    A("s_mov_b64 exec, 1")
    A("buffer_store_dword v2, v1, %s, 0 offen sc1" % s(sDBG, 4))
    A.label(end)
    A("s_endpgm")
    body = A.lines[mm[0]:mm[1]]
    probs = lint(A.lines, "rec-linear", verbose=True) + lint(body + body, "rec-loop2", verbose=True)
    txt = HDR + A.text() + '.section .rodata,"a"\n' + kdesc(name)
    return txt, name, probs

if __name__ == "__main__":
    import sys
    from hiprun import add_metadata, assemble
    txt, name, probs = build_rec_test(prof=True)
    open("rec.s", "w").write(add_metadata(txt, [(name, 256)], 120))
    assemble("rec.s", "rec.co")
    print("assembled, lines:", txt.count("\n"))
```

```python
from gen_common import *
import gen_rec as gr, gen_g as gg, gen_pipe as gp

NAME = "sequential_preLN__memory_aug_recurrent_mem_tr__mixer_s_mlp__prompt_kernel"
sRANK = 23
B_INIT, B_KV, B_Q = 0x40, 0x20, 0x10

def set_byte(A, sDBG, sBYTE, bit, sWV, tv):
    A("s_waitcnt vmcnt(0)"); A("s_barrier")
    A("s_or_b32 %s, %s, 0x%x" % (s(sBYTE), s(sBYTE), bit))
    sk = A.newlab("sb")
    A("s_cmp_eq_u32 %s, 0" % s(sWV)); A("s_cbranch_scc0 %s" % sk)
    A("v_mov_b32 v%d, s2" % tv); A("v_mov_b32 v%d, %s" % (tv + 1, s(sBYTE)))
    A("s_mov_b64 exec, 1")
    A("buffer_store_byte v%d, v%d, %s, 0 offen sc1" % (tv + 1, tv, s(sDBG, 4)))
    A("s_mov_b64 exec, -1")
    A.label(sk)

def wait_bytes(A, sDBG, bits_all, bits_workers, fail, tv, st, fastreg, vxself=None):
    lp = A.newlab("wb"); ok = A.newlab("wb_ok")
    A("v_mbcnt_lo_u32_b32 v%d, -1, 0" % tv); A("v_mbcnt_hi_u32_b32 v%d, -1, v%d" % (tv, tv))
    A("v_lshlrev_b32 v%d, 2, v%d" % (tv + 1, tv))
    A("s_mov_b32 %s, %d" % (s(st), SPIN_MAX))
    A.label(lp)
    A("buffer_load_dword v%d, v%d, %s, 0 offen sc1" % (tv + 2, tv + 1, s(sDBG, 4)))
    A("s_waitcnt vmcnt(0)")
    A("v_mov_b32 v%d, 0" % (tv + 3))
    for b in range(4):
        A("v_bfe_u32 v%d, v%d, %d, 8" % (tv + 4, tv + 2, 8 * b))
        A("v_and_b32 v%d, 15, v%d" % (tv + 5, tv + 4))
        A("v_cmp_ne_u32 vcc, 0, v%d" % (tv + 5))
        A("v_cmp_le_u32 %s, 8, v%d" % (s(st + 2, 2), tv))
        A("s_cmp_eq_u32 %s, 1" % s(fastreg))
        A("s_cselect_b64 vcc, vcc, %s" % s(st + 2, 2))
        A("v_mov_b32 v%d, %d" % (tv + 5, bits_all)); A("v_mov_b32 v%d, %d" % (tv + 6, bits_all | bits_workers))
        A("v_cndmask_b32 v%d, v%d, v%d, vcc" % (tv + 5, tv + 5, tv + 6))
        A("v_and_b32 v%d, v%d, v%d" % (tv + 4, tv + 4, tv + 5)); A("v_xor_b32 v%d, v%d, v%d" % (tv + 4, tv + 4, tv + 5))
        A("v_or_b32 v%d, v%d, v%d" % (tv + 3, tv + 3, tv + 4))
    A("v_cmp_ne_u32 vcc, 0, v%d" % (tv + 3))
    A("s_cbranch_vccz %s" % ok)
    A("s_sleep 4")
    A("s_sub_u32 %s, %s, 1" % (s(st), s(st))); A("s_cmp_lg_u32 %s, 0" % s(st)); A("s_cbranch_scc1 %s" % lp)
    A("s_branch %s" % fail)
    A.label(ok)

def build(force_slow=False, timing=False, opts=()):
    gr.DELAY_P, gr.DELAY_M = 7, 4
    if not timing: gp.SLEEP = 8
    A = Asm(); kstart(A, NAME)
    fail, end = "L_fail", "L_end"
    sDBG, sWS, sWV, sFAST, sVX, sVT, sBYTE, sT = 12, 4, 17, 19, 20, 21, 22, 24
    A("s_cmp_ge_u32 s2, 256"); A("s_cbranch_scc1 %s" % end)
    if timing: A("s_memrealtime s[100:101]")
    load_srd(A, sDBG, "dbg"); load_srd(A, sWS, "ws")
    A("v_lshrrev_b32 v1, 6, v0"); A("s_nop 0"); A("v_readfirstlane_b32 %s, v1" % s(sWV))
    emit_election(A, sDBG, sVX, sVT, sFAST, sBYTE, sT, fail)
    if force_slow:
        A("s_mov_b32 %s, 0" % s(sFAST)); A("s_lshr_b32 %s, s2, 5" % s(sVX)); A("s_and_b32 %s, s2, 31" % s(sVT))
    worker = "L_worker"
    A("s_cmp_eq_u32 %s, 0" % s(sVX)); A("s_cbranch_scc0 %s" % worker)
    A.c("################ recurrence group")
    A("s_mov_b32 %s, %s" % (s(gr.sH), s(sVT)))
    A("v_mov_b32 v2, -1"); A("v_mov_b32 v3, -1"); A("v_mov_b32 v4, -1"); A("v_mov_b32 v5, -1")
    A("v_lshlrev_b32 v1, 4, v0")
    A("s_mul_i32 %s, %s, %d" % (s(sT), s(gr.sH), PSTR)); A("s_add_u32 %s, %s, 0x%x" % (s(sT), s(sT), PBUF))
    for slot in range(2):
        for part in range(2):
            A("s_add_u32 %s, %s, %d" % (s(sT + 1), s(sT), slot * PSLOT + part * 4096))
            A("buffer_store_dwordx4 v[2:5], v1, %s, %s offen sc1" % (s(sWS, 4), s(sT + 1)))
        A("s_add_u32 %s, %s, %d" % (s(sT + 1), s(sT), slot * PSLOT + 8192))
        A("v_cmp_gt_u32 vcc, 1024, v1"); A("v_mov_b32 v6, 0x40000000"); A("s_nop 0"); A("v_cndmask_b32 v7, v6, v1, vcc")
        A("buffer_store_dwordx4 v[2:5], v7, %s, %s offen sc1" % (s(sWS, 4), s(sT + 1)))
    A("s_mul_i32 %s, %s, 576" % (s(sT), s(gr.sH))); A("s_add_u32 %s, %s, 0x%x" % (s(sT), s(sT), MBUF))
    A("v_cmp_gt_u32 vcc, 576, v1"); A("v_mov_b32 v6, 0x40000000"); A("s_nop 0"); A("v_cndmask_b32 v7, v6, v1, vcc")
    A("buffer_store_dwordx4 v[2:5], v7, %s, %s offen sc1" % (s(sWS, 4), s(sT)))
    set_byte(A, sDBG, sBYTE, B_INIT, sWV, 8)
    gr.emit_rec_prologue(A, fail)
    gr.emit_rec_consts(A)
    gr.emit_rec_mem0(A)
    wait_bytes(A, sDBG, B_INIT, B_KV, fail, 16, sT, sFAST)
    if timing: A("s_memrealtime s[96:97]"); A("s_memtime s[94:95]"); A("s_waitcnt lgkmcnt(0)"); A("s_mov_b32 s97, s94")
    slow = A.newlab("rec_slow"); rdone = A.newlab("rec_alldone")
    A("s_cmp_eq_u32 %s, 1" % s(sFAST)); A("s_cbranch_scc0 %s" % slow)
    mf = gr.emit_rec_loop(A, fail, fast=True, pubflag=True, exp=opts)
    A("s_branch %s" % rdone)
    A.label(slow)
    ms = gr.emit_rec_loop(A, fail, fast=False, pubflag=True)
    A.label(rdone)
    def tstamp(slot, wv=0):
        if not timing: return
        A("s_memrealtime s[98:99]"); A("s_waitcnt lgkmcnt(0)")
        A("s_sub_u32 s98, s98, s100"); A("s_sub_u32 s96, s96, s100")
        A("v_mov_b32 v16, s96"); A("v_mov_b32 v17, s98")
        A("s_lshl_b32 s24, s2, 4"); A("s_add_u32 s24, s24, 0x%x" % (FLG + 0x2000))
        A("v_mov_b32 v18, %s" % s(sRANK if slot else sVT)); A("v_mov_b32 v19, %d" % (slot + 1))
        A("s_cmp_eq_u32 %s, %d" % (s(sWV), wv)); lab = A.newlab("ts"); A("s_cbranch_scc0 %s" % lab)
        A("v_mov_b32 v1, 0"); A("s_mov_b64 exec, 1"); A("buffer_store_dwordx4 v[16:19], v1, %s, s24 offen" % s(sWS, 4))
        A.label(lab)
    if timing:
        A("s_memtime s[94:95]"); A("s_waitcnt lgkmcnt(0)"); A("s_sub_u32 %s, s94, s97" % s(sVT))
    tstamp(0)
    A("s_endpgm")
    A.label(worker)
    A.c("################ workers")
    A("s_sub_u32 %s, %s, 1" % (s(sRANK), s(sVX))); A("s_lshl_b32 %s, %s, 5" % (s(sRANK), s(sRANK))); A("s_add_u32 %s, %s, %s" % (s(sRANK), s(sRANK), s(sVT)))
    sk = A.newlab("noclr")
    A("s_cmp_eq_u32 %s, 0" % s(sRANK)); A("s_cbranch_scc0 %s" % sk)
    A("v_lshlrev_b32 v1, 4, v0"); A("v_mov_b64 v[2:3], 0"); A("v_mov_b64 v[4:5], 0"); A("s_mov_b32 %s, 0x%x" % (s(sT), FLG))
    A("buffer_store_dwordx4 v[2:5], v1, %s, %s offen sc1" % (s(sWS, 4), s(sT)))
    A("s_add_u32 %s, %s, 4096" % (s(sT), s(sT)))
    A("buffer_store_dwordx4 v[2:5], v1, %s, %s offen sc1" % (s(sWS, 4), s(sT)))
    A.label(sk)
    set_byte(A, sDBG, sBYTE, B_INIT, sWV, 8)
    A("s_and_b32 %s, %s, 7" % (s(gg.gTG), s(sVT)))
    A("s_sub_u32 %s, %s, 1" % (s(gg.gCG), s(sVX))); A("s_lshl_b32 %s, %s, 2" % (s(gg.gCG), s(gg.gCG)))
    A("s_lshr_b32 %s, %s, 3" % (s(sT), s(sVT))); A("s_add_u32 %s, %s, %s" % (s(gg.gCG), s(gg.gCG), s(sT)))
    if "gtrace" in opts:
        def gtr(A_, what):
            lab = A_.newlab("gtr")
            A_("s_cmp_eq_u32 %s, 0" % s(sWV)); A_("s_cbranch_scc0 %s" % lab)
            A_.c("lint-skip-begin")
            A_("s_memrealtime s[98:99]"); A_("s_waitcnt lgkmcnt(0)"); A_("s_sub_u32 s98, s98, s100")
            if what == "ln": A_("s_mov_b32 s99, 0")
            else:
                A_("s_lshl_b32 s99, %s, 1" % s(gg.gI)); A_("s_add_u32 s99, s99, %d" % (1 if what == "ready" else 2))
            A_("s_lshl_b32 s99, s99, 2"); A_("s_lshl_b32 s97, s2, 7"); A_("s_add_u32 s99, s99, s97"); A_("s_add_u32 s99, s99, 0x%x" % (FLG + 0x10000))
            A_("v_mov_b32 v56, s98"); A_("buffer_store_dword v56, off, %s, s99" % s(sWS, 4))
            A_.c("lint-skip-end")
            A_.label(lab)
        gg.GTRACE = gtr
    else: gg.GTRACE = None
    gg.emit_g_ln(A)
    if gg.GTRACE: gg.GTRACE(A, "ln")
    marks = gg.emit_g_gemm(A, kvflag=lambda A_: set_byte(A_, sDBG, sBYTE, B_KV, sWV, 8))
    set_byte(A, sDBG, sBYTE, B_Q, sWV, 8)
    if timing: A("s_memrealtime s[96:97]"); A("s_waitcnt lgkmcnt(0)")
    roles = [("r12", 64, gp.emit_r12), ("r3", 32, gp.emit_r3w), ("r4", 18, gp.emit_r4), ("r5", 18, gp.emit_r5), ("r67", 72, gp.emit_r67), ("r8", 20, gp.emit_r8i)]
    A("s_mov_b32 %s, 0" % s(gp.pPEND))
    if "nopipe" in opts:
        tstamp(1); A("s_endpgm")
    base = 0; labs = []
    for nm, cnt, fn in roles:
        lab = "L_role_" + nm; labs.append(lab)
        A("s_cmp_lt_u32 %s, %d" % (s(sRANK), base + cnt)); A("s_cbranch_scc1 %s" % lab)
        base += cnt
    A("s_endpgm")
    base = 0; rmarks = []
    for (nm, cnt, fn), lab in zip(roles, labs):
        A.label(lab)
        A("s_sub_u32 %s, %s, %d" % (s(gp.pID), s(sRANK), base))
        hv = {"r12": 232, "r67": 212}.get(nm, 232)
        rmarks.append((nm, fn(A, fail, hook=lambda A_, nm=nm, hv=hv: wait_bytes(A_, sDBG, B_INIT, B_Q if nm == "r12" else 0, fail, hv, sT, sFAST))))
        tstamp(1, 3 if nm in ("r3", "r8") else 0)
        A("s_endpgm")
        base += cnt
    A.label(fail)
    A("s_mov_b64 exec, 1"); A("v_mov_b32 v1, 0"); A("v_mov_b32 v2, 0xdead"); A("s_mov_b32 s24, 0x%x" % (FLG + 0xfff0))
    A("buffer_store_dword v2, v1, %s, s24 offen sc1" % s(sWS, 4))
    A.label(end)
    A("s_endpgm")
    probs = []
    for (m0, m1), nm in ((mf, "rec-fast"), (ms, "rec-slow")): probs += lint(A.lines[m0:m1] * 2, nm, verbose=False)
    for m0, m1 in marks: probs += lint(A.lines[m0:m1] * 2, "g-loop", verbose=False)
    for nm, (m0, m1) in rmarks: probs += lint(A.lines[m0:m1] * 2, nm, verbose=False)
    lin = lint(A.lines, "linear", verbose=False)
    probs += [p for p in lin if "HAZARD" in p]
    for p in probs[:20]: print(p)
    hdr = open("cdna_kernels/%s.s.ref" % NAME[:-7]).read().split("; Override launch geometry")[0]
    hdr += "; @launch grid=(256,1,1) block=(256,1,1) lds=163840\n"
    txt = hdr + HDR + A.text() + '.section .rodata,"a"\n' + kdesc(NAME)
    return txt, probs

if __name__ == "__main__":
    import sys
    txt, probs = build(force_slow="slow" in sys.argv, timing="timing" in sys.argv)
    out = "cdna_kernels/%s.s" % NAME[:-7] if "final" in sys.argv else "mega.s"
    open(out, "w").write(txt)
    print("problems:", len(probs), "bytes:", len(txt), "->", out)
    import subprocess
    r = subprocess.run(["clang", "-x", "assembler", "-target", "amdgcn-amd-amdhsa", "-mcpu=gfx950", "-c", out, "-o", "mega_check.o"], capture_output=True, text=True)
    print("assemble:", "OK" if r.returncode == 0 else r.stderr[:1500])
```

```python
from asmlib import *
from layout import *

HDR = '.amdgcn_target "amdgcn-amd-amdhsa--gfx950"\n.text\n'

KA = dict(x=0, mem0=8, Wq=16, Wk=24, Wv=32, Wo=40, seg=48, Bx=56, w1=64, w2=72, w3=80, w4=88, out=96, dbg=104, ws=112)
SZ = dict(x=2048*576*2, mem0=8*576*2, Wq=576*4096*2, Wk=576*4096*2, Wv=576*4096*2, Wo=4096*576*2,
          w1=576*576*2, w2=576*576*2, w3=576*4608*2, w4=4608*576*2, out=2048*576*2, dbg=256, ws=WS_BYTES)

def kdesc(name, vgpr=512, acc=256, sgpr=102):
    return r'''.p2align 6
.amdhsa_kernel {name}
  .amdhsa_next_free_vgpr {vgpr}
  .amdhsa_next_free_sgpr {sgpr}
  .amdhsa_accum_offset {acc}
  .amdhsa_group_segment_fixed_size 0
  .amdhsa_kernarg_size 120
  .amdhsa_user_sgpr_count 2
  .amdhsa_user_sgpr_kernarg_segment_ptr 1
  .amdhsa_system_sgpr_workgroup_id_x 1
.end_amdhsa_kernel
'''.format(name=name, vgpr=vgpr, acc=acc, sgpr=sgpr)

def kstart(A, name):
    A(".globl %s" % name)
    A(".p2align 8")
    A(".type %s,@function" % name)
    A.label(name)

def load_srd(A, sreg, what):
    A("s_load_dwordx2 %s, s[0:1], %d" % (s(sreg, 2), KA[what]))
    A("s_mov_b32 %s, 0x%x" % (s(sreg + 2), SZ[what]))
    A("s_mov_b32 %s, 0x00020000" % s(sreg + 3))
    A("s_waitcnt lgkmcnt(0)")
    A("s_and_b32 %s, %s, 0xffff" % (s(sreg + 1), s(sreg + 1)))

SPIN_MAX = 1 << 18

def emit_election(A, sDBG, sVX, sVT, sFAST, sBYTE, tmp, fail_label, nwg=256):
    t = tmp
    A("s_getreg_b32 %s, hwreg(HW_REG_XCC_ID, 0, 4)" % s(sBYTE))
    A("s_or_b32 %s, %s, 0x80" % (s(sBYTE), s(sBYTE)))
    A("v_mov_b32 v1, s2")
    A("v_mov_b32 v2, %s" % s(sBYTE))
    A("v_cmp_eq_u32 vcc, 0, v0")
    A("s_mov_b64 %s, exec" % s(t, 2))
    A("s_and_b64 exec, exec, vcc")
    skip = A.newlab("el_st")
    A("s_cbranch_execz %s" % skip)
    A("buffer_store_byte v2, v1, %s, 0 offen sc1" % s(sDBG, 4))
    A.label(skip)
    A("s_mov_b64 exec, %s" % s(t, 2))
    A("v_and_b32 v3, 63, v0")
    A("v_lshlrev_b32 v4, 2, v3")
    A("s_mov_b32 %s, %d" % (s(t + 2), SPIN_MAX))
    lp = A.newlab("el_poll"); ok = A.newlab("el_ok")
    A.label(lp)
    A("buffer_load_dword v5, v4, %s, 0 offen sc1" % s(sDBG, 4))
    A("s_waitcnt vmcnt(0)")
    A("v_and_b32 v6, 0x80808080, v5")
    A("v_cmp_ne_u32 vcc, 0x80808080, v6")
    A("s_cbranch_vccz %s" % ok)
    A("s_sleep 2")
    A("s_sub_u32 %s, %s, 1" % (s(t + 2), s(t + 2)))
    A("s_cmp_lg_u32 %s, 0" % s(t + 2))
    A("s_cbranch_scc1 %s" % lp)
    A("s_branch %s" % fail_label)
    A.label(ok)
    A("s_and_b32 %s, %s, 15" % (s(t + 3), s(sBYTE)))
    A("s_mov_b32 %s, 0" % s(t + 4))
    A("s_mov_b32 %s, 1" % s(sFAST))
    for b in range(4):
        A("v_bfe_u32 v6, v5, %d, 4" % (8 * b))
        A("v_lshl_add_u32 v7, v3, 2, %d" % b)
        A("v_cmp_eq_u32 %s, %s, v6" % (s(t + 6, 2), s(t + 3)))
        A("v_cmp_gt_u32 vcc, s2, v7")
        A("s_nop 1")
        A("s_and_b64 %s, %s, vcc" % (s(t + 6, 2), s(t + 6, 2)))
        A("s_bcnt1_i32_b64 %s, %s" % (s(t + 8), s(t + 6, 2)))
        A("s_add_u32 %s, %s, %s" % (s(t + 4), s(t + 4), s(t + 8)))
    for x in range(8):
        A("s_mov_b32 %s, 0" % s(t + 9))
        for b in range(4):
            A("v_bfe_u32 v6, v5, %d, 4" % (8 * b))
            A("v_cmp_eq_u32 vcc, %d, v6" % x)
            A("s_nop 1")
            A("s_bcnt1_i32_b64 %s, vcc" % s(t + 8))
            A("s_add_u32 %s, %s, %s" % (s(t + 9), s(t + 9), s(t + 8)))
        A("s_cmp_eq_u32 %s, 32" % s(t + 9))
        A("s_cselect_b32 %s, %s, 0" % (s(sFAST), s(sFAST)))
    A("s_lshr_b32 %s, s2, 5" % s(t + 8))
    A("s_cmp_eq_u32 %s, 1" % s(sFAST))
    A("s_cselect_b32 %s, %s, %s" % (s(sVX), s(t + 3), s(t + 8)))
    A("s_and_b32 %s, s2, 31" % s(t + 8))
    A("s_cmp_eq_u32 %s, 1" % s(sFAST))
    A("s_cselect_b32 %s, %s, %s" % (s(sVT), s(t + 4), s(t + 8)))


D_INIT, D_HOLE, D_KV, D_Q = 128, 144, 160, 192
def emit_election2(A, sDBG, sVX, sVT, sWV, tmp, fail, nwg=256):
    t = tmp
    ok = A.newlab("el2_ok"); w0 = A.newlab("el2_w0"); ovf = A.newlab("el2_ovf")
    A("s_cmp_eq_u32 %s, 0" % s(sWV)); A("s_cbranch_scc0 %s" % w0)
    A("s_getreg_b32 %s, hwreg(HW_REG_XCC_ID, 0, 4)" % s(t))
    A("s_min_u32 %s, %s, 8" % (s(t + 1), s(t)))
    A("s_lshl_b32 %s, %s, 4" % (s(t + 2), s(t + 1)))
    A("s_cmp_ge_u32 %s, 8" % s(t)); A("s_cselect_b32 %s, 124, %s" % (s(t + 2), s(t + 2)))
    A("v_mov_b32 v1, %s" % s(t + 2)); A("v_mov_b32 v2, 1")
    A("s_mov_b64 exec, 1")
    A("buffer_atomic_add v2, v1, %s, 0 offen sc0" % s(sDBG, 4))
    A("s_waitcnt vmcnt(0)")
    A("v_readfirstlane_b32 %s, v2" % s(t + 3))
    A("s_mov_b64 exec, -1")
    A("s_cmp_ge_u32 %s, 8" % s(t)); A("s_cbranch_scc1 %s" % ovf)
    A("s_cmp_lt_u32 %s, 32" % s(t + 3)); A("s_cbranch_scc1 %s" % ok)
    A.label(ovf)
    A("v_mov_b32 v1, %d" % D_HOLE); A("v_mov_b32 v2, 1"); A("s_mov_b64 exec, 1")
    A("buffer_atomic_add v2, v1, %s, 0 offen sc0" % s(sDBG, 4)); A("s_waitcnt vmcnt(0)")
    A("v_readfirstlane_b32 %s, v2" % s(t + 4)); A("s_mov_b64 exec, -1")
    A("v_mbcnt_lo_u32_b32 v3, -1, 0"); A("v_mbcnt_hi_u32_b32 v3, -1, v3"); A("v_min_u32 v4, 8, v3")
    A("v_lshlrev_b32 v4, 4, v4"); A("v_mov_b32 v5, 124"); A("v_cmp_lt_u32 vcc, 7, v3"); A("s_nop 1"); A("v_cndmask_b32 v4, v4, v5, vcc")
    A("s_mov_b32 %s, %d" % (s(t + 5), SPIN_MAX))
    lp = A.newlab("el2_lp"); got = A.newlab("el2_got")
    A.label(lp)
    A("buffer_load_dword v6, v4, %s, 0 offen sc1" % s(sDBG, 4)); A("s_waitcnt vmcnt(0)")
    A("s_mov_b32 %s, 0" % s(t + 6))
    for x in range(9):
        A("v_readlane_b32 %s, v6, %d" % (s(t + 7), x)); A("s_nop 0"); A("s_add_u32 %s, %s, %s" % (s(t + 6), s(t + 6), s(t + 7)))
    A("s_cmp_ge_u32 %s, %d" % (s(t + 6), nwg)); A("s_cbranch_scc1 %s" % got)
    A("s_sleep 8"); A("s_sub_u32 %s, %s, 1" % (s(t + 5), s(t + 5))); A("s_cmp_lg_u32 %s, 0" % s(t + 5)); A("s_cbranch_scc1 %s" % lp)
    A("s_branch %s" % fail)
    A.label(got)
    for x in range(8):
        nx = A.newlab("el2_nx")
        A("v_readlane_b32 %s, v6, %d" % (s(t + 7), x)); A("s_nop 0")
        A("s_min_u32 %s, %s, 32" % (s(t + 7), s(t + 7))); A("s_sub_u32 %s, 32, %s" % (s(t + 8), s(t + 7)))
        A("s_cmp_lt_u32 %s, %s" % (s(t + 4), s(t + 8))); A("s_cbranch_scc0 %s" % nx)
        A("s_mov_b32 %s, %d" % (s(t), x)); A("s_add_u32 %s, %s, %s" % (s(t + 3), s(t + 7), s(t + 4))); A("s_branch %s" % ok)
        A.label(nx)
        A("s_sub_u32 %s, %s, %s" % (s(t + 4), s(t + 4), s(t + 8)))
    A("s_branch %s" % fail)
    A.label(ok)
    A("v_mov_b32 v1, 0"); A("v_mov_b32 v2, %s" % s(t)); A("v_mov_b32 v3, %s" % s(t + 3))
    A("s_mov_b64 exec, 1"); A("ds_write_b64 v1, v[2:3]"); A("s_mov_b64 exec, -1")
    A("s_waitcnt lgkmcnt(0)")
    A.label(w0)
    A("s_barrier")
    A("v_mov_b32 v1, 0"); A("ds_read_b64 v[2:3], v1"); A("s_waitcnt lgkmcnt(0)")
    A("v_readfirstlane_b32 %s, v2" % s(sVX)); A("v_readfirstlane_b32 %s, v3" % s(sVT))
    A("s_barrier")

def arrive(A, sDBG, byte_off, sWV, tv):
    A("s_waitcnt vmcnt(0)"); A("s_barrier")
    sk = A.newlab("arr")
    A("s_cmp_eq_u32 %s, 0" % s(sWV)); A("s_cbranch_scc0 %s" % sk)
    A("v_mov_b32 v%d, %s" % (tv, byte_off)); A("v_mov_b32 v%d, 1" % (tv + 1))
    A("s_mov_b64 exec, 1")
    A("buffer_atomic_add v%d, v%d, %s, 0 offen" % (tv + 1, tv, s(sDBG, 4)))
    A("s_mov_b64 exec, -1")
    A.label(sk)

def wait_counter(A, sDBG, byte_off, target, fail, tv, st):
    lp = A.newlab("wc"); ok = A.newlab("wc_ok")
    A("v_mov_b32 v%d, %s" % (tv, byte_off)); A("s_mov_b32 %s, %d" % (s(st), SPIN_MAX))
    A.label(lp)
    A("buffer_load_dword v%d, v%d, %s, 0 offen sc1" % (tv + 1, tv, s(sDBG, 4))); A("s_waitcnt vmcnt(0)")
    A("v_cmp_gt_u32 vcc, %s, v%d" % (target, tv + 1)); A("s_cbranch_vccz %s" % ok)
    A("s_sleep 8"); A("s_sub_u32 %s, %s, 1" % (s(st), s(st))); A("s_cmp_lg_u32 %s, 0" % s(st)); A("s_cbranch_scc1 %s" % lp)
    A("s_branch %s" % fail)
    A.label(ok)
```

```python
from gen_common import *
import struct
def f2u(x): return struct.unpack("<I", struct.pack("<f", x))[0]

gWS, gX, gDBG = 4, 8, 12
gSRD = dict(Wk=64, Wv=68, Wq=72)
gTG, gWV, gCG, gBYTE = 16, 17, 18, 22
gT = 24
gI, gU, gKIND, gOUT, gCOL = 40, 41, 42, 43, 44
gW = 76
gSTR, gKVR = 45, 46
def xf(tt, ks):
    i = tt * 18 + ks
    return ('a', 4 * i) if i < 64 else ('v', 224 + 4 * (i - 64))
ACC = 96
WF = [160, 176]
vGL16, vGX, vGD0, vGD1, vGT = 1, 2, 3, 4, 5
STG = [64, 136]
def RX(spec, cnt=4): return R(spec, cnt)
SLAB = 73728

def ln_scalars(A, vsum, vsq, n, vrs, vnm):
    A("v_mul_f32 v%d, 0x%x, v%d" % (vsum, f2u(1.0 / n), vsum))
    A("v_mul_f32 v%d, 0x%x, v%d" % (vsq, f2u(1.0 / n), vsq))
    A("v_fma_f32 v%d, -v%d, v%d, v%d" % (vsq, vsum, vsum, vsq))
    A("v_max_f32 v%d, 0, v%d" % (vsq, vsq))
    def rb(r):
        A("v_cvt_pk_bf16_f32 v%d, v%d, v%d" % (r, r, r)); A("v_lshlrev_b32 v%d, 16, v%d" % (r, r))
    rb(vsum); rb(vsq)
    A("v_add_f32 v%d, 0x%x, v%d" % (vsq, f2u(1e-5), vsq)); rb(vsq)
    A("v_sqrt_f32 v%d, v%d" % (vsq, vsq)); A("s_nop 0"); rb(vsq)
    A("v_rcp_f32 v%d, v%d" % (vrs, vsq)); A("s_nop 0")
    A("v_mul_f32 v%d, v%d, v%d" % (vnm, vsum, vrs))
    A("v_sub_f32 v%d, 0, v%d" % (vnm, vnm))
    A("v_mov_b32 v%d, v%d" % (vrs + 1, vrs)); A("v_mov_b32 v%d, v%d" % (vnm + 1, vnm))

def emit_g_ln(A, after_first_dma=None):
    A.c("=== G: load x + LayerNorm")
    load_srd(A, gX, "x")
    VX, vB0, ST = 136, 154, 64
    L_XS = SLAB
    A("v_and_b32 v6, 63, v0")
    A("v_lshlrev_b32 v%d, 4, v6" % vGL16)
    for i in range(18):
        A("v_add_u32 v7, %d, v6" % (64 * i))
        A("v_mul_u32_u24 v8, 58255, v7"); A("v_lshrrev_b32 v8, 22, v8")
        A("v_mul_u32_u24 v9, 72, v8"); A("v_sub_u32 v9, v7, v9")
        A("v_bfe_u32 v10, v8, 1, 3"); A("v_xor_b32 v9, v9, v10"); A("v_lshlrev_b32 v9, 4, v9")
        A("v_mul_u32_u24 v8, 1152, v8"); A("v_add_u32 v%d, v8, v9" % (VX + i))
    A("v_and_b32 v9, 15, v6"); A("v_lshrrev_b32 v8, 4, v6")
    A("v_bfe_u32 v7, v9, 1, 3"); A("v_xor_b32 v7, v7, v8"); A("v_lshlrev_b32 v7, 4, v7")
    A("v_mul_u32_u24 v10, 1152, v9"); A("v_add_u32 v%d, v10, v7" % vB0)
    A("s_mul_i32 %s, %s, 18432" % (s(gT + 3), s(gWV))); A("s_add_u32 %s, %s, %d" % (s(gT + 3), s(gT + 3), L_XS))
    A("v_add_u32 v%d, %s, v%d" % (vB0, s(gT + 3), vB0)); A("v_xor_b32 v%d, 64, v%d" % (vB0 + 1, vB0))
    A("s_lshl_b32 %s, %s, 8" % (s(gT), s(gTG)))
    A("s_lshl_b32 %s, %s, 6" % (s(gT + 1), s(gWV)))
    A("s_add_u32 %s, %s, %s" % (s(gT), s(gT), s(gT + 1)))
    A("s_mul_i32 %s, %s, 1152" % (s(gT), s(gT)))
    def dma_tile():
        for i in range(18):
            A("s_add_u32 m0, %s, %d" % (s(gT + 3), i * 1024)); A("s_nop 0")
            A("buffer_load_dwordx4 v%d, %s, %s offen lds" % (VX + i, s(gX, 4), s(gT)))
        A("s_add_u32 %s, %s, %d" % (s(gT), s(gT), 16 * 1152))
    dma_tile()
    if after_first_dma: after_first_dma(A)
    for i in range(4): A("v_mov_b32 v%d, 0x3f803f80" % (16 + i))
    A("v_lshrrev_b32 v10, 2, v9")
    A("v_and_b32 v11, 3, v9")
    A("s_mov_b32 %s, 0" % s(gT + 2))
    A("s_waitcnt vmcnt(%d)" % (18 if after_first_dma else 0))
    top = A.newlab("ln_top"); A.label(top)
    for ks in range(18):
        A("ds_read_b128 %s, v%d offset:%d" % (v(ST + 4 * ks, 4), vB0 + (ks & 1), (ks >> 1) * 128))
        if ks == 11: A("s_waitcnt lgkmcnt(0)")
    A("s_waitcnt lgkmcnt(0)")
    nd = A.newlab("ln_nodma")
    A("s_cmp_lt_u32 %s, 3" % s(gT + 2)); A("s_cbranch_scc0 %s" % nd)
    dma_tile()
    A.label(nd)
    for ks in range(18):
        x = v(ST + 4 * ks, 4)
        A("v_mfma_f32_16x16x32_bf16 v[20:23], v[16:19], %s, %s" % (x, "0" if ks == 0 else "v[20:23]"))
        A("v_mfma_f32_16x16x32_bf16 v[24:27], %s, %s, %s" % (x, x, "0" if ks == 0 else "v[24:27]"))
    A("s_nop 7")
    A("v_cmp_eq_u32 vcc, 1, v11"); A("s_nop 1"); A("v_cndmask_b32 v28, v24, v25, vcc")
    A("v_cmp_eq_u32 vcc, 2, v11"); A("s_nop 1"); A("v_cndmask_b32 v28, v28, v26, vcc")
    A("v_cmp_eq_u32 vcc, 3, v11"); A("s_nop 1"); A("v_cndmask_b32 v28, v28, v27, vcc")
    A("v_cmp_eq_u32 vcc, v8, v10"); A("s_nop 1"); A("v_cndmask_b32 v28, 0, v28, vcc")
    A("v_mov_b32 v29, v28"); A("s_nop 1"); A("v_permlane16_swap_b32 v28, v29"); A("v_add_f32 v28, v28, v29")
    A("v_mov_b32 v29, v28"); A("s_nop 1"); A("v_permlane32_swap_b32 v28, v29"); A("v_add_f32 v28, v28, v29")
    ln_scalars(A, 20, 28, 576, 30, 32)
    for ks in range(18):
        src = ST + 4 * ks
        for d in range(4):
            A("v_lshlrev_b32 v%d, 16, v%d" % (40 + 2 * d, src + d))
            A("v_and_b32 v%d, 0xffff0000, v%d" % (41 + 2 * d, src + d))
        for d in range(4): A("v_pk_fma_f32 v[%d:%d], v[%d:%d], v[30:31], v[32:33]" % (40 + 2 * d, 41 + 2 * d, 40 + 2 * d, 41 + 2 * d))
        for d in range(4): A("v_cvt_pk_bf16_f32 v%d, v%d, v%d" % (src + d, 40 + 2 * d, 41 + 2 * d))
    nxt = A.newlab("ln_next")
    for tt in range(4):
        skip = A.newlab("ln_wb")
        A("s_cmp_eq_u32 %s, %d" % (s(gT + 2), tt)); A("s_cbranch_scc0 %s" % skip)
        for ks in range(18):
            sp = xf(tt, ks)
            for d in range(4):
                if sp[0] == 'a': A("v_accvgpr_write_b32 a%d, v%d" % (sp[1] + d, ST + 4 * ks + d))
                else: A("v_mov_b32 v%d, v%d" % (sp[1] + d, ST + 4 * ks + d))
        A("s_branch %s" % nxt)
        A.label(skip)
    A.label(nxt)
    A("s_add_u32 %s, %s, 1" % (s(gT + 2), s(gT + 2)))
    A("s_waitcnt vmcnt(0)")
    A("s_cmp_lt_u32 %s, 4" % s(gT + 2)); A("s_cbranch_scc1 %s" % top)
    A("s_barrier")

def emit_g_consts(A):
    A("v_and_b32 v6, 63, v0")
    A("v_lshrrev_b32 v7, 3, v6")
    A("v_and_b32 v8, 7, v6")
    A("v_bfe_u32 v9, v7, 1, 1")
    A("v_lshlrev_b32 v9, 1, v9")
    A("v_xor_b32 v8, v8, v9")
    A("v_lshlrev_b32 v8, 4, v8")
    A("v_lshlrev_b32 v7, 13, v7")
    A("v_add_u32 v%d, v7, v8" % vGD0)
    A("v_xor_b32 v%d, 64, v%d" % (vGD1, vGD0))
    A("v_lshrrev_b32 v7, 4, v6")
    A("v_bfe_u32 v8, v6, 2, 2")
    A("v_lshl_add_u32 v9, v7, 3, v8")
    A("v_lshlrev_b32 v9, 7, v9")
    A("v_lshrrev_b32 v10, 1, v8")
    A("v_and_b32 v11, 1, v7")
    A("v_lshl_or_b32 v10, v11, 1, v10")
    A("v_lshl_add_u32 v9, v10, 5, v9")
    A("v_and_b32 v10, 3, v6")
    A("v_lshl_add_u32 v%d, v10, 3, v9" % vGT)

GTRACE = None
def emit_g_gemm(A, nrounds=7, kvflag=None, fail=None, stride=28, kvround=4, ln=None):
    A.c("=== G: unit loop")
    for nm, r in gSRD.items(): load_srd(A, r, nm)
    emit_g_consts(A)
    A("s_lshl_b32 %s, %s, 10" % (s(gT + 10), s(gWV)))
    def pickW(ureg):
        A("s_lshr_b32 %s, %s, 6" % (s(gT + 4), s(ureg)))
        for d in range(4):
            A("s_cmp_eq_u32 %s, 1" % s(gT + 4))
            A("s_cselect_b32 %s, %s, %s" % (s(gW + d), s(gSRD["Wv"] + d), s(gSRD["Wk"] + d)))
            A("s_cmp_eq_u32 %s, 2" % s(gT + 4))
            A("s_cselect_b32 %s, %s, %s" % (s(gW + d), s(gSRD["Wq"] + d), s(gW + d)))
        A("s_mov_b32 %s, 0x00020000" % s(gW + 3))
        A("s_and_b32 %s, %s, 63" % (s(gT + 5), s(ureg)))
        A("s_lshl_b32 %s, %s, 7" % (s(gT + 5), s(gT + 5)))
    def dma(j, par):
        A("s_add_u32 m0, %s, %d" % (s(gT + 10), par * SLAB + j * 4096))
        A("s_lshl_b32 %s, %s, 16" % (s(gT + 6), s(gWV)))
        A("s_add_u32 %s, %s, %d" % (s(gT + 6), s(gT + 6), j * 4 * 65536))
        A("s_add_u32 %s, %s, %s" % (s(gT + 6), s(gT + 6), s(gT + 5)))
        A("buffer_load_dwordx4 v12, %s, %s offen lds" % (s(gW, 4), s(gT + 6)))
    A("s_and_b32 %s, %s, 1" % (s(gT + 4), s(gWV)))
    A("s_cmp_eq_u32 %s, 1" % s(gT + 4))
    A("s_cselect_b64 vcc, -1, 0")
    A("v_cndmask_b32 v12, v%d, v%d, vcc" % (vGD0, vGD1))
    A("s_mov_b32 %s, 0" % s(gI))
    A("s_mov_b32 %s, %s" % (s(gU), s(gCG)))
    pickW(gU)
    def first(A_):
        for j in range(18): dma(j, 0)
    if ln: ln(A, first)
    else: first(A)
    A("s_waitcnt vmcnt(0)")
    top = A.newlab("g_top"); fin = A.newlab("g_fin")
    marks = []
    for par in range(2):
        if par == 0: A.label(top)
        m0 = A.mark()
        A("s_waitcnt vmcnt(8)")
        A("s_barrier")
        if GTRACE: GTRACE(A, "ready")
        A("s_add_u32 %s, %s, %s" % (s(gT + 7), s(gU), s(gSTR)))
        nonext = A.newlab("g_nonext")
        A("s_cmp_lt_u32 %s, 192" % s(gT + 7))
        A("s_cselect_b32 %s, 1, 0" % s(gT + 8))
        A("s_cselect_b32 %s, %s, %s" % (s(gT + 9), s(gT + 7), s(gU)))
        pickW(gT + 9)
        A("s_lshr_b32 %s, %s, 6" % (s(gKIND), s(gU)))
        isv = A.newlab("g_isv"); join = A.newlab("g_join")
        def body(vorient):
            def rd1(ks, buf, idx):
                ct, half = idx >> 1, idx & 1
                A("ds_read_b64_tr_b16 %s, v%d offset:%d" % (v(buf + 4 * ct + 2 * half, 2), TR[ct], OFF(ks, half)))
            for idx in range(8): rd1(0, WF[0], idx)
            for ks in range(18):
                A("s_waitcnt lgkmcnt(0)")
                if ks == 8:
                    for ct in range(4): A("v_add_u32 v%d, %d, v%d" % (TR[ct], 9 * 4096, TR[ct]))
                wb = WF[ks & 1]
                n = 0
                for tt in range(4):
                    for ct in range(4):
                        acc = ACC + 4 * (tt * 4 + ct)
                        c_in = "0" if ks == 0 else v(acc, 4)
                        if vorient: A("v_mfma_f32_16x16x32_bf16 %s, %s, %s, %s" % (v(acc, 4), RX(xf(tt, ks)), v(wb + 4 * ct, 4), c_in))
                        else: A("v_mfma_f32_16x16x32_bf16 %s, %s, %s, %s" % (v(acc, 4), v(wb + 4 * ct, 4), RX(xf(tt, ks)), c_in))
                        if n < 8 and ks + 1 < 18: rd1(ks + 1, WF[(ks + 1) & 1], n)
                        if n == 10: dma(ks, par ^ 1)
                        n += 1
            A("s_nop 7")
            if not vorient:
                for tt in range(4):
                    for a_ in range(2):
                        t0, t1 = ACC + 4 * (tt * 4 + 2 * a_), ACC + 4 * (tt * 4 + 2 * a_ + 1)
                        d = 40 + 4 * ((tt * 2 + a_) & 3)
                        A("v_cvt_pk_bf16_f32 v%d, v%d, v%d" % (d, t0, t0 + 1)); A("v_cvt_pk_bf16_f32 v%d, v%d, v%d" % (d + 1, t0 + 2, t0 + 3))
                        A("v_cvt_pk_bf16_f32 v%d, v%d, v%d" % (d + 2, t1, t1 + 1)); A("v_cvt_pk_bf16_f32 v%d, v%d, v%d" % (d + 3, t1 + 2, t1 + 3))
                        A("s_add_u32 %s, %s, %d" % (s(gT + 6), s(gOUT), (tt >> 1) * 262144 + a_ * 2048 + (tt & 1) * 1024))
                        A("buffer_store_dwordx4 %s, v%d, %s, %s offen sc1" % (v(d, 4), vGL16, s(gWS, 4), s(gT + 6)))
            else:
                for sg in range(2):
                    for ct in range(4):
                        t0, t1 = ACC + 4 * ((2 * sg) * 4 + ct), ACC + 4 * ((2 * sg + 1) * 4 + ct)
                        d = 40 + 4 * ((sg * 4 + ct) & 3)
                        A("v_cvt_pk_bf16_f32 v%d, v%d, v%d" % (d, t0, t0 + 1)); A("v_cvt_pk_bf16_f32 v%d, v%d, v%d" % (d + 1, t0 + 2, t0 + 3))
                        A("v_cvt_pk_bf16_f32 v%d, v%d, v%d" % (d + 2, t1, t1 + 1)); A("v_cvt_pk_bf16_f32 v%d, v%d, v%d" % (d + 3, t1 + 2, t1 + 3))
                        A("s_add_u32 %s, %s, %d" % (s(gT + 6), s(gOUT), sg * 262144 + (ct >> 1) * 2048 + (ct & 1) * 1024))
                        A("buffer_store_dwordx4 %s, v%d, %s, %s offen sc1" % (v(d, 4), vGL16, s(gWS, 4), s(gT + 6)))
        A("s_and_b32 %s, %s, 63" % (s(gT + 4), s(gU)))
        A("s_lshl_b32 %s, %s, 12" % (s(gOUT), s(gT + 4)))
        A("s_lshl_b32 %s, %s, 3" % (s(gT + 4), s(gTG)))
        A("s_lshl_b32 %s, %s, 1" % (s(gT + 6), s(gWV)))
        A("s_add_u32 %s, %s, %s" % (s(gT + 4), s(gT + 4), s(gT + 6)))
        A("s_lshl_b32 %s, %s, 18" % (s(gT + 4), s(gT + 4)))
        A("s_add_u32 %s, %s, %s" % (s(gOUT), s(gOUT), s(gT + 4)))
        A("s_lshl_b32 %s, %s, 24" % (s(gT + 4), s(gKIND)))
        A("s_add_u32 %s, %s, %s" % (s(gOUT), s(gOUT), s(gT + 4)))
        TR = [13, 14, 15, 6]
        big = par * SLAB
        for ct in range(4):
            A("v_xor_b32 v%d, %d, v%d" % (TR[ct], ct << 5, vGT))
            if big: A("v_add_u32 v%d, %d, v%d" % (TR[ct], big, TR[ct]))
        def OFF(ks, half): return (ks if ks < 9 else ks - 9) * 4096 + half * 512
        A("s_cmp_eq_u32 %s, 1" % s(gKIND))
        A("s_cbranch_scc1 %s" % isv)
        body(False)
        A("s_branch %s" % join)
        A.label(isv)
        body(True)
        A.label(join)
        if GTRACE: GTRACE(A, "round")
        if kvflag is not None:
            sk = A.newlab("g_nokv")
            A("s_cmp_eq_u32 %s, %s" % (s(gI), s(gKVR)))
            A("s_cbranch_scc0 %s" % sk)
            kvflag(A)
            A.label(sk)
        A("s_add_u32 %s, %s, 1" % (s(gI), s(gI)))
        A("s_cmp_eq_u32 %s, 0" % s(gT + 8))
        A("s_cbranch_scc1 %s" % fin)
        A("s_mov_b32 %s, %s" % (s(gU), s(gT + 7)))
        if par == 1: A("s_branch %s" % top)
        marks.append((m0, A.mark()))
    A.label(fin)
    A("s_waitcnt vmcnt(0)")
    return marks

def build_g_test():
    A = Asm(); name = "g_kernel"
    kstart(A, name)
    fail = "L_fail"; end = "L_end"
    A("s_cmp_ge_u32 s2, 256"); A("s_cbranch_scc1 %s" % end)
    load_srd(A, gDBG, "dbg"); load_srd(A, gWS, "ws")
    A("v_lshrrev_b32 v1, 6, v0"); A("s_nop 0"); A("v_readfirstlane_b32 %s, v1" % s(gWV))
    emit_election(A, gDBG, 20, 21, 19, gBYTE, gT, fail)
    A("s_cmp_eq_u32 s20, 0"); A("s_cbranch_scc1 %s" % end)
    A("s_and_b32 %s, s21, 7" % s(gTG))
    A("s_sub_u32 %s, s20, 1" % s(gCG)); A("s_lshl_b32 %s, %s, 2" % (s(gCG), s(gCG)))
    A("s_lshr_b32 %s, s21, 3" % s(gT)); A("s_add_u32 %s, %s, %s" % (s(gCG), s(gCG), s(gT)))
    A("s_mov_b32 %s, 28" % s(gSTR)); A("s_mov_b32 %s, 4" % s(gKVR))
    A("s_memrealtime s[96:97]")
    def lnh(A_, first):
        emit_g_ln(A_, first); A_("s_memrealtime s[98:99]")
    marks = emit_g_gemm(A, ln=lnh)
    A("s_memrealtime s[100:101]"); A("s_waitcnt lgkmcnt(0)")
    A("s_sub_u32 s98, s98, s96"); A("s_sub_u32 s100, s100, s96")
    A("v_mov_b32 v16, s98"); A("v_mov_b32 v17, s100")
    A("s_lshl_b32 %s, s2, 2" % s(gT)); A("s_add_u32 %s, %s, %s" % (s(gT), s(gT), s(gWV))); A("s_lshl_b32 %s, %s, 3" % (s(gT), s(gT)))
    A("s_add_u32 %s, %s, 0x3E00000" % (s(gT), s(gT)))
    A("v_mov_b32 v1, 0"); A("s_mov_b64 exec, 1")
    A("buffer_store_dwordx2 v[16:17], v1, %s, %s offen" % (s(gWS, 4), s(gT)))
    A("s_endpgm")
    A.label(fail); A.label(end); A("s_endpgm")
    probs = lint(A.lines, "g-linear", verbose=True)
    for m0, m1 in marks: probs += lint(A.lines[m0:m1] * 2, "g-loop", verbose=True)
    return HDR + A.text() + '.section .rodata,"a"\n' + kdesc(name), name, probs
if __name__ == "__main__":
    from hiprun import add_metadata, assemble
    txt, name, probs = build_g_test()
    open("g.s", "w").write(add_metadata(txt, [(name, 256)], 120)); assemble("g.s", "g.co")
    print("assembled", txt.count("\n"))
```

```python
from gen_common import *
import struct
def f2u(x): return struct.unpack("<I", struct.pack("<f", x))[0]
pWS, pW, pDBG = 4, 8, 12
pID, pWV, pS, pFAST = 16, 17, 18, 19
pT = 24
pSPIN = 40
pFOFF = 41
pPEND = 42
SCALE_LOG2E = 0.08838834764831845 * 1.4426950408889634

SLEEP = 1
WARM = 0
TRACE = False
TRV = [250]
TRBUF = FLG + 0x4000
TR2 = FLG + 0x20000
def trace(A, idx, seg_last=62):
    if not TRACE: return
    lab = A.newlab("tr")
    if TRACE != "full":
        A("s_cmp_ge_u32 %s, %d" % (s(pS), seg_last)); A("s_cbranch_scc0 %s" % lab)
    A("s_cmp_eq_u32 %s, 0" % s(pWV)); A("s_cbranch_scc0 %s" % lab)
    A.c("lint-skip-begin")
    A("s_memrealtime s[98:99]"); A("s_waitcnt lgkmcnt(0)")
    A("s_sub_u32 s98, s98, s100")
    if TRACE == "full":
        A("s_lshl_b32 s99, s2, 6"); A("s_and_b32 s97, %s, 63" % s(pS)); A("s_add_u32 s99, s99, s97"); A("s_lshl_b32 s99, s99, 5"); A("s_add_u32 s99, s99, 0x%x" % (TR2 + 4 * idx))
    else:
        A("s_lshl_b32 s99, s2, 6"); A("s_add_u32 s99, s99, 0x%x" % (TRBUF + 4 * idx))
    A("v_mov_b32 v%d, s98" % TRV[0])
    A("buffer_store_dword v%d, off, %s, s99" % (TRV[0], s(pWS, 4)))
    A.c("lint-skip-end")
    A.label(lab)

def wait_flags(A, voff, soff_expr, target, fail, tmpv, sleep=None, sc="sc1", pend_sc=None, solo=None):
    if sleep is None: sleep = SLEEP
    if solo is None: solo = pend_sc is not None
    lp = A.newlab("wf"); ok = A.newlab("wf_ok"); rel = A.newlab("wf_rel")
    A("s_mov_b32 %s, %d" % (s(pSPIN), SPIN_MAX))
    first = A.newlab("wf_first")
    if solo:
        A("s_cmp_eq_u32 %s, 0" % s(pWV)); A("s_cbranch_scc0 %s" % first)
    A("buffer_load_dword v%d, v%d, %s, %s offen %s" % (tmpv, voff, s(pWS, 4), soff_expr, sc))
    A.label(first)
    A("s_waitcnt vmcnt(0)")
    if pend_sc is not None:
        sk = A.newlab("pend")
        A("s_cmp_eq_u32 %s, 0" % s(pPEND)); A("s_cbranch_scc1 %s" % sk)
        A("s_barrier")
        sk2 = A.newlab("pend2")
        A("s_cmp_eq_u32 %s, 0" % s(pWV)); A("s_cbranch_scc0 %s" % sk2)
        A("v_mov_b32 v%d, %s" % (tmpv + 1, s(pPEND)))
        A("buffer_store_dword v%d, off, %s, %s %s" % (tmpv + 1, s(pWS, 4), s(pFOFF), pend_sc))
        A.label(sk2)
        A("s_mov_b32 %s, 0" % s(pPEND))
        A.label(sk)
    if solo:
        A("s_cmp_eq_u32 %s, 0" % s(pWV)); A("s_cbranch_scc0 %s" % rel)
    A("v_cmp_gt_u32 vcc, %s, v%d" % (target, tmpv))
    A("s_cbranch_vccz %s" % ok)
    A.c("lint-skip-begin")
    A.label(lp)
    if sleep: A("s_sleep %d" % sleep)
    A("buffer_load_dword v%d, v%d, %s, %s offen %s" % (tmpv, voff, s(pWS, 4), soff_expr, sc))
    A("s_waitcnt vmcnt(0)")
    A("v_cmp_gt_u32 vcc, %s, v%d" % (target, tmpv))
    A("s_cbranch_vccz %s" % ok)
    A("s_sub_u32 %s, %s, 1" % (s(pSPIN), s(pSPIN)))
    A("s_cmp_lg_u32 %s, 0" % s(pSPIN))
    A("s_cbranch_scc1 %s" % lp)
    A("s_endpgm") if False else A("s_branch %s" % fail)
    A.c("lint-skip-end")
    A.label(ok)
    if solo:
        A.label(rel)
        A("s_barrier")

def set_flag(A, soff, valreg, tmpv, sc="sc1", barrier=True):
    A("s_waitcnt vmcnt(0)")
    if barrier: A("s_barrier")
    sk = A.newlab("sf")
    if barrier:
        A("s_cmp_eq_u32 %s, 0" % s(pWV)); A("s_cbranch_scc0 %s" % sk)
    A("v_mov_b32 v%d, %s" % (tmpv, valreg))
    A("v_mov_b32 v%d, 0" % (tmpv + 1))
    A("s_mov_b64 exec, 1")
    A("buffer_store_dword v%d, v%d, %s, %s offen %s" % (tmpv, tmpv + 1, s(pWS, 4), soff, sc))
    A("s_mov_b64 exec, -1")
    A.label(sk)
    trace(A, 3, 0)

def dma_linear(A, srd, sbase, nbytes, lds_base, vL16):
    n = nbytes // 4096
    A("s_lshl_b32 %s, %s, 10" % (s(pT + 9), s(pWV)))
    for i in range(n):
        A("s_add_u32 m0, %s, %d" % (s(pT + 9), lds_base + i * 4096))
        A("s_add_u32 %s, %s, %s" % (s(pT + 8), s(sbase), s(pT + 9)))
        if i: A("s_add_u32 %s, %s, %d" % (s(pT + 8), s(pT + 8), i * 4096))
        else: A("s_nop 0")
        A("buffer_load_dwordx4 v%d, %s, %s offen lds" % (vL16, s(srd, 4), s(pT + 8)))
        if i % 48 == 47: A("s_waitcnt vmcnt(16)")

def load_k128_weights(A, vtmp, WREG, rowbytes, lds_base, colbyte_sreg):
    A("v_and_b32 v%d, 63, v0" % vtmp)
    A("v_lshrrev_b32 v%d, 4, v%d" % (vtmp + 1, vtmp))
    A("v_bfe_u32 v%d, v%d, 2, 2" % (vtmp + 2, vtmp))
    A("v_lshl_add_u32 v%d, v%d, 2, v%d" % (vtmp + 1, vtmp + 1, vtmp + 2))
    A("v_mul_u32_u24 v%d, %d, v%d" % (vtmp + 1, rowbytes, vtmp + 1))
    A("v_and_b32 v%d, 3, v%d" % (vtmp + 2, vtmp))
    A("v_lshl_add_u32 v%d, v%d, 3, v%d" % (vtmp + 1, vtmp + 2, vtmp + 1))
    A("v_add_u32 v%d, %s, v%d" % (vtmp + 1, colbyte_sreg, vtmp + 1))
    cnt = 0
    for ks in range(4):
        for u in range(2):
            A("v_add_u32 v%d, %d, v%d" % (vtmp + 3, lds_base + (32 * ks + 16 * u) * rowbytes, vtmp + 1))
            for i in range(9):
                sp = WREG(i, ks)
                A("ds_read_b64_tr_b16 %s, v%d offset:%d" % (R((sp[0], sp[1] + 2 * u), 2), vtmp + 3, i * 32))
                cnt += 1
                if cnt % 12 == 0: A("s_waitcnt lgkmcnt(0)")
    A("s_waitcnt lgkmcnt(0)")

def k128_gemm(A, WREG, OB, ACC, lg_wait=None):
    for ks in range(4):
        if lg_wait: lg_wait(ks)
        for i in range(9):
            for tt in range(2):
                c = "0" if ks == 0 else v(ACC(i, tt), 4)
                A("v_mfma_f32_16x16x32_bf16 %s, %s, %s, %s" % (v(ACC(i, tt), 4), R(WREG(i, ks), 4), v(OB(tt, ks), 4), c))

def pstore_consts(A, vTokA, vTok9, vBP, vBP9, rowstride, tmp):
    A("v_and_b32 v%d, 63, v0" % tmp)
    A("v_lshrrev_b32 v%d, 3, v%d" % (tmp + 1, tmp)); A("v_and_b32 v%d, 7, v%d" % (tmp + 2, tmp))
    A("v_and_b32 v%d, 3, v%d" % (tmp + 3, tmp + 2)); A("v_lshlrev_b32 v%d, 4, v%d" % (tmp + 3, tmp + 3))
    A("v_lshrrev_b32 v%d, 2, v%d" % (tmp + 4, tmp + 2)); A("v_lshl_add_u32 v%d, v%d, 3, v%d" % (tmp + 3, tmp + 4, tmp + 3))
    A("v_add_u32 v%d, v%d, v%d" % (tmp + 3, tmp + 3, tmp + 1)); A("v_lshlrev_b32 v%d, 2, v%d" % (vBP, tmp + 3))
    A("s_mov_b32 %s, %d" % (s(pT + 8), rowstride)); A("v_mul_lo_u32 v%d, v%d, %s" % (vTokA, tmp + 1, s(pT + 8))); A("v_lshl_add_u32 v%d, v%d, 4, v%d" % (vTokA, tmp + 2, vTokA))
    A("v_lshrrev_b32 v%d, 2, v%d" % (tmp + 1, tmp)); A("v_and_b32 v%d, 3, v%d" % (tmp + 2, tmp))
    A("v_lshl_add_u32 v%d, v%d, 4, v%d" % (tmp + 3, tmp + 2, tmp + 1)); A("v_lshlrev_b32 v%d, 2, v%d" % (vBP9, tmp + 3))
    A("v_mul_lo_u32 v%d, v%d, %s" % (vTok9, tmp + 1, s(pT + 8))); A("v_lshl_add_u32 v%d, v%d, 3, v%d" % (vTok9, tmp + 2, vTok9)); A("v_add_u32 v%d, 256, v%d" % (vTok9, vTok9))

def pstore(A, ACC, vTokA, vTok9, vBP, vBP9, sbase, tmp, rowstride, sLO8, sc="sc1"):
    X, Y, Z = tmp, tmp + 4, tmp + 8
    for tt in range(2):
        for L in range(2):
            a0, a1, b0, b1 = ACC(4 * L, tt), ACC(4 * L + 1, tt), ACC(4 * L + 2, tt), ACC(4 * L + 3, tt)
            for (d, p, q) in ((X, a0, a1), (Y, b0, b1)):
                A("v_cvt_pk_bf16_f32 v%d, v%d, v%d" % (d, p, p + 1)); A("v_cvt_pk_bf16_f32 v%d, v%d, v%d" % (d + 1, p + 2, p + 3))
                A("v_cvt_pk_bf16_f32 v%d, v%d, v%d" % (d + 2, q, q + 1)); A("v_cvt_pk_bf16_f32 v%d, v%d, v%d" % (d + 3, q + 2, q + 3))
            A("s_mov_b64 vcc, %s" % s(sLO8, 2))
            A("s_nop 0")
            for d in range(4): A("v_cndmask_b32_dpp v%d, v%d, v%d, vcc row_shr:8 row_mask:0xf bank_mask:0xf bound_ctrl:1" % (Z + d, Y + d, X + d))
            A("s_not_b64 vcc, vcc")
            for d in range(4): A("v_cndmask_b32_dpp v%d, v%d, v%d, vcc row_shl:8 row_mask:0xf bank_mask:0xf bound_ctrl:1" % (Z + 4 + d, X + d, Y + d))
            for d in range(8): A("ds_bpermute_b32 v%d, v%d, v%d" % (tmp + 16 + d, vBP, Z + d))
            A("s_add_u32 %s, %s, %d" % (s(pT + 9), s(sbase), tt * 16 * rowstride + L * 128))
            A("s_add_u32 %s, %s, %d" % (s(pT + 10), s(pT + 9), 8 * rowstride))
            A("s_waitcnt lgkmcnt(4)")
            A("buffer_store_dwordx4 %s, v%d, %s, %s offen %s" % (v(tmp + 16, 4), vTokA, s(pWS, 4), s(pT + 9), sc))
            A("s_waitcnt lgkmcnt(0)")
            A("buffer_store_dwordx4 %s, v%d, %s, %s offen %s" % (v(tmp + 20, 4), vTokA, s(pWS, 4), s(pT + 10), sc))
        x = ACC(8, tt)
        A("v_cvt_pk_bf16_f32 v%d, v%d, v%d" % (X, x, x + 1)); A("v_cvt_pk_bf16_f32 v%d, v%d, v%d" % (X + 1, x + 2, x + 3))
        A("ds_bpermute_b32 v%d, v%d, v%d" % (Y, vBP9, X)); A("ds_bpermute_b32 v%d, v%d, v%d" % (Y + 1, vBP9, X + 1))
        A("s_add_u32 %s, %s, %d" % (s(pT + 9), s(sbase), tt * 16 * rowstride))
        A("s_waitcnt lgkmcnt(0)")
        A("buffer_store_dwordx2 %s, v%d, %s, %s offen %s" % (v(Y, 2), vTok9, s(pWS, 4), s(pT + 9), sc))

def emit_r12(A, fail, nseg=64, nsets=2, hook=None, gwait=None):
    A.c("=== R12: attention + Wo partial")
    sSET12 = 59
    A("s_lshr_b32 %s, %s, 5" % (s(sSET12), s(pID)))
    A("s_lshl_b32 %s, %s, 2" % (s(pFOFF), s(pID))); A("s_add_u32 %s, %s, 0x%x" % (s(pFOFF), s(pFOFF), F_R12))
    A("s_and_b32 %s, %s, 31" % (s(pID), s(pID)))
    vL16, vTok, vFl, vMaskT = 1, 2, 3, 4
    WREG = lambda i, ks: ('a', (i * 4 + ks) * 4)
    load_srd(A, pW, "Wo")
    A("v_and_b32 v5, 63, v0"); A("v_lshlrev_b32 v%d, 4, v5" % vL16)
    A("s_mul_i32 %s, %s, %d" % (s(pT), s(pID), 128 * 1152))
    dma_linear(A, pW, pT, 147456, 0, vL16)
    A("s_waitcnt vmcnt(0)"); A("s_barrier")
    A("s_mul_i32 %s, %s, 288" % (s(pT + 1), s(pWV)))
    load_k128_weights(A, 6, WREG, 1152, 0, s(pT + 1))
    A("s_barrier")
    A("v_and_b32 v6, 15, v5"); A("v_lshrrev_b32 v7, 4, v5")
    vTok9, vBP, vBP9, sLO8 = 248, 249, 251, 62
    pstore_consts(A, vTok, vTok9, vBP, vBP9, 32 * PROW, 136)
    A("s_mov_b32 %s, 0x00ff00ff" % s(sLO8)); A("s_mov_b32 %s, 0x00ff00ff" % s(sLO8 + 1))
    A("v_min_u32 v8, 35, v5"); A("v_subrev_u32 v9, 4, v8"); A("v_lshlrev_b32 v9, 2, v9"); A("v_add_u32 v9, 0x%x, v9" % F_R3)
    A("s_lshl_b32 %s, %s, 7" % (s(pT), s(pID))); A("s_add_u32 %s, %s, 0x%x" % (s(pT), s(pT), F_KM))
    A("v_lshl_add_u32 v%d, v8, 2, %s" % (vFl, s(pT))); A("v_cmp_gt_u32 %s, 4, v8" % s(60, 2)); A("s_nop 1")
    A("v_cndmask_b32 v%d, v9, v%d, %s" % (vFl, vFl, s(60, 2)))
    sMK = 44
    for r in range(4):
        A("v_lshl_add_u32 v8, v7, 2, %d" % r); A("v_cmp_le_u32 %s, v8, v6" % s(sMK + 2 * r, 2))
    tt_, part = pT + 2, pT + 3
    sTT, sPART, sQ, sOUT, sKM, sVM, sFK = 52, 53, 54, 55, 56, 57, 58
    A("s_and_b32 %s, %s, 1" % (s(sTT), s(pWV))); A("s_lshr_b32 %s, %s, 1" % (s(sPART), s(pWV)))
    A("s_lshl_b32 %s, %s, 13" % (s(sQ), s(pID)))
    A("s_lshl_b32 %s, %s, 12" % (s(sKM), s(pID))); A("s_add_u32 %s, %s, 0x%x" % (s(sKM), s(sKM), KMEM))
    A("s_lshl_b32 %s, %s, 11" % (s(sVM), s(pID))); A("s_lshl_b32 %s, %s, 10" % (s(pT), s(sPART))); A("s_add_u32 %s, %s, %s" % (s(sVM), s(sVM), s(pT))); A("s_add_u32 %s, %s, 0x%x" % (s(sVM), s(sVM), VMEM))
    A("s_lshl_b32 %s, %s, 4" % (s(sFK), s(pID))); A("s_add_u32 %s, %s, 0x%x" % (s(sFK), s(sFK), F_KM))
    A("s_mul_i32 %s, %s, 384" % (s(pT), s(pWV)))
    A("s_mul_i32 %s, %s, %d" % (s(sOUT), s(pID), PROW)); A("s_add_u32 %s, %s, %s" % (s(sOUT), s(sOUT), s(pT))); A("s_add_u32 %s, %s, 0x%x" % (s(sOUT), s(sOUT), P12))
    if hook: hook(A)
    A("s_mov_b32 %s, %s" % (s(pS), s(sSET12)))
    Qf = 16
    Kf = 32
    Vf = 64
    Xf = 80
    PV = 96
    T0, T1, T2 = 100, 104, 108
    OT = 112
    LS = 128
    ONE = 132
    PB = 136
    OB = lambda tt, ks: 144 + 4 * (tt * 4 + ks)
    ACCf = lambda i, tt: 176 + 4 * (i * 2 + tt)
    TMP = 8
    L_O = 0
    top = A.newlab("r12_top")
    m0 = A.mark()
    A.label(top)
    if gwait:
        gw = A.newlab("r12_gw")
        A("s_and_b32 %s, %s, 6" % (s(pT), s(pS))); A("s_cmp_eq_u32 %s, 0" % s(pT)); A("s_cbranch_scc0 %s" % gw)
        gwait(A)
        A.label(gw)
    A("s_lshl_b32 %s, %s, 18" % (s(pT), s(pS))); A("s_add_u32 %s, %s, %s" % (s(pT), s(pT), s(sQ)))
    A("s_lshl_b32 %s, %s, 10" % (s(pT + 1), s(sTT))); A("s_add_u32 %s, %s, %s" % (s(pT + 1), s(pT + 1), s(pT))); A("s_add_u32 %s, %s, 0x%x" % (s(pT + 1), s(pT + 1), QOP))
    for ks in range(4):
        A("s_add_u32 %s, %s, %d" % (s(pT + 2), s(pT + 1), ks * 2048))
        A("buffer_load_dwordx4 %s, v%d, %s, %s offen" % (v(Qf + 4 * ks, 4), vL16, s(pWS, 4), s(pT + 2)))
    for ks in range(4):
        A("s_add_u32 %s, %s, %d" % (s(pT + 2), s(pT), ks * 2048 + KOP))
        for kt in range(2):
            A("buffer_load_dwordx4 %s, v%d, %s, %s offen offset:%d" % (v(Kf + 16 * kt + 4 * ks, 4), vL16, s(pWS, 4), s(pT + 2), kt * 1024))
    A("s_lshl_b32 %s, %s, 12" % (s(pT + 1), s(sPART))); A("s_add_u32 %s, %s, %s" % (s(pT + 1), s(pT + 1), s(pT))); A("s_add_u32 %s, %s, 0x%x" % (s(pT + 1), s(pT + 1), VOP))
    for et in range(4):
        A("s_add_u32 %s, %s, %d" % (s(pT + 2), s(pT + 1), et * 1024))
        A("buffer_load_dwordx4 %s, v%d, %s, %s offen" % (v(Vf + 4 * et, 4), vL16, s(pWS, 4), s(pT + 2)))
    if WARM:
        A("s_add_u32 %s, %s, %d" % (s(pT + 2), s(pT), WARM * 262144))
        A("v_lshlrev_b32 v%d, 3, v%d" % (TMP + 4, vL16))
        A("buffer_load_dword v%d, v%d, %s, %s offen" % (TMP + 5, TMP + 4, s(pWS, 4), s(pT + 2)))
        A("s_add_u32 %s, %s, 0x%x" % (s(pT + 2), s(pT + 2), VOP))
        A("buffer_load_dword v%d, v%d, %s, %s offen" % (TMP + 6, TMP + 4, s(pWS, 4), s(pT + 2)))
    for i in range(4): A("v_mov_b32 v%d, 0x3f803f80" % (ONE + i))
    A("s_waitcnt vmcnt(%d)" % (6 if WARM else 4))
    for ks in range(4):
        for kt in range(2):
            T = T1 if kt == 0 else T2
            A("v_mfma_f32_16x16x32_bf16 %s, %s, %s, %s" % (v(T, 4), v(Kf + 16 * kt + 4 * ks, 4), v(Qf + 4 * ks, 4), "0" if ks == 0 else v(T, 4)))
    A("s_add_u32 %s, %s, 1" % (s(pT + 4), s(pS)))
    A("s_max_u32 %s, %s, %d" % (s(pT + 5), s(pS), RING - 1)); A("s_sub_u32 %s, %s, %d" % (s(pT + 5), s(pT + 5), RING - 1))
    A("v_mov_b32 v%d, %s" % (vMaskT, s(pT + 5))); A("v_mov_b32 v%d, %s" % (TMP + 3, s(pT + 4)))
    A("v_cndmask_b32 v%d, v%d, v%d, %s" % (vMaskT, vMaskT, TMP + 3, s(60, 2)))
    A("s_and_b32 %s, %s, 7" % (s(pT + 5), s(pS))); A("s_lshl_b32 %s, %s, 7" % (s(pT + 5), s(pT + 5)))
    A("v_mov_b32 v%d, %s" % (TMP + 3, s(pT + 5))); A("v_cndmask_b32 v%d, v%d, 0, %s" % (TMP + 3, TMP + 3, s(60, 2)))
    A("v_add_u32 v%d, v%d, v%d" % (TMP + 7, vFl, TMP + 3))
    wait_flags(A, TMP + 7, "0", "v%d" % vMaskT, fail, TMP, pend_sc="sc1")
    trace(A, 0)
    A("s_lshl_b32 %s, %s, 17" % (s(pT), s(pS))); A("s_add_u32 %s, %s, %s" % (s(pT), s(pT), s(sKM)))
    for ks in range(4):
        A("s_add_u32 %s, %s, %d" % (s(pT + 2), s(pT), ks * 1024))
        A("buffer_load_dwordx4 %s, v%d, %s, %s offen sc1" % (v(Xf + 4 * ks, 4), vL16, s(pWS, 4), s(pT + 2)))
    A("s_lshl_b32 %s, %s, 16" % (s(pT), s(pS))); A("s_add_u32 %s, %s, %s" % (s(pT), s(pT), s(sVM)))
    A("v_lshrrev_b32 v%d, 1, v%d" % (TMP, vL16))
    A("buffer_load_dwordx2 %s, v%d, %s, %s offen sc1" % (v(PV, 2), TMP, s(pWS, 4), s(pT)))
    A("buffer_load_dwordx2 %s, v%d, %s, %s offen offset:512 sc1" % (v(PV + 2, 2), TMP, s(pWS, 4), s(pT)))
    NEG = TMP + 1
    A("v_mov_b32 v%d, 0xff800000" % NEG)
    m1 = A.newlab("r12_tt1"); m2 = A.newlab("r12_msk")
    A("s_cmp_eq_u32 %s, 1" % s(sTT)); A("s_cbranch_scc1 %s" % m1)
    for r in range(4):
        A("v_cndmask_b32 v%d, v%d, v%d, %s" % (T1 + r, NEG, T1 + r, s(sMK + 2 * r, 2)))
        A("v_mov_b32 v%d, v%d" % (T2 + r, NEG))
    A("s_branch %s" % m2)
    A.label(m1)
    for r in range(4): A("v_cndmask_b32 v%d, v%d, v%d, %s" % (T2 + r, NEG, T2 + r, s(sMK + 2 * r, 2)))
    A.label(m2)
    A("s_waitcnt vmcnt(2)")
    trace(A, 1)
    for ks in range(4):
        A("v_mfma_f32_16x16x32_bf16 %s, %s, %s, %s" % (v(T0, 4), v(Xf + 4 * ks, 4), v(Qf + 4 * ks, 4), "0" if ks == 0 else v(T0, 4)))
    A("v_max3_f32 v%d, v%d, v%d, v%d" % (TMP + 2, T1, T1 + 1, T1 + 2))
    A("v_max3_f32 v%d, v%d, v%d, v%d" % (TMP + 3, T1 + 3, T2, T2 + 1))
    A("v_max3_f32 v%d, v%d, v%d, v%d" % (TMP + 2, TMP + 2, T2 + 2, T2 + 3))
    A("v_max_f32 v%d, v%d, v%d" % (TMP + 2, TMP + 2, TMP + 3))
    A("s_nop 3")
    A("v_max3_f32 v%d, v%d, v%d, v%d" % (TMP + 2, TMP + 2, T0, T0 + 1))
    x, y = TMP + 2, TMP + 3
    for sw in ("v_permlane16_swap_b32", "v_permlane32_swap_b32"):
        A("v_mov_b32 v%d, v%d" % (y, x)); A("s_nop 1"); A("%s v%d, v%d" % (sw, x, y)); A("v_max_f32 v%d, v%d, v%d" % (x, x, y))
    A("s_mov_b32 %s, 0x%x" % (s(pT + 6), f2u(SCALE_LOG2E)))
    A("v_mul_f32 v%d, %s, v%d" % (x, s(pT + 6), x))
    vals = [T0, T0 + 1] + [T1 + r for r in range(4)] + [T2 + r for r in range(4)]
    for r in vals: A("v_fma_f32 v%d, v%d, %s, -v%d" % (r, r, s(pT + 6), x))
    for r in vals: A("v_exp_f32 v%d, v%d" % (r, r))
    A("s_nop 0")
    A("v_cvt_pk_bf16_f32 v%d, v%d, v%d" % (PB, T1, T1 + 1)); A("v_cvt_pk_bf16_f32 v%d, v%d, v%d" % (PB + 1, T1 + 2, T1 + 3))
    A("v_cvt_pk_bf16_f32 v%d, v%d, v%d" % (PB + 2, T2, T2 + 1)); A("v_cvt_pk_bf16_f32 v%d, v%d, v%d" % (PB + 3, T2 + 2, T2 + 3))
    A("v_cvt_pk_bf16_f32 v%d, v%d, v%d" % (PB + 4, T0, T0 + 1)); A("v_mov_b32 v%d, 0" % (PB + 5))
    A("v_mov_b32 v%d, 0" % (PB + 6)); A("v_cvt_pk_bf16_f32 v%d, v%d, v%d" % (PB + 7, T0, T0 + 1))
    A("s_waitcnt vmcnt(0)")
    A("s_nop 0")
    A("v_mfma_f32_16x16x32_bf16 %s, %s, %s, 0" % (v(LS, 4), v(ONE, 4), v(PB, 4)))
    for et in range(4):
        A("v_mfma_f32_16x16x32_bf16 %s, %s, %s, 0" % (v(OT + 4 * et, 4), v(Vf + 4 * et, 4), v(PB, 4)))
    A("s_nop 1")
    A("v_mfma_f32_16x16x16_bf16 %s, %s, %s, %s" % (v(LS, 4), v(ONE, 2), v(PB + 4, 2), v(LS, 4)))
    for et in range(4):
        A("v_mfma_f32_16x16x16_bf16 %s, %s, %s, %s" % (v(OT + 4 * et, 4), v(PV + 2 * (et >> 1), 2), v(PB + 4 + 2 * (et & 1), 2), v(OT + 4 * et, 4)))
    A("s_nop 4")
    A("v_rcp_f32 v%d, v%d" % (x, LS))
    A("s_nop 2")
    for i in range(16): A("v_mul_f32 v%d, v%d, v%d" % (OT + i, OT + i, x))
    for a_ in range(2):
        d = TMP + 4 if a_ == 0 else OT
        src = OT + 8 * a_
        dd = Xf + 4 * a_
        for q in range(4): A("v_cvt_pk_bf16_f32 v%d, v%d, v%d" % (dd + q, src + 2 * q, src + 2 * q + 1))
    A("s_lshl_b32 %s, %s, 12" % (s(pT), s(sTT))); A("s_lshl_b32 %s, %s, 11" % (s(pT + 1), s(sPART))); A("s_add_u32 %s, %s, %s" % (s(pT), s(pT), s(pT + 1)))
    A("v_add_u32 v%d, %s, v%d" % (TMP, s(pT), vL16))
    A("s_barrier")
    A("ds_write_b128 v%d, %s offset:%d" % (TMP, v(Xf, 4), L_O))
    A("ds_write_b128 v%d, %s offset:%d" % (TMP, v(Xf + 4, 4), L_O + 1024))
    A("s_waitcnt lgkmcnt(0)")
    A("s_barrier")
    for ks in range(4):
        for tt in range(2):
            A("ds_read_b128 %s, v%d offset:%d" % (v(OB(tt, ks), 4), vL16, L_O + tt * 4096 + ks * 1024))
    def lw(ks): A("s_waitcnt lgkmcnt(%d)" % (6 - 2 * ks))
    k128_gemm(A, WREG, OB, ACCf, lw)
    trace(A, 2)
    A("s_nop 7")
    A("s_and_b32 %s, %s, %d" % (s(pT), s(pS), RING - 1)); A("s_mul_i32 %s, %s, %d" % (s(pT), s(pT), 32 * 32 * PROW)); A("s_add_u32 %s, %s, %s" % (s(pT), s(pT), s(sOUT)))
    pstore(A, ACCf, vTok, vTok9, vBP, vBP9, pT, 16, 32 * PROW, sLO8)
    A("s_add_u32 %s, %s, 1" % (s(pPEND), s(pS)))
    A("s_add_u32 %s, %s, %d" % (s(pS), s(pS), nsets))
    A("s_cmp_lt_u32 %s, %d" % (s(pS), nseg))
    A("s_cbranch_scc1 %s" % top)
    m1 = A.mark()
    set_flag(A, s(pFOFF), s(pPEND), TMP)
    return (m0, m1)

def build_role_test(name, role_fn, idreg_expr):
    A = Asm(); kstart(A, name)
    fail = "L_fail_" + name; end = "L_end_" + name
    load_srd(A, pDBG, "dbg"); load_srd(A, pWS, "ws")
    A("v_lshrrev_b32 v1, 6, v0"); A("s_nop 0"); A("v_readfirstlane_b32 %s, v1" % s(pWV))
    A("s_mov_b32 %s, s2" % s(pID)); A("s_mov_b32 %s, 0" % s(pFAST)); A("s_mov_b32 %s, 0" % s(pPEND))
    A("s_memrealtime s[96:97]")
    mm = role_fn(A, fail)
    A("s_memrealtime s[100:101]"); A("s_waitcnt lgkmcnt(0)"); A("s_sub_u32 s100, s100, s96")
    A("v_mov_b32 v16, s100"); A("s_lshl_b32 %s, s2, 2" % s(pT)); A("s_add_u32 %s, %s, 0x%x" % (s(pT), s(pT), FLG + 0x1000))
    A("v_mov_b32 v1, 0"); A("s_mov_b64 exec, 1"); A("buffer_store_dword v16, v1, %s, %s offen" % (s(pWS, 4), s(pT)))
    A("s_endpgm")
    A.label(fail); A("v_mov_b32 v1, 0xf0"); A("v_mov_b32 v2, 0xdead"); A("s_mov_b64 exec, 1"); A("buffer_store_dword v2, v1, %s, 0 offen sc1" % s(pDBG, 4))
    A.label(end); A("s_endpgm")
    probs = lint(A.lines, name + "-linear", verbose=True)
    if mm: probs += lint(A.lines[mm[0]:mm[1]] * 2, name + "-loop", verbose=True)
    return HDR + A.text() + '.section .rodata,"a"\n' + kdesc(name), name, probs
if __name__ == "__main__":
    from hiprun import add_metadata, assemble
    txt, name, probs = build_role_test("r12_kernel", lambda A, f: emit_r12(A, f), None)
    open("r12.s", "w").write(add_metadata(txt, [(name, 256)], 120)); assemble("r12.s", "r12.co"); print("ok", txt.count("\n"))

def emit_sel(A, dst, tmp):
    A("v_and_b32 v%d, 15, v0" % tmp)
    A("v_mov_b32 v%d, 0x3f80" % (tmp + 1)); A("v_mov_b32 v%d, 0x3f800000" % (tmp + 2))
    A("v_and_b32 v%d, 1, v%d" % (dst, tmp)); A("v_cmp_eq_u32 vcc, 0, v%d" % dst); A("s_nop 1")
    A("v_cndmask_b32 v%d, v%d, v%d, vcc" % (tmp + 1, tmp + 2, tmp + 1))
    A("v_lshrrev_b32 v%d, 1, v%d" % (tmp, tmp))
    for q in range(4):
        A("v_cmp_eq_u32 vcc, %d, v%d" % (q, tmp)); A("s_nop 1"); A("v_cndmask_b32 v%d, 0, v%d, vcc" % (dst + q, tmp + 1))

def reduce_rows_consts(A, vM, vX, vX2, nprod, tmp):
    A("v_and_b32 v%d, 63, v0" % tmp); A("v_lshrrev_b32 v%d, 4, v%d" % (tmp + 1, tmp)); A("v_and_b32 v%d, 15, v%d" % (tmp + 2, tmp))
    A("v_mul_u32_u24 v%d, %d, v%d" % (vM, ROW, tmp + 1)); A("v_lshl_add_u32 v%d, v%d, 4, v%d" % (vM, tmp + 2, vM))
    A("v_lshrrev_b32 v%d, 1, v%d" % (tmp + 3, tmp + 2))
    A("v_lshl_add_u32 v%d, v%d, 2, v%d" % (vX, tmp + 3, tmp + 1)); A("v_mul_u32_u24 v%d, %d, v%d" % (vX, ROW, vX))
    A("v_and_b32 v%d, 1, v%d" % (tmp + 4, tmp + 2)); A("v_add_u32 v%d, 16, v%d" % (tmp + 4, tmp + 4))
    A("v_lshl_add_u32 v%d, v%d, 4, v%d" % (vX, tmp + 4, vX))
    if nprod > 32:
        A("v_add_u32 v%d, 32, v%d" % (vX2, tmp + 1)); A("v_mul_u32_u24 v%d, %d, v%d" % (vX2, ROW, vX2)); A("v_lshl_add_u32 v%d, v%d, 4, v%d" % (vX2, tmp + 4, vX2))
        A("v_mov_b32 v%d, 0x40000000" % (tmp + 4)); A("v_cmp_eq_u32 vcc, 0, v%d" % (tmp + 3)); A("s_nop 1")
        A("v_cndmask_b32 v%d, v%d, v%d, vcc" % (vX2, tmp + 4, vX2))

def reduce_issue(A, sbase, nprod, vM, vX, vX2, LD):
    nm = nprod // 4
    for n in range(nm):
        A("s_add_u32 %s, %s, %d" % (s(pT + 8), s(sbase), n * 4 * ROW))
        A("buffer_load_dwordx4 %s, v%d, %s, %s offen sc1" % (v(LD + 4 * n, 4), vM, s(pWS, 4), s(pT + 8)))
    A("buffer_load_dwordx4 %s, v%d, %s, %s offen sc1" % (v(LD + 4 * nm, 4), vX, s(pWS, 4), s(sbase)))
    if nprod > 32:
        A("buffer_load_dwordx4 %s, v%d, %s, %s offen sc1" % (v(LD + 4 * nm + 4, 4), vX2, s(pWS, 4), s(sbase)))
def reduce_consume(A, nprod, LD, SEL, DM, DX, younger=0):
    nm = nprod // 4; nx = 2 if nprod > 32 else 1
    for n in range(nm):
        A("s_waitcnt vmcnt(%d)" % (nm - 1 - n + nx + younger))
        A("v_mfma_f32_16x16x32_bf16 %s, %s, %s, %s" % (v(DM, 4), v(SEL, 4), v(LD + 4 * n, 4), "0" if n == 0 else v(DM, 4)))
    for k in range(nx):
        A("s_waitcnt vmcnt(%d)" % (nx - 1 - k + younger))
        A("v_mfma_f32_16x16x32_bf16 %s, %s, %s, %s" % (v(DX, 4), v(SEL, 4), v(LD + 4 * (nm + k), 4), "0" if k == 0 else v(DX, 4)))
    A("s_nop 7")
    for sh in (2, 4, 8):
        for r in range(4): A("v_add_f32_dpp v%d, v%d, v%d row_shl:%d row_mask:0xf bank_mask:0xf bound_ctrl:1" % (DX + r, DX + r, DX + r, sh))
def reduce_rows(A, sbase, nprod, vM, vX, vX2, LD, SEL, DM, DX):
    reduce_issue(A, sbase, nprod, vM, vX, vX2, LD)
    reduce_consume(A, nprod, LD, SEL, DM, DX)

def rowpos_consts(A, vSm, vSx, vNm, vNx, tmp):
    A("v_and_b32 v%d, 63, v0" % tmp); A("v_lshrrev_b32 v%d, 4, v%d" % (tmp + 1, tmp)); A("v_and_b32 v%d, 15, v%d" % (tmp + 2, tmp))
    A("s_mul_i32 %s, %s, 18" % (s(pT + 8), s(pWV)))
    for (vs, vn, add, cmax) in ((vSm, vNm, 0, 16), (vSx, vNx, 16, 2)):
        A("v_add_u32 v%d, %s, v%d" % (tmp + 3, s(pT + 8), tmp + 2))
        if add: A("v_add_u32 v%d, %d, v%d" % (tmp + 3, add, tmp + 3))
        A("v_lshlrev_b32 v%d, 4, v%d" % (vs, tmp + 3)); A("v_lshl_add_u32 v%d, v%d, 3, v%d" % (vs, tmp + 1, vs))
        A("v_lshrrev_b32 v%d, 2, v%d" % (vn, tmp + 3)); A("v_lshlrev_b32 v%d, 6, v%d" % (vn, vn))
        A("v_lshl_add_u32 v%d, v%d, 5, v%d" % (vn, tmp + 1, vn))
        A("v_and_b32 v%d, 3, v%d" % (tmp + 4, tmp + 3)); A("v_lshl_add_u32 v%d, v%d, 3, v%d" % (vn, tmp + 4, vn))
        A("v_cmp_gt_u32 vcc, %d, v%d" % (cmax, tmp + 2)); A("v_cmp_gt_u32 %s, 2, v%d" % (s(pT + 10, 2), tmp + 1)); A("s_nop 1")
        A("s_and_b64 vcc, vcc, %s" % s(pT + 10, 2)); A("v_mov_b32 v%d, 0x40000000" % (tmp + 4)); A("s_nop 0")
        A("v_cndmask_b32 v%d, v%d, v%d, vcc" % (vs, tmp + 4, vs)); A("v_cndmask_b32 v%d, v%d, v%d, vcc" % (vn, tmp + 4, vn))

def rb16(A, r):
    A("v_cvt_pk_bf16_f32 v%d, v%d, v%d" % (r, r, r)); A("v_lshlrev_b32 v%d, 16, v%d" % (r, r))

def wave_sum2(A, a_, b_, t):
    for sh in (1, 2, 4, 8):
        A("v_add_f32_dpp v%d, v%d, v%d row_ror:%d row_mask:0xf bank_mask:0xf" % (t, a_, a_, sh))
        A("v_add_f32_dpp v%d, v%d, v%d row_ror:%d row_mask:0xf bank_mask:0xf" % (t + 1, b_, b_, sh))
        A("v_mov_b32 v%d, v%d" % (a_, t)); A("v_mov_b32 v%d, v%d" % (b_, t + 1)); A("s_nop 0")
    for sw in ("v_permlane16_swap_b32", "v_permlane32_swap_b32"):
        A("v_mov_b32 v%d, v%d" % (t, a_)); A("v_mov_b32 v%d, v%d" % (t + 1, b_)); A("s_nop 0")
        A("%s v%d, v%d" % (sw, a_, t)); A("%s v%d, v%d" % (sw, b_, t + 1))
        A("v_add_f32 v%d, v%d, v%d" % (a_, a_, t)); A("v_add_f32 v%d, v%d, v%d" % (b_, b_, t + 1))

def ln_row(A, vals, vsum, vsq, t, lds_off, vLdsW, vLdsR):
    A("v_add_f32 v%d, v%d, v%d" % (vsum, vals[0], vals[1])); A("v_mul_f32 v%d, v%d, v%d" % (vsq, vals[0], vals[0]))
    A("v_fma_f32 v%d, v%d, v%d, v%d" % (vsq, vals[1], vals[1], vsq))
    for r in vals[2:]:
        A("v_add_f32 v%d, v%d, v%d" % (vsum, vsum, r)); A("v_fma_f32 v%d, v%d, v%d, v%d" % (vsq, r, r, vsq))
    A("s_nop 0")
    wave_sum2(A, vsum, vsq, t)
    A("v_mov_b32 v%d, v%d" % (t, vsum)); A("v_mov_b32 v%d, v%d" % (t + 1, vsq))
    A("s_mov_b64 exec, 1"); A("ds_write_b64 v%d, %s offset:%d" % (vLdsW, v(t, 2), lds_off)); A("s_mov_b64 exec, -1")
    A("s_waitcnt lgkmcnt(0)"); A("s_barrier")
    A("ds_read_b128 %s, v%d offset:%d" % (v(t, 4), vLdsR, lds_off)); A("ds_read_b128 %s, v%d offset:%d" % (v(t + 4, 4), vLdsR, lds_off + 16))
    A("s_waitcnt lgkmcnt(0)")
    A("v_add_f32 v%d, v%d, v%d" % (vsum, t, t + 2)); A("v_add_f32 v%d, v%d, v%d" % (vsq, t + 1, t + 3))
    A("v_add_f32 v%d, v%d, v%d" % (t, t + 4, t + 6)); A("v_add_f32 v%d, v%d, v%d" % (t + 1, t + 5, t + 7))
    A("v_add_f32 v%d, v%d, v%d" % (vsum, vsum, t)); A("v_add_f32 v%d, v%d, v%d" % (vsq, vsq, t + 1))
    A("v_mul_f32 v%d, 0x%x, v%d" % (vsum, f2u(1.0 / 576), vsum)); A("v_mul_f32 v%d, 0x%x, v%d" % (vsq, f2u(1.0 / 576), vsq))
    A("v_fma_f32 v%d, -v%d, v%d, v%d" % (vsq, vsum, vsum, vsq)); A("v_max_f32 v%d, 0, v%d" % (vsq, vsq))
    rb16(A, vsum); rb16(A, vsq)
    A("v_add_f32 v%d, 0x%x, v%d" % (vsq, f2u(1e-5), vsq)); rb16(A, vsq)
    A("v_sqrt_f32 v%d, v%d" % (vsq, vsq)); A("s_nop 0"); rb16(A, vsq)
    A("v_rcp_f32 v%d, v%d" % (vsq, vsq))
    for r in vals: A("v_sub_f32 v%d, v%d, v%d" % (r, r, vsum))
    for r in vals: rb16(A, r)
    for r in vals: A("v_mul_f32 v%d, v%d, v%d" % (r, r, vsq))
    for r in vals: rb16(A, r)

def unpack4(A, src, dst):
    A("v_lshlrev_b32 v%d, 16, v%d" % (dst, src)); A("v_and_b32 v%d, 0xffff0000, v%d" % (dst + 1, src))
    A("v_lshlrev_b32 v%d, 16, v%d" % (dst + 2, src + 1)); A("v_and_b32 v%d, 0xffff0000, v%d" % (dst + 3, src + 1))

def role_top(A, fail, vFl, sflag, target_expr_fn, tmp, first_label):
    pass

def emit_r3(A, fail, nseg=64):
    A.c("=== R3")
    vM, vX, vSm, vSx, vNm, vNx, vFl, vLW_, vLR = 1, 2, 3, 4, 5, 6, 7, 8, 9
    SEL, DM, DX, XQ, TMP, LD = 12, 16, 20, 24, 28, 48
    load_srd(A, pW, "x")
    emit_sel(A, SEL, TMP)
    reduce_rows_consts(A, vM, vX, None, 32, TMP)
    rowpos_consts(A, vSm, vSx, vNm, vNx, TMP)
    A("v_and_b32 v%d, 63, v0" % TMP); A("v_min_u32 v%d, 31, v%d" % (vFl, TMP)); A("v_lshlrev_b32 v%d, 2, v%d" % (vFl, vFl))
    A("v_mov_b32 v%d, 0" % vLR); A("s_lshl_b32 %s, %s, 3" % (s(pT), s(pWV))); A("v_mov_b32 v%d, %s" % (vLW_, s(pT)))
    A("s_lshl_b32 %s, %s, 2" % (s(pFOFF), s(pID))); A("s_add_u32 %s, %s, 0x%x" % (s(pFOFF), s(pFOFF), F_R3))
    sIN, sROW, sFL = 44, 45, 46
    A("s_mov_b32 %s, 0" % s(pS))
    top = A.newlab("r3_top"); m0 = A.mark(); A.label(top)
    A("s_lshl_b32 %s, %s, 5" % (s(sROW), s(pS))); A("s_add_u32 %s, %s, %s" % (s(sROW), s(sROW), s(pID))); A("s_mul_i32 %s, %s, %d" % (s(sROW), s(sROW), ROW))
    A("buffer_load_dwordx2 %s, v%d, %s, %s offen" % (v(XQ, 2), vNm, s(pW, 4), s(sROW)))
    A("buffer_load_dwordx2 %s, v%d, %s, %s offen" % (v(XQ + 2, 2), vNx, s(pW, 4), s(sROW)))
    A("s_and_b32 %s, %s, 1" % (s(sFL), s(pS))); A("s_lshl_b32 %s, %s, 7" % (s(sFL), s(sFL))); A("s_add_u32 %s, %s, 0x%x" % (s(sFL), s(sFL), F_R12))
    A("s_add_u32 %s, %s, 1" % (s(pT + 4), s(pS)))
    wait_flags(A, vFl, s(sFL), s(pT + 4), fail, TMP, pend_sc="sc1")
    trace(A, 0)
    A("s_and_b32 %s, %s, %d" % (s(sIN), s(pS), RING - 1)); A("s_mul_i32 %s, %s, %d" % (s(sIN), s(sIN), 32 * 32 * ROW)); A("s_mul_i32 %s, %s, %d" % (s(pT), s(pID), 32 * ROW))
    A("s_add_u32 %s, %s, %s" % (s(sIN), s(sIN), s(pT))); A("s_mul_i32 %s, %s, 288" % (s(pT), s(pWV))); A("s_add_u32 %s, %s, %s" % (s(sIN), s(sIN), s(pT)))
    A("s_add_u32 %s, %s, 0x%x" % (s(sIN), s(sIN), P12))
    reduce_rows(A, sIN, 32, vM, vX, None, LD, SEL, DM, DX)
    trace(A, 1)
    vals = [DM + r for r in range(4)] + [DX + r for r in range(4)]
    for r in vals: rb16(A, r)
    unpack4(A, XQ, TMP); unpack4(A, XQ + 2, TMP + 4)
    for i, r in enumerate(vals): A("v_add_f32 v%d, v%d, v%d" % (r, r, TMP + i))
    for r in vals: rb16(A, r)
    A("v_cmp_gt_u32 vcc, 0x40000000, v%d" % vSx); A("s_nop 1")
    for r in range(4): A("v_cndmask_b32 v%d, 0, v%d, vcc" % (DX + r, DX + r))
    def store_row(base):
        A("v_perm_b32 v%d, v%d, v%d, %s" % (TMP, DM + 1, DM, s(pT + 14))); A("v_perm_b32 v%d, v%d, v%d, %s" % (TMP + 1, DM + 3, DM + 2, s(pT + 14)))
        A("v_perm_b32 v%d, v%d, v%d, %s" % (TMP + 2, DX + 1, DX, s(pT + 14))); A("v_perm_b32 v%d, v%d, v%d, %s" % (TMP + 3, DX + 3, DX + 2, s(pT + 14)))
        A("s_add_u32 %s, %s, 0x%x" % (s(pT + 8), s(sROW), base))
        A("buffer_store_dwordx2 %s, v%d, %s, %s offen sc1" % (v(TMP, 2), vSm, s(pWS, 4), s(pT + 8)))
        A("buffer_store_dwordx2 %s, v%d, %s, %s offen sc1" % (v(TMP + 2, 2), vSx, s(pWS, 4), s(pT + 8)))
    A("s_mov_b32 %s, 0x07060302" % s(pT + 14))
    store_row(HB)
    ln_row(A, vals, TMP + 8, TMP + 9, TMP + 10, 0, vLW_, vLR)
    A("v_cmp_gt_u32 vcc, 0x40000000, v%d" % vSx); A("v_cmp_gt_u32 %s, 0x40000000, v%d" % (s(pT + 10, 2), vSm)) if False else None
    A("s_nop 1")
    for r in range(4): A("v_cndmask_b32 v%d, 0, v%d, vcc" % (DX + r, DX + r))
    A("v_cmp_gt_u32 vcc, 0x40000000, v%d" % vSm); A("s_nop 1")
    for r in range(4): A("v_cndmask_b32 v%d, 0, v%d, vcc" % (DM + r, DM + r))
    store_row(HNB)
    ln_row(A, vals, TMP + 8, TMP + 9, TMP + 10, 64, vLW_, vLR)
    store_row(TB)
    trace(A, 2)
    A("s_add_u32 %s, %s, 1" % (s(pS), s(pS))); A("s_mov_b32 %s, %s" % (s(pPEND), s(pS)))
    A("s_cmp_lt_u32 %s, %d" % (s(pS), nseg)); A("s_cbranch_scc1 %s" % top)
    m1 = A.mark()
    set_flag(A, s(pFOFF), s(pPEND), TMP)
    return (m0, m1)

def stage_consts(A, VS, vB0, tmp):
    A("v_and_b32 v%d, 63, v0" % tmp)
    for i in range(9):
        A("s_lshl_b32 %s, %s, 6" % (s(pT + 8), s(pWV))); A("s_add_u32 %s, %s, %d" % (s(pT + 8), s(pT + 8), 256 * i))
        A("v_add_u32 v%d, %s, v%d" % (tmp + 1, s(pT + 8), tmp))
        A("v_mul_u32_u24 v%d, 58255, v%d" % (tmp + 2, tmp + 1)); A("v_lshrrev_b32 v%d, 22, v%d" % (tmp + 2, tmp + 2))
        A("v_mul_u32_u24 v%d, 72, v%d" % (tmp + 3, tmp + 2)); A("v_sub_u32 v%d, v%d, v%d" % (tmp + 3, tmp + 1, tmp + 3))
        A("v_bfe_u32 v%d, v%d, 1, 3" % (tmp + 4, tmp + 2)); A("v_xor_b32 v%d, v%d, v%d" % (tmp + 3, tmp + 3, tmp + 4))
        A("v_lshlrev_b32 v%d, 4, v%d" % (tmp + 3, tmp + 3))
        A("v_mul_u32_u24 v%d, %d, v%d" % (tmp + 2, ROW, tmp + 2)); A("v_add_u32 v%d, v%d, v%d" % (VS + i, tmp + 2, tmp + 3))
    A("v_and_b32 v%d, 15, v%d" % (tmp + 1, tmp)); A("v_lshrrev_b32 v%d, 4, v%d" % (tmp + 2, tmp))
    A("v_bfe_u32 v%d, v%d, 1, 3" % (tmp + 3, tmp + 1)); A("v_xor_b32 v%d, v%d, v%d" % (tmp + 3, tmp + 3, tmp + 2)); A("v_lshlrev_b32 v%d, 4, v%d" % (tmp + 3, tmp + 3))
    A("v_mul_u32_u24 v%d, %d, v%d" % (tmp + 1, ROW, tmp + 1)); A("v_add_u32 v%d, v%d, v%d" % (vB0, tmp + 1, tmp + 3)); A("v_xor_b32 v%d, 64, v%d" % (vB0 + 1, vB0))

def stage_rows(A, sbase, VS, lds_base, sc="sc1"):
    A("s_lshl_b32 %s, %s, 10" % (s(pT + 9), s(pWV)))
    for i in range(9):
        A("s_add_u32 m0, %s, %d" % (s(pT + 9), lds_base + i * 4096)); A("s_nop 0")
        A("buffer_load_dwordx4 v%d, %s, %s offen %s lds" % (VS + i, s(pWS, 4), s(sbase), sc))

def bfrag_read(A, dst, vB0, lds_base, tt, ks):
    A("ds_read_b128 %s, v%d offset:%d" % (v(dst, 4), vB0 + (ks & 1), lds_base + tt * 16 * ROW + (ks >> 1) * 128))

def load_w576(A, srd, scol, grow, rowbytes, ntile, WREG, tilebyte_sreg, tmp):
    lanes_per_row = rowbytes // 16; rows_per = 64 // lanes_per_row; ninstr = 576 // rows_per // 4
    A("v_and_b32 v%d, 63, v0" % tmp)
    A("v_lshrrev_b32 v%d, %d, v%d" % (tmp + 1, lanes_per_row.bit_length() - 1, tmp)); A("v_and_b32 v%d, %d, v%d" % (tmp + 2, lanes_per_row - 1, tmp))
    A("s_mov_b32 %s, %d" % (s(pT + 8), grow)); A("v_mul_lo_u32 v%d, v%d, %s" % (tmp + 1, tmp + 1, s(pT + 8))); A("v_lshl_add_u32 v%d, v%d, 4, v%d" % (tmp + 1, tmp + 2, tmp + 1))
    A("s_mul_i32 %s, %s, %d" % (s(pT + 10), s(pWV), rows_per * grow)); A("s_add_u32 %s, %s, %s" % (s(pT + 10), s(pT + 10), s(scol)))
    A("s_lshl_b32 %s, %s, 10" % (s(pT + 9), s(pWV)))
    for i in range(ninstr):
        A("s_add_u32 m0, %s, %d" % (s(pT + 9), i * 4096))
        A("s_add_u32 %s, %s, %d" % (s(pT + 8), s(pT + 10), i * 4 * rows_per * grow))
        A("buffer_load_dwordx4 v%d, %s, %s offen lds" % (tmp + 1, s(srd, 4), s(pT + 8)))
    A("s_waitcnt vmcnt(0)"); A("s_barrier")
    A("v_lshrrev_b32 v%d, 4, v%d" % (tmp + 1, tmp)); A("v_bfe_u32 v%d, v%d, 2, 2" % (tmp + 2, tmp)); A("v_lshl_add_u32 v%d, v%d, 2, v%d" % (tmp + 1, tmp + 1, tmp + 2))
    A("v_mul_u32_u24 v%d, %d, v%d" % (tmp + 1, rowbytes, tmp + 1)); A("v_and_b32 v%d, 3, v%d" % (tmp + 2, tmp)); A("v_lshl_add_u32 v%d, v%d, 3, v%d" % (tmp + 1, tmp + 2, tmp + 1))
    A("v_add_u32 v%d, %s, v%d" % (tmp + 1, tilebyte_sreg, tmp + 1))
    cnt = 0
    for ks in range(18):
        for u in range(2):
            A("v_add_u32 v%d, %d, v%d" % (tmp + 3, (32 * ks + 16 * u) * rowbytes, tmp + 1))
            for i in range(ntile):
                sp = WREG(i, ks)
                A("ds_read_b64_tr_b16 %s, v%d offset:%d" % (R((sp[0], sp[1] + 2 * u), 2), tmp + 3, i * 32)); cnt += 1
                if cnt % 12 == 0: A("s_waitcnt lgkmcnt(0)")
    A("s_waitcnt lgkmcnt(0)"); A("s_barrier")

GC0 = -2.0 * 0.7978845608028654 * 1.4426950408889634
GC1 = GC0 * 0.044715
def gelu(A, regs, t):
    A("s_mov_b32 %s, 0x%x" % (s(pT + 12), f2u(GC1))); A("s_mov_b32 %s, 0x%x" % (s(pT + 13), f2u(GC0)))
    for i, r in enumerate(regs): A("v_mul_f32 v%d, v%d, v%d" % (t + i, r, r))
    for i, r in enumerate(regs): A("v_mov_b32 v%d, %s" % (t + len(regs), s(pT + 13))) if i == 0 else None
    for i, r in enumerate(regs): A("v_fma_f32 v%d, v%d, %s, v%d" % (t + i, t + i, s(pT + 12), t + len(regs)))
    for i, r in enumerate(regs): A("v_mul_f32 v%d, v%d, v%d" % (t + i, t + i, r))
    for i, r in enumerate(regs): A("v_exp_f32 v%d, v%d" % (t + i, t + i))
    for i, r in enumerate(regs): A("v_add_f32 v%d, 1.0, v%d" % (t + i, t + i))
    for i, r in enumerate(regs): A("v_rcp_f32 v%d, v%d" % (t + i, t + i))
    A("s_nop 0")
    for i, r in enumerate(regs): A("v_mul_f32 v%d, v%d, v%d" % (r, r, t + i))

def small_gemm(A, WREG, ACC, BF, vB0, lds_base, ntile, fillers=None):
    fillers = [l for l in (fillers or []) if not l.startswith(";")]
    def rd(ks):
        for tt in range(2): bfrag_read(A, BF[ks & 1][tt], vB0, lds_base, tt, ks)
    rd(0)
    nm = 18 * ntile * 2; per = -(-len(fillers) // (nm - 4)) if fillers else 0
    for ks in range(18):
        if ks + 1 < 18:
            rd(ks + 1); A("s_waitcnt lgkmcnt(2)")
        else: A("s_waitcnt lgkmcnt(0)")
        for i in range(ntile):
            for tt in range(2):
                A("v_mfma_f32_16x16x32_bf16 %s, %s, %s, %s" % (v(ACC(i, tt), 4), R(WREG(i, ks), 4), v(BF[ks & 1][tt], 4), "0" if ks == 0 else v(ACC(i, tt), 4)))
                for _ in range(per):
                    if fillers: A(fillers.pop(0))
    while fillers: A(fillers.pop(0))

def emit_r4(A, fail, nseg=64, st="sc1", nsets=2, hook=None):
    A.c("=== R4")
    sSET = 47
    A("s_lshl_b32 %s, %s, 2" % (s(pFOFF), s(pID))); A("s_add_u32 %s, %s, 0x%x" % (s(pFOFF), s(pFOFF), F_R4))
    A("s_cmp_ge_u32 %s, 9" % s(pID)); A("s_cselect_b32 %s, 1, 0" % s(sSET)); A("s_mul_i32 %s, %s, 9" % (s(pT), s(sSET))); A("s_sub_u32 %s, %s, %s" % (s(pID), s(pID), s(pT)))
    WREG = lambda i, ks: ('a', 4 * ks)
    vFl, vB0, vOut, VS, TMP = 1, 2, 4, 6, 16
    BF = [[40, 44], [48, 52]]; ACC = lambda i, tt: 56 + 4 * tt
    load_srd(A, pW, "w1")
    A("s_lshl_b32 %s, %s, 7" % (s(pT), s(pID)))
    A("s_lshl_b32 %s, %s, 5" % (s(pT + 1), s(pWV)))
    load_w576(A, pW, pT, 1152, 128, 1, WREG, s(pT + 1), TMP)
    stage_consts(A, VS, vB0, TMP)
    A("v_and_b32 v%d, 63, v0" % TMP); A("v_min_u32 v%d, 31, v%d" % (vFl, TMP)); A("v_lshlrev_b32 v%d, 2, v%d" % (vFl, vFl))
    sTl, sDL, sPOS = 44, 45, 46
    A("s_lshl_b32 %s, %s, 2" % (s(sTl), s(pID))); A("s_add_u32 %s, %s, %s" % (s(sTl), s(sTl), s(pWV)))
    A("s_mov_b32 %s, 1" % s(sDL))
    for thr, d in ((9, -1), (18, 2), (27, -2)):
        A("s_cmp_ge_u32 %s, %d" % (s(sTl), thr)); A("s_cselect_b32 %s, %d, %s" % (s(sDL), d, s(sDL)))
    A("s_lshr_b32 %s, %s, 1" % (s(sPOS), s(sTl))); A("s_lshl_b32 %s, %s, 6" % (s(sPOS), s(sPOS)))
    A("s_and_b32 %s, %s, 1" % (s(pT), s(sTl))); A("s_lshl_b32 %s, %s, 3" % (s(pT), s(pT))); A("s_add_u32 %s, %s, %s" % (s(sPOS), s(sPOS), s(pT)))
    A("s_add_u32 %s, %s, 0x%x" % (s(sPOS), s(sPOS), GSB))
    vC, vG16 = 4, 5
    A("v_and_b32 v%d, 15, v%d" % (vC, TMP)); A("v_lshrrev_b32 v%d, 4, v%d" % (vG16, TMP)); A("v_lshlrev_b32 v%d, 4, v%d" % (vG16, vG16))
    A("v_mov_b64 v[%d:%d], 0" % (TMP + 2, TMP + 3))
    A("s_cmp_gt_i32 %s, 0" % s(sDL)); A("s_cselect_b32 %s, 0, 2046" % s(pT))
    A("v_add_u32 v%d, %s, v%d" % (TMP + 4, s(pT), vC))
    A("s_abs_i32 %s, %s" % (s(pT + 1), s(sDL)))
    A("s_cmp_eq_u32 %s, 2" % s(pT + 1)); A("s_cselect_b32 %s, 3, 0" % s(pT + 2))
    A("s_cmp_eq_i32 %s, 1" % s(sDL)); A("s_cselect_b32 %s, 1, %s" % (s(pT + 2), s(pT + 2)))
    A("s_cmp_eq_i32 %s, -1" % s(sDL)); A("s_cselect_b32 %s, 2, %s" % (s(pT + 2), s(pT + 2)))
    A("v_lshlrev_b32 v%d, v%d, 1" % (TMP + 5, vC) if False else "v_mov_b32 v%d, 1" % (TMP + 5)); A("v_lshlrev_b32 v%d, v%d, v%d" % (TMP + 5, vC, TMP + 5))
    A("v_and_b32 v%d, %s, v%d" % (TMP + 5, s(pT + 2), TMP + 5)); A("v_cmp_ne_u32 vcc, 0, v%d" % (TMP + 5))
    A("v_mul_u32_u24 v%d, %d, v%d" % (TMP + 4, ROW, TMP + 4)); A("v_add_u32 v%d, v%d, v%d" % (TMP + 4, TMP + 4, vG16)); A("v_mov_b32 v%d, 0x40000000" % (TMP + 6))
    A("v_cndmask_b32 v%d, v%d, v%d, vcc" % (TMP + 4, TMP + 6, TMP + 4))
    A("buffer_store_dwordx2 %s, v%d, %s, %s offen %s" % (v(TMP + 2, 2), TMP + 4, s(pWS, 4), s(sPOS), st))
    if hook: hook(A)
    A("s_mov_b32 %s, %s" % (s(pS), s(sSET)))
    top = A.newlab("r4_top"); m0 = A.mark(); A.label(top)
    A("s_add_u32 %s, %s, 1" % (s(pT + 4), s(pS)))
    A("s_and_b32 %s, %s, 7" % (s(pT + 5), s(pS))); A("s_lshl_b32 %s, %s, 7" % (s(pT + 5), s(pT + 5))); A("s_add_u32 %s, %s, 0x%x" % (s(pT + 5), s(pT + 5), F_R3))
    wait_flags(A, vFl, s(pT + 5), s(pT + 4), fail, TMP, pend_sc=st)
    trace(A, 0)
    A("s_mul_i32 %s, %s, %d" % (s(pT), s(pS), 32 * ROW)); A("s_add_u32 %s, %s, 0x%x" % (s(pT), s(pT), TB))
    stage_rows(A, pT, VS, 0)
    A("s_waitcnt vmcnt(0)"); A("s_barrier")
    trace(A, 1)
    small_gemm(A, WREG, ACC, BF, vB0, 0, 1)
    A("s_nop 7")
    regs = [56 + i for i in range(8)]
    for r in regs: rb16(A, r)
    gelu(A, regs, TMP)
    for tt in range(2):
        x = 56 + 4 * tt
        A("v_cvt_pk_bf16_f32 v%d, v%d, v%d" % (TMP + 2 * tt, x, x + 1)); A("v_cvt_pk_bf16_f32 v%d, v%d, v%d" % (TMP + 2 * tt + 1, x + 2, x + 3))
        A("s_lshl_b32 %s, %s, 5" % (s(pT), s(pS))); A("s_add_i32 %s, %s, %s" % (s(pT), s(pT), s(sDL))); A("s_add_i32 %s, %s, %d" % (s(pT), s(pT), 16 * tt))
        A("v_add_u32 v%d, %s, v%d" % (TMP + 4, s(pT), vC))
        A("v_cmp_gt_u32 vcc, 2048, v%d" % (TMP + 4))
        A("v_mul_u32_u24 v%d, %d, v%d" % (TMP + 4, ROW, TMP + 4)); A("v_add_u32 v%d, v%d, v%d" % (TMP + 4, TMP + 4, vG16)); A("v_mov_b32 v%d, 0x40000000" % (TMP + 5))
        A("v_cndmask_b32 v%d, v%d, v%d, vcc" % (TMP + 4, TMP + 5, TMP + 4))
        A("buffer_store_dwordx2 %s, v%d, %s, %s offen %s" % (v(TMP + 2 * tt, 2), TMP + 4, s(pWS, 4), s(sPOS), st))
    A("s_add_u32 %s, %s, 1" % (s(pPEND), s(pS))); A("s_add_u32 %s, %s, %d" % (s(pS), s(pS), nsets))
    A("s_cmp_lt_u32 %s, %d" % (s(pS), nseg)); A("s_cbranch_scc1 %s" % top)
    m1 = A.mark()
    set_flag(A, s(pFOFF), s(pPEND), TMP + 8, sc=st)
    return (m0, m1)

def emit_r5(A, fail, nseg=64, st_in="sc1", nsets=2, hook=None):
    A.c("=== R5")
    sSET = 47
    A("s_lshl_b32 %s, %s, 2" % (s(pFOFF), s(pID))); A("s_add_u32 %s, %s, 0x%x" % (s(pFOFF), s(pFOFF), F_R5))
    A("s_cmp_ge_u32 %s, 9" % s(pID)); A("s_cselect_b32 %s, 1, 0" % s(sSET)); A("s_mul_i32 %s, %s, 9" % (s(pT), s(sSET))); A("s_sub_u32 %s, %s, %s" % (s(pID), s(pID), s(pT)))
    WREG = lambda i, ks: ('a', 4 * ks)
    vFl, vB0, vC, vRowG, VS, TMP = 1, 2, 4, 5, 6, 16
    BF = [[40, 44], [48, 52]]; ACC = lambda i, tt: 56 + 4 * tt; HN = 64
    load_srd(A, pW, "w2")
    A("s_lshl_b32 %s, %s, 7" % (s(pT), s(pID))); A("s_lshl_b32 %s, %s, 5" % (s(pT + 1), s(pWV)))
    load_w576(A, pW, pT, 1152, 128, 1, WREG, s(pT + 1), TMP)
    stage_consts(A, VS, vB0, TMP)
    A("v_and_b32 v%d, 63, v0" % TMP); A("v_min_u32 v%d, 17, v%d" % (vFl, TMP))
    sOWN, vTgt = 48, 15
    A("v_cmp_le_u32 vcc, 9, v%d" % vFl); A("s_cmp_eq_u32 %s, 1" % s(sSET)); A("s_cselect_b64 %s, vcc, 0" % s(sOWN, 2))
    A("s_not_b64 vcc, vcc"); A("s_cmp_eq_u32 %s, 0" % s(sSET)); A("s_cselect_b64 %s, vcc, %s" % (s(sOWN, 2), s(sOWN, 2)))
    A("v_lshlrev_b32 v%d, 2, v%d" % (vFl, vFl))
    sTl, sPOS = 44, 46
    A("s_lshl_b32 %s, %s, 2" % (s(sTl), s(pID))); A("s_add_u32 %s, %s, %s" % (s(sTl), s(sTl), s(pWV)))
    A("s_lshr_b32 %s, %s, 1" % (s(sPOS), s(sTl))); A("s_lshl_b32 %s, %s, 6" % (s(sPOS), s(sPOS)))
    A("s_and_b32 %s, %s, 1" % (s(pT), s(sTl))); A("s_lshl_b32 %s, %s, 3" % (s(pT), s(pT))); A("s_add_u32 %s, %s, %s" % (s(sPOS), s(sPOS), s(pT)))
    A("v_and_b32 v%d, 15, v%d" % (vC, TMP)); A("v_lshrrev_b32 v%d, 4, v%d" % (TMP + 1, TMP))
    A("v_mul_u32_u24 v%d, %d, v%d" % (vRowG, ROW, vC)); A("v_lshl_add_u32 v%d, v%d, 4, v%d" % (vRowG, TMP + 1, vRowG))
    L_ST = 36864
    if hook: hook(A)
    A("s_mov_b32 %s, %s" % (s(pS), s(sSET)))
    top = A.newlab("r5_top"); m0 = A.mark(); A.label(top)
    A("s_add_u32 %s, %s, 1" % (s(pT + 4), s(pS))); A("s_add_u32 %s, %s, 2" % (s(pT + 5), s(pS)))
    A("s_cmp_eq_u32 %s, 63" % s(pS)); A("s_cselect_b32 %s, %s, %s" % (s(pT + 5), s(pS), s(pT + 5)))
    A("v_mov_b32 v%d, %s" % (vTgt, s(pT + 4))); A("v_mov_b32 v%d, %s" % (TMP + 3, s(pT + 5)))
    A("v_cndmask_b32 v%d, v%d, v%d, %s" % (vTgt, TMP + 3, vTgt, s(sOWN, 2)))
    A("s_mov_b32 %s, 0x%x" % (s(pT + 5), F_R4))
    wait_flags(A, vFl, s(pT + 5), "v%d" % vTgt, fail, TMP, sc=st_in, pend_sc="sc1")
    trace(A, 0)
    A("s_mul_i32 %s, %s, %d" % (s(pT + 6), s(pS), 32 * ROW))
    A("s_add_u32 %s, %s, 0x%x" % (s(pT), s(pT + 6), GSB))
    stage_rows(A, pT, VS, 0, sc=st_in)
    A("s_add_u32 %s, %s, %s" % (s(pT + 6), s(pT + 6), s(sPOS)))
    for tt in range(2):
        A("s_add_u32 %s, %s, 0x%x" % (s(pT), s(pT + 6), HNB + tt * 16 * ROW))
        A("buffer_load_dwordx2 %s, v%d, %s, %s offen sc1" % (v(HN + 2 * tt, 2), vRowG, s(pWS, 4), s(pT)))
    A("s_waitcnt vmcnt(0)"); A("s_barrier")
    trace(A, 1)
    small_gemm(A, WREG, ACC, BF, vB0, 0, 1)
    A("s_nop 7")
    regs = [56 + i for i in range(8)]
    for r in regs: rb16(A, r)
    for tt in range(2): unpack4(A, HN + 2 * tt, TMP + 4 * tt)
    for i, r in enumerate(regs): A("v_add_f32 v%d, v%d, v%d" % (r, r, TMP + i))
    for r in regs: rb16(A, r)
    for tt in range(2):
        x = 56 + 4 * tt
        A("v_cvt_pk_bf16_f32 v%d, v%d, v%d" % (TMP + 2 * tt, x, x + 1)); A("v_cvt_pk_bf16_f32 v%d, v%d, v%d" % (TMP + 2 * tt + 1, x + 2, x + 3))
        A("s_add_u32 %s, %s, 0x%x" % (s(pT), s(pT + 6), X1B + tt * 16 * ROW))
        A("buffer_store_dwordx2 %s, v%d, %s, %s offen sc1" % (v(TMP + 2 * tt, 2), vRowG, s(pWS, 4), s(pT)))
    for tt in range(2):
        x = 56 + 4 * tt; a_, b_ = TMP + 8 + 2 * tt, TMP + 9 + 2 * tt
        A("v_add_f32 v%d, v%d, v%d" % (a_, x, x + 1)); A("v_mul_f32 v%d, v%d, v%d" % (b_, x, x))
        A("v_add_f32 v%d, v%d, v%d" % (a_, a_, x + 2)); A("v_fma_f32 v%d, v%d, v%d, v%d" % (b_, x + 1, x + 1, b_))
        A("v_add_f32 v%d, v%d, v%d" % (a_, a_, x + 3)); A("v_fma_f32 v%d, v%d, v%d, v%d" % (b_, x + 2, x + 2, b_))
        A("v_fma_f32 v%d, v%d, v%d, v%d" % (b_, x + 3, x + 3, b_))
    for sw in ("v_permlane16_swap_b32", "v_permlane32_swap_b32"):
        for k in range(4): A("v_mov_b32 v%d, v%d" % (TMP + 12 + k, TMP + 8 + k))
        A("s_nop 0")
        for k in range(4): A("%s v%d, v%d" % (sw, TMP + 8 + k, TMP + 12 + k))
        for k in range(4): A("v_add_f32 v%d, v%d, v%d" % (TMP + 8 + k, TMP + 8 + k, TMP + 12 + k))
    A("s_lshl_b32 %s, %s, 8" % (s(pT), s(pWV))); A("v_lshl_add_u32 v%d, v%d, 3, %s" % (TMP, vC, s(pT)))
    A("s_mov_b64 exec, 0xffff")
    A("ds_write_b64 v%d, %s offset:%d" % (TMP, v(TMP + 8, 2), L_ST)); A("ds_write_b64 v%d, %s offset:%d" % (TMP, v(TMP + 10, 2), L_ST + 128))
    A("s_mov_b64 exec, -1")
    A("s_waitcnt lgkmcnt(0)"); A("s_barrier")
    sk = A.newlab("r5_st")
    A("s_cmp_eq_u32 %s, 0" % s(pWV)); A("s_cbranch_scc0 %s" % sk)
    A("v_and_b32 v%d, 31, v0" % TMP); A("v_lshlrev_b32 v%d, 3, v%d" % (TMP, TMP))
    for w_ in range(4): A("ds_read_b64 %s, v%d offset:%d" % (v(TMP + 2 + 2 * w_, 2), TMP, L_ST + 256 * w_))
    A("s_waitcnt lgkmcnt(0)")
    A("v_add_f32 v%d, v%d, v%d" % (TMP + 2, TMP + 2, TMP + 4)); A("v_add_f32 v%d, v%d, v%d" % (TMP + 3, TMP + 3, TMP + 5))
    A("v_add_f32 v%d, v%d, v%d" % (TMP + 6, TMP + 6, TMP + 8)); A("v_add_f32 v%d, v%d, v%d" % (TMP + 7, TMP + 7, TMP + 9))
    A("v_add_f32 v%d, v%d, v%d" % (TMP + 2, TMP + 2, TMP + 6)); A("v_add_f32 v%d, v%d, v%d" % (TMP + 3, TMP + 3, TMP + 7))
    A("s_mul_i32 %s, %s, 9" % (s(pT), s(pS))); A("s_add_u32 %s, %s, %s" % (s(pT), s(pT), s(pID))); A("s_lshl_b32 %s, %s, 8" % (s(pT), s(pT))); A("s_add_u32 %s, %s, 0x%x" % (s(pT), s(pT), STB))
    A("s_mov_b32 exec_hi, 0")
    A("buffer_store_dwordx2 %s, v%d, %s, %s offen sc1" % (v(TMP + 2, 2), TMP, s(pWS, 4), s(pT)))
    A("s_mov_b64 exec, -1")
    A.label(sk)
    A("s_add_u32 %s, %s, 1" % (s(pPEND), s(pS))); A("s_add_u32 %s, %s, %d" % (s(pS), s(pS), nsets))
    A("s_cmp_lt_u32 %s, %d" % (s(pS), nseg)); A("s_cbranch_scc1 %s" % top)
    m1 = A.mark()
    set_flag(A, s(pFOFF), s(pPEND), TMP + 12)
    return (m0, m1)

def emit_r67(A, fail, nseg=64, nsets=2, hook=None):
    A.c("=== R67")
    TRV[0] = 210
    sN, sSET = 44, 45
    A("s_cmp_ge_u32 %s, 36" % s(pID)); A("s_cselect_b32 %s, 1, 0" % s(sSET))
    A("s_mul_i32 %s, %s, 36" % (s(pT), s(sSET))); A("s_sub_u32 %s, %s, %s" % (s(sN), s(pID), s(pT)))
    W3 = lambda i, ks: ('a', (i * 18 + ks) * 4)
    def W4(i, ks):
        k = i * 4 + ks
        return ('a', 144 + 4 * k) if k < 28 else ('v', 224 + 4 * (k - 28))
    vFl, vB0, vTok, vSt, vSt8, vL16, VS, TMP = 1, 2, 4, 5, 15, 16, 6, 20
    vTgt = 17
    CS, ST = 48, 56
    BF = [[60, 64], [68, 72]]
    ACC3 = lambda i, tt: 76 + 4 * (i * 2 + tt)
    OB = lambda tt, ks: 96 + 4 * (tt * 4 + ks)
    ACC4 = lambda i, tt: 128 + 4 * (i * 2 + tt)
    A("v_and_b32 v%d, 63, v0" % TMP); A("v_lshlrev_b32 v%d, 4, v%d" % (vL16, TMP))
    load_srd(A, pW, "w3")
    A("s_lshl_b32 %s, %s, 8" % (s(pT), s(sN))); A("s_lshl_b32 %s, %s, 6" % (s(pT + 1), s(pWV)))
    load_w576(A, pW, pT, 9216, 256, 2, W3, s(pT + 1), TMP)
    for i in range(4): A("v_mov_b32 v%d, 0x3f803f80" % (TMP + 8 + i))
    A("s_nop 1")
    for i in range(2):
        for ks in range(18):
            A("v_mfma_f32_16x16x32_bf16 %s, %s, %s, %s" % (v(CS + 4 * i, 4), R(W3(i, ks), 4), v(TMP + 8, 4), "0" if ks == 0 else v(CS + 4 * i, 4)))
    load_srd(A, pW, "w4")
    A("s_mul_i32 %s, %s, %d" % (s(pT), s(sN), 128 * 1152))
    dma_linear(A, pW, pT, 147456, 0, vL16)
    A("s_waitcnt vmcnt(0)"); A("s_barrier")
    A("s_mul_i32 %s, %s, 288" % (s(pT + 1), s(pWV)))
    load_k128_weights(A, TMP, W4, 1152, 0, s(pT + 1))
    A("s_barrier")
    stage_consts(A, VS, vB0, TMP)
    A("v_and_b32 v%d, 63, v0" % TMP)
    A("v_min_u32 v%d, 40, v%d" % (TMP + 1, TMP)); A("v_subrev_u32 v%d, 9, v%d" % (TMP + 2, TMP + 1)); A("v_lshlrev_b32 v%d, 2, v%d" % (TMP + 2, TMP + 2)); A("v_add_u32 v%d, 0x%x, v%d" % (TMP + 2, F_R8, TMP + 2))
    A("s_mul_i32 %s, %s, 36" % (s(pT), s(sSET))); A("s_add_u32 %s, %s, 0x%x" % (s(pT), s(pT), F_R5))
    A("v_lshl_add_u32 v%d, v%d, 2, %s" % (vFl, TMP + 1, s(pT))); A("v_cmp_gt_u32 %s, 9, v%d" % (s(60, 2), TMP + 1)); A("s_nop 1")
    A("v_cndmask_b32 v%d, v%d, v%d, %s" % (vFl, TMP + 2, vFl, s(60, 2)))
    A("v_and_b32 v%d, 15, v%d" % (TMP + 1, TMP)); A("v_lshrrev_b32 v%d, 4, v%d" % (TMP + 2, TMP))
    vTok9, vBP, vBP9, sLO8 = 200, 201, 202, 62
    pstore_consts(A, vTok, vTok9, vBP, vBP9, 36 * PROW, 204)
    A("s_mov_b32 %s, 0x00ff00ff" % s(sLO8)); A("s_mov_b32 %s, 0x00ff00ff" % s(sLO8 + 1))
    A("v_lshlrev_b32 v%d, 8, v%d" % (vSt, TMP + 2)); A("v_lshl_add_u32 v%d, v%d, 3, v%d" % (vSt, TMP + 1, vSt))
    A("v_lshlrev_b32 v%d, 3, v%d" % (vSt8, TMP + 1)); A("v_add_u32 v%d, 2048, v%d" % (vSt8, vSt8)); A("v_mov_b32 v%d, 0x40000000" % (TMP + 3))
    A("v_cmp_eq_u32 vcc, 0, v%d" % (TMP + 2)); A("s_nop 1"); A("v_cndmask_b32 v%d, v%d, v%d, vcc" % (vSt8, TMP + 3, vSt8))
    sOUT = 46
    A("s_mul_i32 %s, %s, 384" % (s(pT), s(pWV)))
    A("s_mul_i32 %s, %s, %d" % (s(sOUT), s(sN), PROW)); A("s_add_u32 %s, %s, %s" % (s(sOUT), s(sOUT), s(pT))); A("s_add_u32 %s, %s, 0x%x" % (s(sOUT), s(sOUT), P67))
    A("s_lshl_b32 %s, %s, 2" % (s(pFOFF), s(pID))); A("s_add_u32 %s, %s, 0x%x" % (s(pFOFF), s(pFOFF), F_R67))
    L_O, L_V = 0, 8192
    SR = 212
    vBc, vPA = 203, 204
    vBc, vPA, vPR = 204, 206, 207
    sBUF, sPRE, sNX = 47, 52, 53
    if hook: hook(A)
    A("s_mov_b32 %s, %s" % (s(pS), s(sSET))); A("s_mov_b32 %s, 16384" % s(sBUF)); A("s_mov_b32 %s, 0" % s(sPRE))
    def poll_regs(seg):
        A("s_add_u32 %s, %s, 1" % (s(pT + 4), s(seg)))
        A("s_max_u32 %s, %s, %d" % (s(pT + 5), s(seg), RING67 - 1)); A("s_sub_u32 %s, %s, %d" % (s(pT + 5), s(pT + 5), RING67 - 1))
        A("v_mov_b32 v%d, %s" % (vTgt, s(pT + 5))); A("v_mov_b32 v%d, %s" % (vPR, s(pT + 4)))
        A("v_cndmask_b32 v%d, v%d, v%d, %s" % (vTgt, vTgt, vPR, s(60, 2)))
        A("s_and_b32 %s, %s, %d" % (s(pT + 5), s(seg), RING67 - 1)); A("s_lshl_b32 %s, %s, 7" % (s(pT + 5), s(pT + 5)))
        A("v_mov_b32 v%d, %s" % (vPR, s(pT + 5))); A("v_cndmask_b32 v%d, v%d, 0, %s" % (vPR, vPR, s(60, 2)))
        A("v_add_u32 v%d, v%d, v%d" % (vPA, vFl, vPR))
    def fetch(seg, bufreg):
        A("s_mul_i32 %s, %s, %d" % (s(pT), s(seg), 32 * ROW)); A("s_add_u32 %s, %s, 0x%x" % (s(pT), s(pT), X1B))
        A("s_lshl_b32 %s, %s, 10" % (s(pT + 9), s(pWV))); A("s_add_u32 %s, %s, %s" % (s(pT + 9), s(pT + 9), s(bufreg)))
        for i in range(9):
            A("s_add_u32 m0, %s, %d" % (s(pT + 9), i * 4096)); A("s_nop 0")
            A("buffer_load_dwordx4 v%d, %s, %s offen sc1 lds" % (VS + i, s(pWS, 4), s(pT)))
        A("s_mul_i32 %s, %s, %d" % (s(pT), s(seg), 9 * 256)); A("s_add_u32 %s, %s, 0x%x" % (s(pT), s(pT), STB))
        for tt in range(2):
            A("buffer_load_dwordx2 %s, v%d, %s, %s offen offset:%d sc1" % (v(SR + 6 * tt, 2), vSt, s(pWS, 4), s(pT), 128 * tt))
            A("buffer_load_dwordx2 %s, v%d, %s, %s offen offset:%d sc1" % (v(SR + 6 * tt + 2, 2), vSt, s(pWS, 4), s(pT), 1024 + 128 * tt))
            A("buffer_load_dwordx2 %s, v%d, %s, %s offen offset:%d sc1" % (v(SR + 6 * tt + 4, 2), vSt8, s(pWS, 4), s(pT), 128 * tt))
    NST = 10
    top = A.newlab("r67_top"); pre = A.newlab("r67_pre"); go = A.newlab("r67_go")
    m0 = A.mark(); A.label(top)
    trace(A, 4)
    A("s_cmp_eq_u32 %s, 1" % s(sPRE)); A("s_cbranch_scc1 %s" % pre)
    poll_regs(pS)
    wait_flags(A, vPA, "0", "v%d" % vTgt, fail, TMP, pend_sc="sc1")
    trace(A, 0)
    fetch(pS, sBUF)
    A("s_waitcnt vmcnt(0)")
    A("s_branch %s" % go)
    A.label(pre)
    A("s_waitcnt vmcnt(%d)" % NST)
    A.label(go)
    A("s_barrier")
    trace(A, 1)
    A("s_add_u32 %s, %s, %d" % (s(sNX), s(pS), nsets))
    A("v_add_u32 v%d, %s, v%d" % (vBc, s(sBUF), vB0)); A("v_add_u32 v%d, %s, v%d" % (vBc + 1, s(sBUF), vB0 + 1))
    SA = Asm(); _A = A; A = SA
    for tt in range(2):
        b = SR + 6 * tt
        for k in range(2):
            A("v_add_f32 v%d, v%d, v%d" % (TMP + 6 * tt + k, b + k, b + 2 + k)); A("v_add_f32 v%d, v%d, v%d" % (TMP + 6 * tt + k, TMP + 6 * tt + k, b + 4 + k))
    st4 = [TMP, TMP + 1, TMP + 6, TMP + 7]
    for sw in ("v_permlane16_swap_b32", "v_permlane32_swap_b32"):
        for k in range(4): A("v_mov_b32 v%d, v%d" % (TMP + 12 + k, st4[k]))
        A("s_nop 0")
        for k in range(4): A("%s v%d, v%d" % (sw, st4[k], TMP + 12 + k))
        for k in range(4): A("v_add_f32 v%d, v%d, v%d" % (st4[k], st4[k], TMP + 12 + k))
    for tt in range(2):
        vsum, vsq = TMP + 6 * tt, TMP + 6 * tt + 1
        A("v_mul_f32 v%d, 0x%x, v%d" % (vsum, f2u(1.0 / 576), vsum)); A("v_mul_f32 v%d, 0x%x, v%d" % (vsq, f2u(1.0 / 576), vsq))
        A("v_fma_f32 v%d, -v%d, v%d, v%d" % (vsq, vsum, vsum, vsq)); A("v_max_f32 v%d, 0, v%d" % (vsq, vsq))
        rb16(A, vsum); rb16(A, vsq)
        A("v_add_f32 v%d, 0x%x, v%d" % (vsq, f2u(1e-5), vsq)); rb16(A, vsq)
        A("v_sqrt_f32 v%d, v%d" % (vsq, vsq)); A("s_nop 0"); rb16(A, vsq)
        A("v_rcp_f32 v%d, v%d" % (ST + 2 * tt, vsq)); A("v_mov_b32 v%d, v%d" % (ST + 2 * tt + 1, vsum))
    A = _A
    small_gemm(A, W3, ACC3, BF, vBc, 0, 2, fillers=list(SA.lines))
    trace(A, 5)
    A("s_nop 7")
    for tt in range(2):
        regs = []
        for i in range(2):
            for r in range(4):
                x = ACC3(i, tt) + r; regs.append(x)
                A("v_fma_f32 v%d, -v%d, v%d, v%d" % (x, ST + 2 * tt + 1, CS + 4 * i + r, x))
        for x in regs: A("v_mul_f32 v%d, v%d, v%d" % (x, x, ST + 2 * tt))
        for x in regs: rb16(A, x)
        gelu(A, regs, TMP)
        d = 92
        for q in range(4): A("v_cvt_pk_bf16_f32 v%d, v%d, v%d" % (d + q, regs[2 * q], regs[2 * q + 1]))
        A("s_lshl_b32 %s, %s, 10" % (s(pT), s(pWV))); A("v_add_u32 v%d, %s, v%d" % (TMP + 10, s(pT), vL16))
        A("ds_write_b128 v%d, %s offset:%d" % (TMP + 10, v(d, 4), L_O + tt * 4096))
        A("s_nop 1")
    A("s_waitcnt vmcnt(0) lgkmcnt(0)"); A("s_barrier")
    for ks in range(4):
        for tt in range(2): A("ds_read_b128 %s, v%d offset:%d" % (v(OB(tt, ks), 4), vL16, L_O + tt * 4096 + ks * 1024))
    poll_regs(sNX)
    pb = A.newlab("r67_pb"); pb2 = A.newlab("r67_pb2")
    A("s_cmp_eq_u32 %s, 0" % s(pWV)); A("s_cbranch_scc0 %s" % pb)
    A("s_cmp_eq_u32 %s, 0" % s(pPEND)); A("s_cbranch_scc1 %s" % pb2)
    A("v_mov_b32 v%d, %s" % (TMP, s(pPEND))); A("buffer_store_dword v%d, off, %s, %s sc1" % (TMP, s(pWS, 4), s(pFOFF)))
    A.label(pb2)
    A("buffer_load_dword v%d, v%d, %s, 0 offen sc1" % (vPR, vPA, s(pWS, 4)))
    A.label(pb)
    A("s_mov_b32 %s, 0" % s(pPEND))
    k128_gemm(A, W4, OB, ACC4, lambda ks: A("s_waitcnt lgkmcnt(%d)" % (6 - 2 * ks)))
    vw = A.newlab("r67_vw")
    A("s_cmp_eq_u32 %s, 0" % s(pWV)); A("s_cbranch_scc0 %s" % vw)
    A("s_waitcnt vmcnt(0)")
    A("v_cmp_gt_u32 vcc, v%d, v%d" % (vTgt, vPR))
    A("s_cmp_lt_u32 %s, %d" % (s(sNX), nseg)); A("s_cselect_b32 %s, 1, 0" % s(pT + 6))
    A("s_cmp_eq_u64 vcc, 0"); A("s_cselect_b32 %s, %s, 0" % (s(pT + 6), s(pT + 6)))
    A("v_mov_b32 v%d, %s" % (vPR, s(pT + 6))); A("v_mov_b32 v%d, %d" % (vPA, L_V))
    A("ds_write_b32 v%d, v%d" % (vPA, vPR))
    A("s_waitcnt lgkmcnt(0)")
    A.label(vw)
    A("s_barrier")
    A("v_mov_b32 v%d, %d" % (vPA, L_V)); A("ds_read_b32 v%d, v%d" % (vPR, vPA))
    A("s_sub_u32 %s, %d, %s" % (s(sBUF), 16384 + 53248, s(sBUF)))
    A("s_waitcnt lgkmcnt(0)"); A("v_readfirstlane_b32 %s, v%d" % (s(sPRE), vPR))
    nf = A.newlab("r67_nf")
    A("s_nop 0")
    A("s_cmp_eq_u32 %s, 1" % s(sPRE)); A("s_cbranch_scc0 %s" % nf)
    A.c("lint-skip-begin")
    fetch(sNX, sBUF)
    A.c("lint-skip-end")
    A.label(nf)
    trace(A, 2)
    A("s_nop 7")
    A("s_and_b32 %s, %s, %d" % (s(pT), s(pS), RING67 - 1)); A("s_mul_i32 %s, %s, %d" % (s(pT), s(pT), 32 * 36 * PROW)); A("s_add_u32 %s, %s, %s" % (s(pT), s(pT), s(sOUT)))
    pstore(A, ACC4, vTok, vTok9, vBP, vBP9, pT, TMP, 36 * PROW, sLO8)
    trace(A, 6)
    A("s_add_u32 %s, %s, 1" % (s(pPEND), s(pS)))
    A("s_mov_b32 %s, %s" % (s(pS), s(sNX)))
    A("s_cmp_lt_u32 %s, %d" % (s(pS), nseg)); A("s_cbranch_scc1 %s" % top)
    m1 = A.mark()
    set_flag(A, s(pFOFF), s(pPEND), TMP)
    return (m0, m1)

def emit_r8(A, fail, nseg=64, nsets=2):
    A.c("=== R8")
    TRV[0] = 250
    vM, vX, vX2, vSm, vSx, vNm, vNx, vFl = 1, 2, 3, 4, 5, 6, 7, 8
    SEL, DM, DX, TMP = 12, 16, 20, 32
    HQ = [24, 152]; XQ = [28, 156]; LD = [48, 96]
    OUT = 48
    load_srd(A, OUT, "out")
    emit_sel(A, SEL, TMP)
    reduce_rows_consts(A, vM, vX, vX2, 36, TMP)
    rowpos_consts(A, vSm, vSx, vNm, vNx, TMP)
    A("v_and_b32 v%d, 63, v0" % TMP); A("v_min_u32 v%d, 35, v%d" % (vFl, TMP)); A("v_lshlrev_b32 v%d, 2, v%d" % (vFl, vFl))
    sIN, sROW, sFL = 44, 45, 46
    A("s_lshl_b32 %s, %s, 2" % (s(pFOFF), s(pID))); A("s_add_u32 %s, %s, 0x%x" % (s(pFOFF), s(pFOFF), F_R8))
    A("s_mov_b32 %s, 0" % s(pS))
    top = A.newlab("r8_top"); m0 = A.mark(); A.label(top)
    A("s_lshl_b32 %s, %s, 5" % (s(sROW), s(pS))); A("s_lshl_b32 %s, %s, 1" % (s(pT), s(pID))); A("s_add_u32 %s, %s, %s" % (s(sROW), s(sROW), s(pT))); A("s_mul_i32 %s, %s, %d" % (s(sROW), s(sROW), ROW))
    if nsets == 2:
        A("s_and_b32 %s, %s, 1" % (s(sFL), s(pS))); A("s_mul_i32 %s, %s, 144" % (s(sFL), s(sFL))); A("s_add_u32 %s, %s, 0x%x" % (s(sFL), s(sFL), F_R67))
    else: A("s_mov_b32 %s, 0x%x" % (s(sFL), F_R67))
    A("s_add_u32 %s, %s, 1" % (s(pT + 4), s(pS)))
    wait_flags(A, vFl, s(sFL), s(pT + 4), fail, TMP, pend_sc="sc1")
    trace(A, 0)
    A("s_and_b32 %s, %s, %d" % (s(sIN), s(pS), RING - 1)); A("s_mul_i32 %s, %s, %d" % (s(sIN), s(sIN), 32 * 36 * ROW)); A("s_mul_i32 %s, %s, %d" % (s(pT), s(pID), 2 * 36 * ROW))
    A("s_add_u32 %s, %s, %s" % (s(sIN), s(sIN), s(pT))); A("s_mul_i32 %s, %s, 288" % (s(pT), s(pWV))); A("s_add_u32 %s, %s, %s" % (s(sIN), s(sIN), s(pT)))
    A("s_add_u32 %s, %s, 0x%x" % (s(sIN), s(sIN), P67))
    for k in range(2):
        A("s_add_u32 %s, %s, 0x%x" % (s(pT), s(sROW), HB + k * ROW)); A("s_add_u32 %s, %s, 0x%x" % (s(pT + 1), s(sROW), X1B + k * ROW))
        A("buffer_load_dwordx2 %s, v%d, %s, %s offen sc1" % (v(HQ[k], 2), vSm, s(pWS, 4), s(pT))); A("buffer_load_dwordx2 %s, v%d, %s, %s offen sc1" % (v(HQ[k] + 2, 2), vSx, s(pWS, 4), s(pT)))
        A("buffer_load_dwordx2 %s, v%d, %s, %s offen sc1" % (v(XQ[k], 2), vSm, s(pWS, 4), s(pT + 1))); A("buffer_load_dwordx2 %s, v%d, %s, %s offen sc1" % (v(XQ[k] + 2, 2), vSx, s(pWS, 4), s(pT + 1)))
        if k == 1: A("s_add_u32 %s, %s, %d" % (s(sIN), s(sIN), 36 * ROW))
        reduce_issue(A, sIN, 36, vM, vX, vX2, LD[k])
    for k in range(2):
        reduce_consume(A, 36, LD[k], SEL, DM, DX, younger=(15 if k == 0 else 2))
        vals = [DM + r for r in range(4)] + [DX + r for r in range(4)]
        for r in vals: rb16(A, r)
        unpack4(A, XQ[k], TMP); unpack4(A, XQ[k] + 2, TMP + 4)
        for i, r in enumerate(vals): A("v_add_f32 v%d, v%d, v%d" % (r, r, TMP + i))
        for r in vals: rb16(A, r)
        unpack4(A, HQ[k], TMP); unpack4(A, HQ[k] + 2, TMP + 4)
        for i, r in enumerate(vals): A("v_add_f32 v%d, v%d, v%d" % (r, r, TMP + i))
        A("v_cvt_pk_bf16_f32 v%d, v%d, v%d" % (TMP + 8, DM, DM + 1)); A("v_cvt_pk_bf16_f32 v%d, v%d, v%d" % (TMP + 9, DM + 2, DM + 3))
        A("v_cvt_pk_bf16_f32 v%d, v%d, v%d" % (TMP + 10, DX, DX + 1)); A("v_cvt_pk_bf16_f32 v%d, v%d, v%d" % (TMP + 11, DX + 2, DX + 3))
        A("s_add_u32 %s, %s, %d" % (s(pT), s(sROW), k * ROW))
        A("buffer_store_dwordx2 %s, v%d, %s, %s offen" % (v(TMP + 8, 2), vNm, s(OUT, 4), s(pT)))
        A("buffer_store_dwordx2 %s, v%d, %s, %s offen" % (v(TMP + 10, 2), vNx, s(OUT, 4), s(pT)))
    trace(A, 1)
    A("s_add_u32 %s, %s, 1" % (s(pS), s(pS))); A("s_mov_b32 %s, %s" % (s(pPEND), s(pS)))
    A("s_cmp_lt_u32 %s, %d" % (s(pS), nseg)); A("s_cbranch_scc1 %s" % top)
    m1 = A.mark()
    A("s_waitcnt vmcnt(0)")
    trace(A, 3, 0)
    return (m0, m1)

def rw_consts(A, nprod, vM, vX, SEL, SEL2, vS, vN, tmp):
    emit_sel(A, SEL, tmp)
    A("s_nop 1")
    for q in range(4): A("v_mov_b32_dpp v%d, v%d row_shr:8 row_mask:0xf bank_mask:0xf bound_ctrl:1" % (SEL2 + q, SEL + q))
    A("v_and_b32 v%d, 63, v0" % tmp); A("v_lshrrev_b32 v%d, 4, v%d" % (tmp + 1, tmp)); A("v_and_b32 v%d, 15, v%d" % (tmp + 2, tmp))
    A("v_mul_u32_u24 v%d, %d, v%d" % (vM, PROW, tmp + 1)); A("v_lshl_add_u32 v%d, v%d, 4, v%d" % (vM, tmp + 2, vM))
    A("v_lshrrev_b32 v%d, 3, v%d" % (tmp + 3, tmp + 2)); A("v_lshl_add_u32 v%d, v%d, 2, v%d" % (vX, tmp + 3, tmp + 1)); A("v_mul_u32_u24 v%d, %d, v%d" % (vX, PROW, vX))
    A("v_bfe_u32 v%d, v%d, 1, 2" % (tmp + 4, tmp + 2)); A("v_mul_u32_u24 v%d, 384, v%d" % (tmp + 4, tmp + 4)); A("v_add_u32 v%d, v%d, v%d" % (vX, vX, tmp + 4))
    A("v_and_b32 v%d, 1, v%d" % (tmp + 4, tmp + 2)); A("v_lshl_add_u32 v%d, v%d, 4, v%d" % (vX, tmp + 4, vX)); A("v_add_u32 v%d, 256, v%d" % (vX, vX))
    for k in range(3):
        T_, gq = tmp + 3, tmp + 5
        A("v_and_b32 v%d, 1, v%d" % (tmp + 4, tmp + 1))
        if k < 2:
            A("v_lshrrev_b32 v%d, 1, v%d" % (T_, tmp + 1)); A("v_add_u32 v%d, %d, v%d" % (T_, 2 * k, T_)); A("v_mul_u32_u24 v%d, 9, v%d" % (T_, T_))
            A("v_lshrrev_b32 v%d, 2, v%d" % (gq, tmp + 2)); A("v_lshl_add_u32 v%d, v%d, 1, v%d" % (T_, gq, T_)); A("v_add_u32 v%d, v%d, v%d" % (T_, T_, tmp + 4))
            A("v_and_b32 v%d, 3, v%d" % (gq, tmp + 2))
        else:
            A("v_bfe_u32 v%d, v%d, 1, 2" % (T_, tmp + 2)); A("v_mul_u32_u24 v%d, 9, v%d" % (T_, T_)); A("v_add_u32 v%d, 8, v%d" % (T_, T_))
            A("v_and_b32 v%d, 1, v%d" % (gq, tmp + 2)); A("v_lshl_add_u32 v%d, v%d, 1, v%d" % (gq, gq, tmp + 4))
        A("v_lshrrev_b32 v%d, 1, v%d" % (vS[k], T_)); A("v_lshlrev_b32 v%d, 6, v%d" % (vS[k], vS[k])); A("v_lshl_add_u32 v%d, v%d, 4, v%d" % (vS[k], gq, vS[k]))
        A("v_and_b32 v%d, 1, v%d" % (tmp + 6, T_)); A("v_lshl_add_u32 v%d, v%d, 3, v%d" % (vS[k], tmp + 6, vS[k]))
        A("v_lshlrev_b32 v%d, 5, v%d" % (vN[k], T_)); A("v_lshl_add_u32 v%d, v%d, 3, v%d" % (vN[k], gq, vN[k]))
        if k == 2:
            A("v_cmp_gt_u32 vcc, 8, v%d" % (tmp + 2)); A("v_cmp_gt_u32 %s, 2, v%d" % (s(pT + 10, 2), tmp + 1)); A("s_nop 1")
            A("s_and_b64 vcc, vcc, %s" % s(pT + 10, 2)); A("v_mov_b32 v%d, 0x40000000" % (tmp + 6)); A("s_nop 0")
            A("v_cndmask_b32 v%d, v%d, v%d, vcc" % (vS[k], tmp + 6, vS[k])); A("v_cndmask_b32 v%d, v%d, v%d, vcc" % (vN[k], tmp + 6, vN[k]))

def rw_loads(nprod):
    nm = nprod // 4; nx = (nprod + 7) // 8
    return [("m", grp, n) for grp in range(4) for n in range(nm)] + [("x", 0, n) for n in range(nx)]
def rw_stream(A, sbases, nprod, vM, vX, vX9, SEL, SEL2, D, after_token, NS=56, pre=0):
    one = rw_loads(nprod)
    loads = [(k,) + l for k in range(len(sbases)) for l in one]
    n_all = len(loads)
    q = [None] * pre
    def issue(i):
        k, kind, grp, n = loads[i]
        if kind == "m":
            A("s_add_u32 %s, %s, %d" % (s(pT + 8), s(sbases[k]), n * 4 * PROW + grp * 384)); va = vM
        else:
            A("s_add_u32 %s, %s, %d" % (s(pT + 8), s(sbases[k]), n * 8 * PROW)); va = vX if (n + 1) * 8 <= nprod else vX9
        A("buffer_load_dwordx4 %s, v%d, %s, %s offen sc1" % (a(4 * (i % NS), 4), va, s(pWS, 4), s(pT + 8)))
        q.append(i)
    nxt = 0
    while nxt < min(NS, n_all) and len(q) < 60: issue(nxt); nxt += 1
    for i in range(n_all):
        pos = q.index(i)
        A("s_waitcnt vmcnt(%d)" % min(63, len(q) - 1 - pos)); del q[:pos + 1]
        k, kind, grp, n = loads[i]
        if kind == "m":
            d = D[grp >> 1]; sel = SEL if grp % 2 == 0 else SEL2; first = (grp % 2 == 0 and n == 0)
        else:
            d = D[2]; sel = SEL; first = (n == 0)
        A("v_mfma_f32_16x16x32_bf16 %s, %s, %s, %s" % (v(d, 4), v(sel, 4), a(4 * (i % NS), 4), "0" if first else v(d, 4)))
        while nxt < n_all and len(q) < 60 and nxt < i + 1 + NS - 1: issue(nxt); nxt += 1
        if i + 1 == n_all or loads[i + 1][0] != k:
            A("s_nop 7")
            for r in range(4): A("v_add_f32_dpp v%d, v%d, v%d row_shl:8 row_mask:0xf bank_mask:0xf bound_ctrl:1" % (D[2] + r, D[2] + r, D[2] + r))
            nst = after_token(k)
            q.extend([None] * nst)

def ln_wave(A, vals, t, vmask):
    vsum, vsq = t, t + 1
    A("v_add_f32 v%d, v%d, v%d" % (vsum, vals[0], vals[1])); A("v_mul_f32 v%d, v%d, v%d" % (vsq, vals[0], vals[0]))
    A("v_fma_f32 v%d, v%d, v%d, v%d" % (vsq, vals[1], vals[1], vsq))
    for r in vals[2:]:
        A("v_add_f32 v%d, v%d, v%d" % (vsum, vsum, r)); A("v_fma_f32 v%d, v%d, v%d, v%d" % (vsq, r, r, vsq))
    A("s_nop 0")
    wave_sum2(A, vsum, vsq, t + 2)
    A("v_mul_f32 v%d, 0x%x, v%d" % (vsum, f2u(1.0 / 576), vsum)); A("v_mul_f32 v%d, 0x%x, v%d" % (vsq, f2u(1.0 / 576), vsq))
    A("v_fma_f32 v%d, -v%d, v%d, v%d" % (vsq, vsum, vsum, vsq)); A("v_max_f32 v%d, 0, v%d" % (vsq, vsq))
    rb16(A, vsum); rb16(A, vsq)
    A("v_add_f32 v%d, 0x%x, v%d" % (vsq, f2u(1e-5), vsq)); rb16(A, vsq)
    A("v_sqrt_f32 v%d, v%d" % (vsq, vsq)); A("s_nop 0"); rb16(A, vsq)
    A("v_rcp_f32 v%d, v%d" % (vsq, vsq))
    for r in vals: A("v_sub_f32 v%d, v%d, v%d" % (r, r, vsum))
    for r in vals: rb16(A, r)
    for r in vals: A("v_mul_f32 v%d, v%d, v%d" % (r, r, vsq))
    for r in vals: rb16(A, r)
    A("v_cmp_gt_u32 vcc, 0x40000000, v%d" % vmask); A("s_nop 1")
    for r in vals[8:]: A("v_cndmask_b32 v%d, 0, v%d, vcc" % (r, r))

def wave_flag(A, soff, valreg, tmpv):
    A("s_waitcnt vmcnt(0)")
    A("v_mov_b32 v%d, %s" % (tmpv, valreg))
    A("buffer_store_dword v%d, off, %s, %s sc1" % (tmpv, s(pWS, 4), soff))

def emit_r3w(A, fail, nseg=64, hook=None):
    A.c("=== R3 (wave independent)")
    TRV[0] = 250
    vM, vX, vFl = 1, 2, 3
    vS, vN = [4, 5, 6], [7, 8, 9]
    SEL, SEL2, TMP = 12, 16, 20
    D = [36, 40, 44]; XQ = 48; LD = 56
    load_srd(A, pW, "x")
    rw_consts(A, 32, vM, vX, SEL, SEL2, vS, vN, TMP)
    A("v_and_b32 v%d, 63, v0" % TMP); A("v_min_u32 v%d, 31, v%d" % (vFl, TMP)); A("v_lshlrev_b32 v%d, 2, v%d" % (vFl, vFl))
    sIN, sROW, sFL = 44, 45, 46
    A("s_and_b32 %s, %s, 1" % (s(sFL), s(pWV))); A("s_lshl_b32 %s, %s, 7" % (s(sFL), s(sFL))); A("s_add_u32 %s, %s, 0x%x" % (s(sFL), s(sFL), F_R12))
    A("s_lshl_b32 %s, %s, 2" % (s(pFOFF), s(pID))); A("s_add_u32 %s, %s, %s" % (s(pFOFF), s(pFOFF), s(pWV))); A("s_lshl_b32 %s, %s, 2" % (s(pFOFF), s(pFOFF))); A("s_add_u32 %s, %s, 0x%x" % (s(pFOFF), s(pFOFF), F_R3))
    if hook: hook(A)
    A("s_mov_b32 %s, %s" % (s(pS), s(pWV))); A("s_mov_b32 %s, 0x07060302" % s(pT + 14))
    vals = [D[k] + r for k in range(3) for r in range(4)]
    top = A.newlab("r3_top"); m0 = A.mark(); A.label(top)
    A("s_lshl_b32 %s, %s, 5" % (s(sROW), s(pS))); A("s_add_u32 %s, %s, %s" % (s(sROW), s(sROW), s(pID))); A("s_mul_i32 %s, %s, %d" % (s(sROW), s(sROW), ROW))
    for k in range(3): A("buffer_load_dwordx2 %s, v%d, %s, %s offen" % (v(XQ + 2 * k, 2), vN[k], s(pW, 4), s(sROW)))
    A("s_add_u32 %s, %s, 1" % (s(pT + 4), s(pS)))
    wait_flags(A, vFl, s(sFL), s(pT + 4), fail, TMP)
    trace(A, 0, 60)
    A("s_and_b32 %s, %s, %d" % (s(sIN), s(pS), RING - 1)); A("s_mul_i32 %s, %s, %d" % (s(sIN), s(sIN), 32 * 32 * PROW)); A("s_mul_i32 %s, %s, %d" % (s(pT), s(pID), 32 * PROW))
    A("s_add_u32 %s, %s, %s" % (s(sIN), s(sIN), s(pT))); A("s_add_u32 %s, %s, 0x%x" % (s(sIN), s(sIN), P12))
    rw_stream(A, [sIN], 32, vM, vX, None, SEL, SEL2, D, lambda k: 0)
    trace(A, 1, 60)
    A("v_cmp_gt_u32 vcc, 0x40000000, v%d" % vS[2]); A("s_nop 1")
    for r in vals[8:]: A("v_cndmask_b32 v%d, 0, v%d, vcc" % (r, r))
    for r in vals: rb16(A, r)
    for k in range(3): unpack4(A, XQ + 2 * k, TMP + 4 * k)
    for i, r in enumerate(vals): A("v_add_f32 v%d, v%d, v%d" % (r, r, TMP + i))
    for r in vals: rb16(A, r)
    def store_row(base):
        A("s_add_u32 %s, %s, 0x%x" % (s(pT + 8), s(sROW), base))
        for k in range(3):
            A("v_perm_b32 v%d, v%d, v%d, %s" % (TMP + 2 * k, D[k] + 1, D[k], s(pT + 14))); A("v_perm_b32 v%d, v%d, v%d, %s" % (TMP + 2 * k + 1, D[k] + 3, D[k] + 2, s(pT + 14)))
            A("buffer_store_dwordx2 %s, v%d, %s, %s offen sc1" % (v(TMP + 2 * k, 2), vS[k], s(pWS, 4), s(pT + 8)))
    store_row(HB)
    ln_wave(A, vals, TMP + 8, vS[2]); store_row(HNB)
    ln_wave(A, vals, TMP + 8, vS[2]); store_row(TB)
    trace(A, 2, 60)
    A("s_add_u32 %s, %s, 1" % (s(pT + 4), s(pS)))
    wave_flag(A, s(pFOFF), s(pT + 4), TMP)
    A("s_add_u32 %s, %s, 4" % (s(pS), s(pS)))
    A("s_cmp_lt_u32 %s, %d" % (s(pS), nseg)); A("s_cbranch_scc1 %s" % top)
    m1 = A.mark()
    trace(A, 3, 0)
    return (m0, m1)

def emit_r8w(A, fail, nseg=64):
    A.c("=== R8 (wave independent)")
    TRV[0] = 250
    vM, vX, vX9, vFl = 1, 2, 10, 3
    vS, vN = [4, 5, 6], [7, 8, 9]
    SEL, SEL2, TMP = 12, 16, 20
    D = [36, 40, 44]; HQ, XQ, LD = 48, 152, 56
    OUT = 48
    load_srd(A, OUT, "out")
    rw_consts(A, 36, vM, vX, SEL, SEL2, vS, vN, TMP)
    A("v_and_b32 v%d, 8, v0" % TMP); A("v_mov_b32 v%d, 0x40000000" % (TMP + 1)); A("v_cmp_eq_u32 vcc, 0, v%d" % TMP); A("s_nop 1")
    A("v_cndmask_b32 v%d, v%d, v%d, vcc" % (vX9, TMP + 1, vX))
    A("v_and_b32 v%d, 63, v0" % TMP); A("v_min_u32 v%d, 35, v%d" % (vFl, TMP)); A("v_lshlrev_b32 v%d, 2, v%d" % (vFl, vFl))
    sIN, sROW, sFL = 44, 45, 46
    A("s_and_b32 %s, %s, 1" % (s(sFL), s(pWV))); A("s_mul_i32 %s, %s, 144" % (s(sFL), s(sFL))); A("s_add_u32 %s, %s, 0x%x" % (s(sFL), s(sFL), F_R67))
    A("s_lshl_b32 %s, %s, 2" % (s(pFOFF), s(pID))); A("s_add_u32 %s, %s, %s" % (s(pFOFF), s(pFOFF), s(pWV))); A("s_lshl_b32 %s, %s, 2" % (s(pFOFF), s(pFOFF))); A("s_add_u32 %s, %s, 0x%x" % (s(pFOFF), s(pFOFF), F_R8))
    A("s_mov_b32 %s, %s" % (s(pS), s(pWV)))
    vals = [D[k] + r for k in range(3) for r in range(4)]
    top = A.newlab("r8_top"); m0 = A.mark(); A.label(top)
    A("s_add_u32 %s, %s, 1" % (s(pT + 4), s(pS)))
    wait_flags(A, vFl, s(sFL), s(pT + 4), fail, TMP)
    trace(A, 0, 60)
    sROW2, sIN2 = 47, 52
    HQ2, XQ2 = [HQ, 160], [XQ, 166]
    for k2 in range(2):
        sr, si = (sROW, sROW2)[k2], (sIN, sIN2)[k2]
        A("s_lshl_b32 %s, %s, 5" % (s(sr), s(pS))); A("s_lshl_b32 %s, %s, 1" % (s(pT), s(pID))); A("s_add_u32 %s, %s, %s" % (s(sr), s(sr), s(pT)))
        A("s_add_u32 %s, %s, %d" % (s(sr), s(sr), k2)); A("s_mul_i32 %s, %s, %d" % (s(sr), s(sr), ROW))
        A("s_add_u32 %s, %s, 0x%x" % (s(pT), s(sr), HB)); A("s_add_u32 %s, %s, 0x%x" % (s(pT + 1), s(sr), X1B))
        for k in range(3):
            A("buffer_load_dwordx2 %s, v%d, %s, %s offen sc1" % (v(HQ2[k2] + 2 * k, 2), vS[k], s(pWS, 4), s(pT)))
            A("buffer_load_dwordx2 %s, v%d, %s, %s offen sc1" % (v(XQ2[k2] + 2 * k, 2), vS[k], s(pWS, 4), s(pT + 1)))
        A("s_and_b32 %s, %s, %d" % (s(si), s(pS), RING - 1)); A("s_mul_i32 %s, %s, %d" % (s(si), s(si), 32 * 36 * PROW))
        A("s_lshl_b32 %s, %s, 1" % (s(pT), s(pID))); A("s_add_u32 %s, %s, %d" % (s(pT), s(pT), k2)); A("s_mul_i32 %s, %s, %d" % (s(pT), s(pT), 36 * PROW))
        A("s_add_u32 %s, %s, %s" % (s(si), s(si), s(pT))); A("s_add_u32 %s, %s, 0x%x" % (s(si), s(si), P67))
    A("s_waitcnt vmcnt(6)") if False else None
    def fin(k2):
        for r in vals: rb16(A, r)
        for k in range(3): unpack4(A, XQ2[k2] + 2 * k, TMP + 4 * k)
        for i, r in enumerate(vals): A("v_add_f32 v%d, v%d, v%d" % (r, r, TMP + i))
        for r in vals: rb16(A, r)
        for k in range(3): unpack4(A, HQ2[k2] + 2 * k, TMP + 4 * k)
        for i, r in enumerate(vals): A("v_add_f32 v%d, v%d, v%d" % (r, r, TMP + i))
        for k in range(3):
            A("v_cvt_pk_bf16_f32 v%d, v%d, v%d" % (TMP + 12 + 2 * k - 12 + 0, D[k], D[k] + 1)) if False else None
        for k in range(3):
            A("v_cvt_pk_bf16_f32 v%d, v%d, v%d" % (TMP + 2 * k, D[k], D[k] + 1)); A("v_cvt_pk_bf16_f32 v%d, v%d, v%d" % (TMP + 2 * k + 1, D[k] + 2, D[k] + 3))
            A("buffer_store_dwordx2 %s, v%d, %s, %s offen" % (v(TMP + 2 * k, 2), vN[k], s(OUT, 4), s((sROW, sROW2)[k2])))
        return 3
    rw_stream(A, [sIN, sIN2], 36, vM, vX, vX9, SEL, SEL2, D, fin, pre=12)
    trace(A, 1, 60)
    A("s_add_u32 %s, %s, 1" % (s(pT + 4), s(pS)))
    A("v_mov_b32 v%d, %s" % (TMP + 8, s(pT + 4)))
    A("buffer_store_dword v%d, off, %s, %s sc1" % (TMP + 8, s(pWS, 4), s(pFOFF)))
    A("s_add_u32 %s, %s, 4" % (s(pS), s(pS)))
    A("s_cmp_lt_u32 %s, %d" % (s(pS), nseg)); A("s_cbranch_scc1 %s" % top)
    m1 = A.mark()
    A("s_waitcnt vmcnt(0)")
    trace(A, 3, 0)
    return (m0, m1)


KLAG = 8
def emit_r38(A, fail, nseg=64):
    A.c("=== R3 + R8 (wave independent)")
    TRV[0] = 250
    vM, vX, vX9, vFl3, vFl8 = 1, 2, 10, 3, 11
    vS, vN = [4, 5, 6], [7, 8, 9]
    SEL, SEL2, TMP = 12, 16, 20
    D = [36, 40, 44]; XQ, HQ = 48, 54
    OUT = 48
    load_srd(A, pW, "x"); load_srd(A, OUT, "out")
    rw_consts(A, 36, vM, vX, SEL, SEL2, vS, vN, TMP)
    A("v_and_b32 v%d, 8, v0" % TMP); A("v_mov_b32 v%d, 0x40000000" % (TMP + 1)); A("v_cmp_eq_u32 vcc, 0, v%d" % TMP); A("s_nop 1")
    A("v_cndmask_b32 v%d, v%d, v%d, vcc" % (vX9, TMP + 1, vX))
    A("v_and_b32 v%d, 63, v0" % TMP); A("v_min_u32 v%d, 31, v%d" % (vFl3, TMP)); A("v_lshlrev_b32 v%d, 2, v%d" % (vFl3, vFl3))
    A("v_min_u32 v%d, 35, v%d" % (vFl8, TMP)); A("v_lshlrev_b32 v%d, 2, v%d" % (vFl8, vFl8))
    sIN, sROW, sFL3, sFL8, sFO8, sS8 = 44, 45, 46, 47, 52, 53
    A("s_and_b32 %s, %s, 1" % (s(pT), s(pWV)))
    A("s_lshl_b32 %s, %s, 7" % (s(sFL3), s(pT))); A("s_add_u32 %s, %s, 0x%x" % (s(sFL3), s(sFL3), F_R12))
    A("s_mul_i32 %s, %s, 144" % (s(sFL8), s(pT))); A("s_add_u32 %s, %s, 0x%x" % (s(sFL8), s(sFL8), F_R67))
    A("s_lshl_b32 %s, %s, 2" % (s(pT), s(pID))); A("s_add_u32 %s, %s, %s" % (s(pT), s(pT), s(pWV))); A("s_lshl_b32 %s, %s, 2" % (s(pT), s(pT)))
    A("s_add_u32 %s, %s, 0x%x" % (s(pFOFF), s(pT), F_R3)); A("s_add_u32 %s, %s, 0x%x" % (s(sFO8), s(pT), F_R8))
    A("s_mov_b32 %s, %s" % (s(pS), s(pWV))); A("s_mov_b32 %s, 0x07060302" % s(pT + 14))
    vals = [D[k] + r for k in range(3) for r in range(4)]
    top = A.newlab("r38_top"); no3 = A.newlab("r38_no3"); no8 = A.newlab("r38_no8")
    m0 = A.mark(); A.label(top)
    A("s_cmp_lt_u32 %s, %d" % (s(pS), nseg)); A("s_cbranch_scc0 %s" % no3)
    A("s_lshl_b32 %s, %s, 5" % (s(sROW), s(pS))); A("s_add_u32 %s, %s, %s" % (s(sROW), s(sROW), s(pID))); A("s_mul_i32 %s, %s, %d" % (s(sROW), s(sROW), ROW))
    for k in range(3): A("buffer_load_dwordx2 %s, v%d, %s, %s offen" % (v(XQ + 2 * k, 2), vN[k], s(pW, 4), s(sROW)))
    A("s_add_u32 %s, %s, 1" % (s(pT + 4), s(pS)))
    wait_flags(A, vFl3, s(sFL3), s(pT + 4), fail, TMP)
    trace(A, 0, 60)
    A("s_and_b32 %s, %s, %d" % (s(sIN), s(pS), RING - 1)); A("s_mul_i32 %s, %s, %d" % (s(sIN), s(sIN), 32 * 32 * PROW)); A("s_mul_i32 %s, %s, %d" % (s(pT), s(pID), 32 * PROW))
    A("s_add_u32 %s, %s, %s" % (s(sIN), s(sIN), s(pT))); A("s_add_u32 %s, %s, 0x%x" % (s(sIN), s(sIN), P12))
    rw_stream(A, [sIN], 32, vM, vX, None, SEL, SEL2, D, lambda k: 0)
    trace(A, 1, 60)
    A("v_cmp_gt_u32 vcc, 0x40000000, v%d" % vS[2]); A("s_nop 1")
    for r in vals[8:]: A("v_cndmask_b32 v%d, 0, v%d, vcc" % (r, r))
    for r in vals: rb16(A, r)
    for k in range(3): unpack4(A, XQ + 2 * k, TMP + 4 * k)
    for i, r in enumerate(vals): A("v_add_f32 v%d, v%d, v%d" % (r, r, TMP + i))
    for r in vals: rb16(A, r)
    def store_row(base):
        A("s_add_u32 %s, %s, 0x%x" % (s(pT + 8), s(sROW), base))
        for k in range(3):
            A("v_perm_b32 v%d, v%d, v%d, %s" % (TMP + 2 * k, D[k] + 1, D[k], s(pT + 14))); A("v_perm_b32 v%d, v%d, v%d, %s" % (TMP + 2 * k + 1, D[k] + 3, D[k] + 2, s(pT + 14)))
            A("buffer_store_dwordx2 %s, v%d, %s, %s offen sc1" % (v(TMP + 2 * k, 2), vS[k], s(pWS, 4), s(pT + 8)))
    store_row(HB)
    ln_wave(A, vals, TMP + 8, vS[2]); store_row(HNB)
    ln_wave(A, vals, TMP + 8, vS[2]); store_row(TB)
    A("s_add_u32 %s, %s, 1" % (s(pT + 4), s(pS)))
    wave_flag(A, s(pFOFF), s(pT + 4), TMP)
    trace(A, 2, 60)
    A.label(no3)
    A("s_cmp_ge_u32 %s, %d" % (s(pS), KLAG)); A("s_cbranch_scc0 %s" % no8)
    A("s_sub_u32 %s, %s, %d" % (s(sS8), s(pS), KLAG))
    A("s_lshl_b32 %s, %s, 5" % (s(sROW), s(sS8))); A("s_add_u32 %s, %s, %s" % (s(sROW), s(sROW), s(pID))); A("s_mul_i32 %s, %s, %d" % (s(sROW), s(sROW), ROW))
    A("s_add_u32 %s, %s, 1" % (s(pT + 4), s(sS8)))
    wait_flags(A, vFl8, s(sFL8), s(pT + 4), fail, TMP)
    A("s_add_u32 %s, %s, 0x%x" % (s(pT), s(sROW), HB)); A("s_add_u32 %s, %s, 0x%x" % (s(pT + 1), s(sROW), X1B))
    for k in range(3):
        A("buffer_load_dwordx2 %s, v%d, %s, %s offen sc1" % (v(HQ + 2 * k, 2), vS[k], s(pWS, 4), s(pT)))
        A("buffer_load_dwordx2 %s, v%d, %s, %s offen sc1" % (v(XQ + 2 * k, 2), vS[k], s(pWS, 4), s(pT + 1)))
    A("s_and_b32 %s, %s, %d" % (s(sIN), s(sS8), RING - 1)); A("s_mul_i32 %s, %s, %d" % (s(sIN), s(sIN), 32 * 36 * PROW)); A("s_mul_i32 %s, %s, %d" % (s(pT), s(pID), 36 * PROW))
    A("s_add_u32 %s, %s, %s" % (s(sIN), s(sIN), s(pT))); A("s_add_u32 %s, %s, 0x%x" % (s(sIN), s(sIN), P67))
    def fin(k2):
        A("s_add_u32 %s, %s, 1" % (s(pT + 4), s(sS8)))
        A("v_mov_b32 v%d, %s" % (TMP + 14, s(pT + 4)))
        A("buffer_store_dword v%d, off, %s, %s sc1" % (TMP + 14, s(pWS, 4), s(sFO8)))
        for r in vals: rb16(A, r)
        for k in range(3): unpack4(A, XQ + 2 * k, TMP + 4 * k)
        for i, r in enumerate(vals): A("v_add_f32 v%d, v%d, v%d" % (r, r, TMP + i))
        for r in vals: rb16(A, r)
        for k in range(3): unpack4(A, HQ + 2 * k, TMP + 4 * k)
        for i, r in enumerate(vals): A("v_add_f32 v%d, v%d, v%d" % (r, r, TMP + i))
        for k in range(3):
            A("v_cvt_pk_bf16_f32 v%d, v%d, v%d" % (TMP + 2 * k, D[k], D[k] + 1)); A("v_cvt_pk_bf16_f32 v%d, v%d, v%d" % (TMP + 2 * k + 1, D[k] + 2, D[k] + 3))
            A("buffer_store_dwordx2 %s, v%d, %s, %s offen" % (v(TMP + 2 * k, 2), vN[k], s(OUT, 4), s(sROW)))
        return 4
    rw_stream(A, [sIN], 36, vM, vX, vX9, SEL, SEL2, D, fin, pre=6)
    A.label(no8)
    A("s_add_u32 %s, %s, 4" % (s(pS), s(pS)))
    A("s_cmp_lt_u32 %s, %d" % (s(pS), nseg + KLAG)); A("s_cbranch_scc1 %s" % top)
    m1 = A.mark()
    A("s_waitcnt vmcnt(0)")
    trace(A, 3, 0)
    return (m0, m1)


def emit_r8i(A, fail, ncu=20, hook=None):
    A.c("=== R8 (items)")
    TRV[0] = 250
    vM, vX, vX9, vFl = 1, 2, 10, 3
    vS, vN = [4, 5, 6], [7, 8, 9]
    SEL, SEL2, TMP = 12, 16, 20
    D = [36, 40, 44]; XQ, HQ = 48, 54
    OUT = 48
    load_srd(A, OUT, "out")
    rw_consts(A, 36, vM, vX, SEL, SEL2, vS, vN, TMP)
    A("v_and_b32 v%d, 8, v0" % TMP); A("v_mov_b32 v%d, 0x40000000" % (TMP + 1)); A("v_cmp_eq_u32 vcc, 0, v%d" % TMP); A("s_nop 1")
    A("v_cndmask_b32 v%d, v%d, v%d, vcc" % (vX9, TMP + 1, vX))
    A("v_and_b32 v%d, 63, v0" % TMP); A("v_min_u32 v%d, 35, v%d" % (vFl, TMP)); A("v_lshlrev_b32 v%d, 2, v%d" % (vFl, vFl))
    sIN, sROW, sFL, sIT, sTOK = 44, 45, 46, 47, 52
    if hook: hook(A)
    A("s_lshl_b32 %s, %s, 2" % (s(sIT), s(pID))); A("s_add_u32 %s, %s, %s" % (s(sIT), s(sIT), s(pWV)))
    vals = [D[k] + r for k in range(3) for r in range(4)]
    top = A.newlab("r8_top"); m0 = A.mark(); A.label(top)
    A("s_lshr_b32 %s, %s, 5" % (s(pS), s(sIT))); A("s_and_b32 %s, %s, 31" % (s(sTOK), s(sIT)))
    A("s_mul_i32 %s, %s, %d" % (s(sROW), s(sIT), ROW))
    A("s_and_b32 %s, %s, 1" % (s(sFL), s(pS))); A("s_mul_i32 %s, %s, 144" % (s(sFL), s(sFL))); A("s_add_u32 %s, %s, 0x%x" % (s(sFL), s(sFL), F_R67))
    A("s_add_u32 %s, %s, 1" % (s(pT + 4), s(pS)))
    wait_flags(A, vFl, s(sFL), s(pT + 4), fail, TMP)
    trace(A, 0, 62)
    A("s_add_u32 %s, %s, 0x%x" % (s(pT), s(sROW), HB)); A("s_add_u32 %s, %s, 0x%x" % (s(pT + 1), s(sROW), X1B))
    for k in range(3):
        A("buffer_load_dwordx2 %s, v%d, %s, %s offen sc1" % (v(HQ + 2 * k, 2), vS[k], s(pWS, 4), s(pT)))
        A("buffer_load_dwordx2 %s, v%d, %s, %s offen sc1" % (v(XQ + 2 * k, 2), vS[k], s(pWS, 4), s(pT + 1)))
    A("s_and_b32 %s, %s, %d" % (s(sIN), s(pS), RING67 - 1)); A("s_mul_i32 %s, %s, %d" % (s(sIN), s(sIN), 32 * 36 * PROW)); A("s_mul_i32 %s, %s, %d" % (s(pT), s(sTOK), 36 * PROW))
    A("s_add_u32 %s, %s, %s" % (s(sIN), s(sIN), s(pT))); A("s_add_u32 %s, %s, 0x%x" % (s(sIN), s(sIN), P67))
    A("s_and_b32 %s, %s, %d" % (s(pFOFF), s(pS), RING67 - 1)); A("s_lshl_b32 %s, %s, 5" % (s(pFOFF), s(pFOFF))); A("s_add_u32 %s, %s, %s" % (s(pFOFF), s(pFOFF), s(sTOK)))
    A("s_lshl_b32 %s, %s, 2" % (s(pFOFF), s(pFOFF))); A("s_add_u32 %s, %s, 0x%x" % (s(pFOFF), s(pFOFF), F_R8))
    def fin(k2):
        A("s_add_u32 %s, %s, 1" % (s(pT + 4), s(pS)))
        A("v_mov_b32 v%d, %s" % (TMP + 14, s(pT + 4)))
        A("buffer_store_dword v%d, off, %s, %s sc1" % (TMP + 14, s(pWS, 4), s(pFOFF)))
        for r in vals: rb16(A, r)
        for k in range(3): unpack4(A, XQ + 2 * k, TMP + 4 * k)
        for i, r in enumerate(vals): A("v_add_f32 v%d, v%d, v%d" % (r, r, TMP + i))
        for r in vals: rb16(A, r)
        for k in range(3): unpack4(A, HQ + 2 * k, TMP + 4 * k)
        for i, r in enumerate(vals): A("v_add_f32 v%d, v%d, v%d" % (r, r, TMP + i))
        for k in range(3):
            A("v_cvt_pk_bf16_f32 v%d, v%d, v%d" % (TMP + 2 * k, D[k], D[k] + 1)); A("v_cvt_pk_bf16_f32 v%d, v%d, v%d" % (TMP + 2 * k + 1, D[k] + 2, D[k] + 3))
            A("buffer_store_dwordx2 %s, v%d, %s, %s offen" % (v(TMP + 2 * k, 2), vN[k], s(OUT, 4), s(sROW)))
        return 4
    rw_stream(A, [sIN], 36, vM, vX, vX9, SEL, SEL2, D, fin, pre=6)
    trace(A, 1, 62)
    A("s_add_u32 %s, %s, %d" % (s(sIT), s(sIT), 4 * ncu))
    A("s_cmp_lt_u32 %s, 2048" % s(sIT)); A("s_cbranch_scc1 %s" % top)
    m1 = A.mark()
    A("s_waitcnt vmcnt(0)")
    trace(A, 3, 0)
    return (m0, m1)


def emit_r3i(A, fail, ncu=16, hook=None):
    A.c("=== R3 (items)")
    TRV[0] = 250
    vM, vX, vFl = 1, 2, 3
    vS, vN = [4, 5, 6], [7, 8, 9]
    SEL, SEL2, TMP = 12, 16, 20
    D = [36, 40, 44]; XQ = 48
    load_srd(A, pW, "x")
    rw_consts(A, 32, vM, vX, SEL, SEL2, vS, vN, TMP)
    A("v_and_b32 v%d, 63, v0" % TMP); A("v_min_u32 v%d, 31, v%d" % (vFl, TMP)); A("v_lshlrev_b32 v%d, 2, v%d" % (vFl, vFl))
    sIN, sROW, sFL, sIT, sTOK = 44, 45, 46, 47, 52
    if hook: hook(A)
    A("s_lshl_b32 %s, %s, 2" % (s(sIT), s(pID))); A("s_add_u32 %s, %s, %s" % (s(sIT), s(sIT), s(pWV)))
    A("s_mov_b32 %s, 0x07060302" % s(pT + 14))
    vals = [D[k] + r for k in range(3) for r in range(4)]
    top = A.newlab("r3_top"); m0 = A.mark(); A.label(top)
    A("s_lshr_b32 %s, %s, 5" % (s(pS), s(sIT))); A("s_and_b32 %s, %s, 31" % (s(sTOK), s(sIT)))
    A("s_mul_i32 %s, %s, %d" % (s(sROW), s(sIT), ROW))
    for k in range(3): A("buffer_load_dwordx2 %s, v%d, %s, %s offen" % (v(XQ + 2 * k, 2), vN[k], s(pW, 4), s(sROW)))
    A("s_and_b32 %s, %s, 1" % (s(sFL), s(pS))); A("s_lshl_b32 %s, %s, 7" % (s(sFL), s(sFL))); A("s_add_u32 %s, %s, 0x%x" % (s(sFL), s(sFL), F_R12))
    A("s_add_u32 %s, %s, 1" % (s(pT + 4), s(pS)))
    wait_flags(A, vFl, s(sFL), s(pT + 4), fail, TMP)
    trace(A, 0, 62)
    A("s_and_b32 %s, %s, %d" % (s(sIN), s(pS), RING - 1)); A("s_mul_i32 %s, %s, %d" % (s(sIN), s(sIN), 32 * 32 * PROW)); A("s_mul_i32 %s, %s, %d" % (s(pT), s(sTOK), 32 * PROW))
    A("s_add_u32 %s, %s, %s" % (s(sIN), s(sIN), s(pT))); A("s_add_u32 %s, %s, 0x%x" % (s(sIN), s(sIN), P12))
    A("s_and_b32 %s, %s, 7" % (s(pFOFF), s(pS))); A("s_lshl_b32 %s, %s, 5" % (s(pFOFF), s(pFOFF))); A("s_add_u32 %s, %s, %s" % (s(pFOFF), s(pFOFF), s(sTOK)))
    A("s_lshl_b32 %s, %s, 2" % (s(pFOFF), s(pFOFF))); A("s_add_u32 %s, %s, 0x%x" % (s(pFOFF), s(pFOFF), F_R3))
    rw_stream(A, [sIN], 32, vM, vX, None, SEL, SEL2, D, lambda k: 0)
    trace(A, 1, 62)
    A("v_cmp_gt_u32 vcc, 0x40000000, v%d" % vS[2]); A("s_nop 1")
    for r in vals[8:]: A("v_cndmask_b32 v%d, 0, v%d, vcc" % (r, r))
    for r in vals: rb16(A, r)
    for k in range(3): unpack4(A, XQ + 2 * k, TMP + 4 * k)
    for i, r in enumerate(vals): A("v_add_f32 v%d, v%d, v%d" % (r, r, TMP + i))
    for r in vals: rb16(A, r)
    def store_row(base):
        A("s_add_u32 %s, %s, 0x%x" % (s(pT + 8), s(sROW), base))
        for k in range(3):
            A("v_perm_b32 v%d, v%d, v%d, %s" % (TMP + 2 * k, D[k] + 1, D[k], s(pT + 14))); A("v_perm_b32 v%d, v%d, v%d, %s" % (TMP + 2 * k + 1, D[k] + 3, D[k] + 2, s(pT + 14)))
            A("buffer_store_dwordx2 %s, v%d, %s, %s offen sc1" % (v(TMP + 2 * k, 2), vS[k], s(pWS, 4), s(pT + 8)))
    store_row(HB)
    ln_wave(A, vals, TMP + 8, vS[2]); store_row(HNB)
    ln_wave(A, vals, TMP + 8, vS[2]); store_row(TB)
    trace(A, 2, 62)
    A("s_add_u32 %s, %s, 1" % (s(pT + 4), s(pS)))
    wave_flag(A, s(pFOFF), s(pT + 4), TMP)
    A("s_add_u32 %s, %s, %d" % (s(sIT), s(sIT), 4 * ncu))
    A("s_cmp_lt_u32 %s, 2048" % s(sIT)); A("s_cbranch_scc1 %s" % top)
    m1 = A.mark()
    trace(A, 3, 0)
    return (m0, m1)
```

```python
from gen_common import *

sWS, sW, sDBG = 4, 8, 12
sH, sWV, sS, sFAST, sVX, sVT, sBYTE = 16, 17, 18, 19, 20, 21, 22
sT = 24
sEXC = 40
sKoff, sVoff, sKM, sVM, sSpin = 42, 43, 44, 45, 46
sPRc, sPRo, sPWc, sPWo, sP9c, sP9o, sMc, sMo = 47, 48, 49, 50, 51, 52, 53, 54
sPXc, sPXo, sXTRA, sM3, sMW1 = 55, 56, 57, 58, 59
sFKM = 62
sSTASH, sVMp = 63, 61
sMQ, sODD = 80, 88
sW4096 = 60
sHoff = 61
sPROF = 64
sSRD = dict(Wq=80, Wk=84, Wv=88, Wo=92)
vL16, vIdx, vSel, vLW, vSw, vSw0, vSr, vSr0, vOw, vPL, vP9, vMx, vMst, vPf, vDum = 0, 1, 2, 4, 5, 6, 7, 8, 9, 10, 11, 12, 13, 14, 15
Ks, Vs = 16, 24
Msp = [32, 36, 40]
accQ = [44, 48, 52, 56]
accV = [72, 76]
LWA, LWB = 64, 72
L_M, L_S, L_O, L_V1, L_W1 = 0, 9216, 14336, 16384, 90112
def Wq_t(t, et): return ('a', (t * 2 + et) * 8)
def Wv_t(t, et):
    i = t * 2 + et
    return ('a', 144 + 8 * i) if i < 14 else ('v', 80 + 8 * (i - 14))
def Wk0_t(t): return ('v', 112 + 8 * t)
def Wo0_t(tau): return ('v', 184 + 8 * tau)
def RR(spec, cnt, off=0): return R((spec[0], spec[1] + off), cnt)

class Q:
    def __init__(self, A, name): self.A, self.name, self.q = A, name, []
    def add(self, tag): self.q.append(tag)
    def wait(self, tag):
        idx = max(i for i, t in enumerate(self.q) if t == tag) if tag in self.q else -1
        if idx < 0: return
        n = len(self.q) - 1 - idx
        assert n <= (15 if self.name == "lgkmcnt" else 63), (self.name, n)
        self.A("s_waitcnt %s(%d)" % (self.name, n))
        self.q = self.q[idx + 1:]
    def waitall(self):
        self.A("s_waitcnt %s(0)" % self.name); self.q = []

def emit_rec_prologue(A, fail):
    A.c("=== REC prologue: lane constants for the weight loads")
    vLane, vG, vRho, vSlot, vA, vB, vA8, vB8, vAo, vBo, vN0, vN1, vT, vTn, vTmp, vTmp2 = range(16, 32)
    A("v_and_b32 v%d, 63, v0" % vLane)
    A("v_lshrrev_b32 v%d, 4, v%d" % (vRho, vLane))
    A("v_and_b32 v%d, 15, v%d" % (vSlot, vLane))
    A("v_lshlrev_b32 v%d, 1, v%d" % (vTmp, vRho))
    A("v_xor_b32 v%d, v%d, v%d" % (vTmp, vSlot, vTmp))
    A("v_lshlrev_b32 v%d, 4, v%d" % (vTmp, vTmp))
    A("v_and_b32 v%d, 1, v%d" % (vTmp2, vRho))
    A("v_lshlrev_b32 v%d, 4, v%d" % (vTmp2, vTmp2))
    A("v_lshrrev_b32 v%d, 1, v%d" % (vA, vRho))
    A("v_add_u32 v%d, v%d, v%d" % (vA, vA, vTmp2))
    A("s_lshl_b32 %s, %s, 1" % (s(sT), s(sWV)))
    A("v_add_u32 v%d, %s, v%d" % (vA, s(sT), vA))
    A("v_lshlrev_b32 v%d, 13, v%d" % (vA, vA))
    A("v_add_u32 v%d, v%d, v%d" % (vA, vA, vTmp))
    A("v_xor_b32 v%d, 128, v%d" % (vB, vA))
    A("s_mul_i32 %s, %s, 144" % (s(sT), s(sWV)))
    A("v_lshrrev_b32 v%d, 1, v%d" % (vA8, vRho))
    A("v_lshlrev_b32 v%d, 3, v%d" % (vA8, vA8))
    A("v_and_b32 v%d, 1, v%d" % (vB8, vRho))
    A("v_add3_u32 v%d, v%d, v%d, %s" % (vA8, vA8, vB8, s(sT)))
    A("v_lshlrev_b32 v%d, 13, v%d" % (vA8, vA8))
    A("v_add_u32 v%d, v%d, v%d" % (vA8, vA8, vTmp))
    A("v_xor_b32 v%d, 128, v%d" % (vB8, vA8))
    A("s_lshr_b32 %s, %s, 1" % (s(sT), s(sWV)))
    A("s_lshl_b32 %s, %s, 5" % (s(sT), s(sT)))
    A("s_and_b32 %s, %s, 1" % (s(sT + 1), s(sWV)))
    A("s_lshl_b32 %s, %s, 3" % (s(sT + 1), s(sT + 1)))
    A("s_add_u32 %s, %s, %s" % (s(sT + 2), s(sT), s(sT + 1)))
    A("v_lshrrev_b32 v%d, 1, v%d" % (vAo, vRho))
    A("v_lshlrev_b32 v%d, 2, v%d" % (vAo, vAo))
    A("v_and_b32 v%d, 1, v%d" % (vTmp2, vRho))
    A("v_add3_u32 v%d, v%d, v%d, %s" % (vAo, vAo, vTmp2, s(sT + 2)))
    A("s_movk_i32 %s, 1152" % s(sT + 3))
    A("v_mul_lo_u32 v%d, v%d, %s" % (vAo, vAo, s(sT + 3)))
    A("v_xor_b32 v%d, 128, v%d" % (vTmp2, vTmp))
    A("v_add_u32 v%d, v%d, v%d" % (vBo, vAo, vTmp2))
    A("v_add_u32 v%d, v%d, v%d" % (vAo, vAo, vTmp))
    A("v_lshrrev_b32 v%d, 3, v%d" % (vTmp, vLane))
    A("v_bfe_u32 v%d, v%d, 1, 1" % (vTmp2, vTmp))
    A("v_lshlrev_b32 v%d, 2, v%d" % (vN0, vTmp2))
    A("v_lshrrev_b32 v%d, 2, v%d" % (vN1, vTmp))
    A("v_lshl_add_u32 v%d, v%d, 1, v%d" % (vN0, vN1, vN0))
    A("v_and_b32 v%d, 1, v%d" % (vN1, vTmp))
    A("v_add3_u32 v%d, v%d, v%d, %s" % (vN0, vN0, vN1, s(sT + 2)))
    A("v_mul_lo_u32 v%d, v%d, %s" % (vN0, vN0, s(sT + 3)))
    A("v_and_b32 v%d, 1, v%d" % (vTmp, vLane))
    A("v_lshl_add_u32 v%d, v%d, 4, v%d" % (vN0, vTmp, vN0))
    A("v_bfe_u32 v%d, v%d, 1, 2" % (vTmp, vLane))
    A("v_xor_b32 v%d, v%d, v%d" % (vTmp, vTmp, vTmp2))
    A("s_movk_i32 %s, 288" % s(sT + 4))
    A("v_xor_b32 v%d, 2, v%d" % (vTmp2, vTmp))
    A("v_mul_lo_u32 v%d, v%d, %s" % (vTmp, vTmp, s(sT + 4)))
    A("v_mul_lo_u32 v%d, v%d, %s" % (vTmp2, vTmp2, s(sT + 4)))
    A("v_add_u32 v%d, v%d, v%d" % (vN1, vN0, vTmp2))
    A("v_add_u32 v%d, v%d, v%d" % (vN0, vN0, vTmp))
    A("v_bfe_u32 v%d, v%d, 2, 2" % (vTmp, vLane))
    A("v_lshl_add_u32 v%d, v%d, 3, v%d" % (vTmp2, vRho, vTmp))
    A("v_lshlrev_b32 v%d, 8, v%d" % (vT, vTmp2))
    A("v_lshlrev_b32 v%d, 7, v%d" % (vTn, vTmp2))
    A("v_and_b32 v%d, 1, v%d" % (vTmp2, vRho))
    A("v_lshl_or_b32 v%d, v%d, 2, v%d" % (vSlot, vTmp2, vTmp))
    A("v_lshl_add_u32 v%d, v%d, 5, v%d" % (vT, vSlot, vT))
    A("v_lshrrev_b32 v%d, 1, v%d" % (vTmp, vTmp))
    A("v_lshl_or_b32 v%d, v%d, 1, v%d" % (vTmp, vTmp2, vTmp))
    A("v_xor_b32 v%d, %s, v%d" % (vTmp, s(sWV), vTmp))
    A("v_lshl_add_u32 v%d, v%d, 5, v%d" % (vTn, vTmp, vTn))
    A("v_and_b32 v%d, 3, v%d" % (vTmp, vLane))
    A("v_lshl_add_u32 v%d, v%d, 3, v%d" % (vT, vTmp, vT))
    A("v_lshl_add_u32 v%d, v%d, 3, v%d" % (vTn, vTmp, vTn))
    A("v_lshlrev_b32 v%d, 4, v%d" % (vL16, vLane))
    A("s_mul_i32 %s, %s, 18432" % (s(sT), s(sWV)))
    A("s_add_u32 %s, %s, %d" % (s(sT), s(sT), L_V1))
    A("v_add_u32 v%d, %s, v%d" % (vLW, s(sT), vL16))
    A("s_lshl_b32 %s, %s, 12" % (s(sW4096), s(sWV)))
    A("s_lshl_b32 %s, %s, 8" % (s(sHoff), s(sH)))
    A("s_mul_i32 %s, %s, %d" % (s(sT + 5), s(sH), 128 * 1152))
    sWoH = sT + 5

    vm = Q(A, "vmcnt")
    SL = [L_W1 + 16384 * i for i in range(4)] + [0]
    TAIL = L_W1 + 65536
    cur = [None]
    for nm, r in sSRD.items(): load_srd(A, r, nm)
    def setW(name): cur[0] = sSRD[name]
    def dma(vaddr, soff_imm, sbase, m0_imm, tag, wave_m0=True):
        if wave_m0: A("s_add_u32 m0, %s, %d" % (s(sW4096), m0_imm))
        A("s_add_u32 %s, %s, %d" % (s(sT + 8), s(sbase), soff_imm))
        A("buffer_load_dwordx4 v%d, %s, %s offen lds" % (vaddr, s(cur[0], 4), s(sT + 8)))
        vm.add(tag)
    def issue(slab, base):
        kind = slab[0]
        if kind in "vqk" and len(kind) == 1:
            t = slab[1]; setW({"v": "Wv", "q": "Wq", "k": "Wk"}[kind])
            for i in range(4):
                if t < 8:
                    U = 144 * (t >> 1) + 8 * (t & 1) + 32 * i; va = vA if i < 2 else vB
                else:
                    U = 128 + 2 * i; va = vA8 if i < 2 else vB8
                dma(va, U * 8192, sHoff, base + i * 1024, slab)
        elif kind == "om":
            tp, wo = slab[1], slab[2]; setW("Wo")
            for i in range(4):
                e = 64 * tp + 16 * (i >> 1) + 2 * (i & 1)
                dma(vAo if i < 2 else vBo, e * 1152 + 288 * wo, sWoH, base + i * 1024, slab)
        elif kind == "on":
            tp = slab[1]; setW("Wo")
            A("s_lshl_b32 %s, %s, 11" % (s(sT + 9), s(sWV)))
            for i in range(2):
                A("s_add_u32 m0, %s, %d" % (s(sT + 9), base + i * 1024))
                dma(vN0 if i == 0 else vN1, (64 * tp + 16 * i) * 1152 + 256, sWoH, 0, slab, wave_m0=False)
    OFFS = [0, 4 * 256, 32 * 256, 36 * 256]
    OFFN = [0, 4 * 128, 32 * 128, 36 * 128]
    vX, vY = 32, 33
    vTB = 36
    def trtile(dst, vaddr, offs):
        for u in range(4):
            A("ds_read_b64_tr_b16 %s, v%d offset:%d" % (RR(dst, 2, 2 * u), vaddr, offs[u]))
    def consume(slab, base):
        kind = slab[0]
        if kind in "vqk" and len(kind) == 1:
            t = slab[1]
            A("s_lshl_b32 %s, %s, 6" % (s(sT + 9), s(sWV)))
            A("v_xor_b32 v%d, %s, v%d" % (vX, s(sT + 9), vT))
            A("v_add_u32 v%d, %d, v%d" % (vX, base, vX) if base else "v_mov_b32 v%d, v%d" % (vX, vX))
            A("v_xor_b32 v%d, 32, v%d" % (vY, vX)) if base % 64 == 0 else None
            if kind == "q": d0, d1 = Wq_t(t, 0), Wq_t(t, 1)
            elif kind == "v": d0, d1 = Wv_t(t, 0), Wv_t(t, 1)
            else: d0, d1 = Wk0_t(t), ('v', vTB)
            trtile(d0, vX, OFFS); trtile(d1, vY, OFFS)
            A("s_waitcnt lgkmcnt(0)")
            if kind == "k":
                A("ds_write_b128 v%d, %s offset:%d" % (vLW, v(vTB, 4), t * 2048))
                A("ds_write_b128 v%d, %s offset:%d" % (vLW, v(vTB + 4, 4), t * 2048 + 1024))
                A("s_waitcnt lgkmcnt(0)")
        elif kind == "om":
            tp, wo = slab[1], slab[2]
            skip = A.newlab("om_skip")
            A("s_cmp_eq_u32 %s, %d" % (s(sWV), wo))
            A("s_cbranch_scc0 %s" % skip)
            for tau in range(8):
                A("v_xor_b32 v%d, %d, v%d" % (vX, tau << 5, vT))
                if base: A("v_add_u32 v%d, %d, v%d" % (vX, base, vX))
                trtile(Wo0_t(tau), vX, OFFS)
                if tau % 2 == 1: A("s_waitcnt lgkmcnt(0)")
            A.label(skip)
        elif kind == "on":
            A("v_add_u32 v%d, %d, v%d" % (vX, base, vTn) if base else "v_mov_b32 v%d, v%d" % (vX, vTn))
            trtile(Wo0_t(8), vX, OFFN)
            A("s_waitcnt lgkmcnt(0)")
    slabs = [("k", t) for t in range(9)] + [("q", t) for t in range(9)] + [("v", t) for t in range(9)] + \
            [("om", 0, w) for w in range(4)] + [("on", 0)]
    assert len(slabs) == 32
    for n in range(5): issue(slabs[n], SL[n % 5])
    follow = {27: (("om", 1, 2), SL[2]), 28: (("om", 1, 3), SL[3]), 29: (("on", 1), TAIL), 30: (("om", 1, 0), SL[0]), 31: (("om", 1, 1), SL[1])}
    for n in range(32):
        vm.wait(slabs[n])
        A("s_barrier")
        consume(slabs[n], SL[n % 5])
        A("s_barrier")
        if n + 5 < 32: issue(slabs[n + 5], SL[n % 5])
        else: issue(*follow[n])
    vm.waitall()
    A("s_barrier")
    A.c("re-layout Wo t'=1 tiles: natural -> linear (through v8..v79); own slab base = L_W1 + 16384*w")
    A("s_lshl_b32 %s, %s, 14" % (s(sT + 9), s(sWV)))
    A("s_add_u32 %s, %s, %d" % (s(sT + 9), s(sT + 9), L_W1))
    A("v_add_u32 v1, %s, v%d" % (s(sT + 9), vT))
    A("v_add_u32 v2, %d, v%d" % (TAIL, vTn))
    for tau in range(8):
        A("v_xor_b32 v3, %d, v1" % (tau << 5))
        trtile(('v', 8 + 8 * tau), 3, OFFS)
        if tau % 2 == 1: A("s_waitcnt lgkmcnt(0)")
    trtile(('v', 72), 2, OFFN)
    A("s_waitcnt lgkmcnt(0)")
    A("s_barrier")
    A("v_add_u32 v1, %d, v%d" % (L_W1 - L_V1, vLW))
    for tau in range(9):
        A("ds_write_b128 v1, %s offset:%d" % (v(8 + 8 * tau, 4), tau * 2048))
        A("ds_write_b128 v1, %s offset:%d" % (v(12 + 8 * tau, 4), tau * 2048 + 1024))
        if tau % 4 == 3: A("s_waitcnt lgkmcnt(0)")
    A("s_waitcnt lgkmcnt(0)")

def emit_rec_consts(A):
    A.c("=== persistent lane constants")
    t0, t1, t2, t3, t4 = 16, 17, 18, 19, 20
    lane, g, c = 21, 22, 23
    A("v_lshrrev_b32 v%d, 4, v%d" % (lane, vL16))
    A("v_lshrrev_b32 v%d, 4, v%d" % (g, lane))
    A("v_and_b32 v%d, 15, v%d" % (c, lane))
    A("v_mov_b32 v%d, 0x4444" % t0)
    A("v_mov_b32 v%d, 0xeeee" % t1)
    A("v_and_b32 v%d, 2, v%d" % (t2, c))
    A("v_cmp_eq_u32 vcc, 0, v%d" % t2)
    A("s_nop 1")
    A("v_cndmask_b32 v%d, v%d, v%d, vcc" % (vIdx, t1, t0))
    A("v_lshlrev_b32 v%d, 2, v%d" % (t0, g))
    A("v_sub_u32 v%d, v%d, v%d" % (t0, c, t0))
    A("v_mov_b32 v%d, 0x3f80" % t1)
    A("v_mov_b32 v%d, 0x3f800000" % t2)
    A("v_mov_b32 v%d, 0" % t3)
    for dst, (dl, dh) in ((vSel, (2, 3)), (vSel + 1, (0, 1))):
        A("v_cmp_eq_u32 vcc, %d, v%d" % (dl, t0))
        A("s_nop 1")
        A("v_cndmask_b32 v%d, v%d, v%d, vcc" % (dst, t3, t1))
        A("v_cmp_eq_u32 vcc, %d, v%d" % (dh, t0))
        A("s_nop 1")
        A("v_cndmask_b32 v%d, v%d, v%d, vcc" % (dst, dst, t2))
    A("v_lshrrev_b32 v%d, 2, v%d" % (t0, c))
    A("v_lshlrev_b32 v%d, 1, v%d" % (t0, t0))
    A("v_lshl_add_u32 v%d, v%d, 3, v%d" % (t0, g, t0))
    A("v_and_b32 v%d, 1, v%d" % (t1, c))
    A("v_add_u32 v%d, v%d, v%d" % (t0, t0, t1))
    A("s_mul_i32 %s, %s, 1280" % (s(sT), s(sWV)))
    A("s_add_u32 %s, %s, %d" % (s(sT), s(sT), L_S))
    A("v_lshl_add_u32 v%d, v%d, 4, %s" % (vSw, t0, s(sT)))
    A("v_lshl_add_u32 v%d, v%d, 3, %s" % (vSw0, t0, s(sT)))
    A("v_and_b32 v%d, 2, v%d" % (t1, c))
    A("v_xor_b32 v%d, 2, v%d" % (t1, t1))
    A("v_lshlrev_b32 v%d, 4, v%d" % (t2, t0))
    A("v_lshlrev_b32 v%d, 6, v%d" % (t3, t1))
    A("v_xor_b32 v%d, v%d, v%d" % (t2, t2, t3))
    A("v_lshl_add_u32 v%d, v%d, 8, v%d" % (t2, t1, t2))
    A("v_add_u32 v%d, %d, v%d" % (vSr, L_S + 256, t2))
    A("v_lshlrev_b32 v%d, 1, v%d" % (t2, t1))
    A("v_lshl_add_u32 v%d, v%d, 3, v%d" % (t2, t0, t2))
    A("v_add_u32 v%d, %d, v%d" % (vSr0, L_S, t2))
    A("v_lshrrev_b32 v%d, 1, v%d" % (t0, g))
    A("v_lshlrev_b32 v%d, 4, v%d" % (t0, t0))
    A("v_lshrrev_b32 v%d, 2, v%d" % (t1, c))
    A("v_lshl_add_u32 v%d, v%d, 2, v%d" % (t0, t1, t0))
    A("v_and_b32 v%d, 1, v%d" % (t1, g))
    A("v_lshl_add_u32 v%d, v%d, 1, v%d" % (t0, t1, t0))
    A("v_and_b32 v%d, 1, v%d" % (t1, c))
    A("v_add_u32 v%d, v%d, v%d" % (t0, t0, t1))
    A("s_and_b32 %s, %s, 1" % (s(sT), s(sWV)))
    A("s_lshl_b32 %s, %s, 9" % (s(sT), s(sT)))
    A("s_lshr_b32 %s, %s, 1" % (s(sT + 1), s(sWV)))
    A("s_lshl_b32 %s, %s, 10" % (s(sT + 1), s(sT + 1)))
    A("s_add_u32 %s, %s, %s" % (s(sT), s(sT), s(sT + 1)))
    A("s_add_u32 %s, %s, %d" % (s(sT), s(sT), L_O))
    A("v_lshl_add_u32 v%d, v%d, 4, %s" % (vOw, t0, s(sT)))
    A("v_lshrrev_b32 v%d, 2, v%d" % (t0, c))
    A("v_lshl_add_u32 v%d, v%d, 2, v%d" % (t0, t0, g))
    A("s_movk_i32 %s, %d" % (s(sT + 3), PSTR))
    A("v_mul_lo_u32 v%d, v%d, %s" % (t0, t0, s(sT + 3)))
    A("v_and_b32 v%d, 3, v%d" % (t1, c))
    A("v_lshl_add_u32 v%d, v%d, 4, v%d" % (vPL, t1, t0))
    A("v_mov_b32 v%d, 0x40000000" % t4)
    A("v_lshrrev_b32 v%d, 2, v%d" % (t0, c))
    A("v_lshlrev_b32 v%d, 1, v%d" % (t0, t0))
    A("v_and_b32 v%d, 1, v%d" % (t1, c))
    A("v_add_u32 v%d, v%d, v%d" % (t0, t0, t1))
    A("v_lshrrev_b32 v%d, 1, v%d" % (t1, g))
    A("v_lshl_add_u32 v%d, v%d, 1, v%d" % (t0, t0, t1))
    A("v_lshlrev_b32 v%d, 4, v%d" % (t0, t0))
    A("v_and_b32 v%d, 1, v%d" % (t1, g))
    A("v_lshl_add_u32 v%d, v%d, 3, v%d" % (t0, t1, t0))
    A("v_and_b32 v%d, 2, v%d" % (t1, c))
    A("v_cmp_ne_u32 vcc, 0, v%d" % t1)
    A("s_nop 1")
    A("v_cndmask_b32 v%d, v%d, v%d, vcc" % (vP9, t4, t0))
    A("s_lshl_b32 %s, %s, 2" % (s(sT), s(sWV)))
    A("v_add_u32 v%d, %s, v%d" % (t0, s(sT), c))
    A("v_bfe_u32 v%d, v%d, 1, 2" % (t1, t0))
    A("v_lshlrev_b32 v%d, 4, v%d" % (t1, t1))
    A("v_and_b32 v%d, 1, v%d" % (t2, t0))
    A("v_lshl_add_u32 v%d, v%d, 1, v%d" % (t1, t2, t1))
    A("s_and_b32 %s, %s, 3" % (s(sT + 1), s(sH)))
    A("s_lshl_b32 %s, %s, 2" % (s(sT + 1), s(sT + 1)))
    A("v_add3_u32 v%d, v%d, v%d, %s" % (t1, t1, g, s(sT + 1)))
    A("s_lshr_b32 %s, %s, 2" % (s(sT + 2), s(sH)))
    A("s_and_b32 %s, %s, 1" % (s(sT + 2), s(sT + 2)))
    A("s_lshl_b32 %s, %s, 1" % (s(sT + 2), s(sT + 2)))
    A("v_lshlrev_b32 v%d, 2, v%d" % (t1, t1))
    A("v_add_u32 v%d, %s, v%d" % (t1, s(sT + 2), t1))
    A("v_and_b32 v%d, 63, v%d" % (t2, t1))
    A("v_lshrrev_b32 v%d, 6, v%d" % (t1, t1))
    A("v_lshl_add_u32 v%d, v%d, 2, v%d" % (t1, t2, t1))
    A("v_lshlrev_b32 v%d, 2, v%d" % (t1, t1))
    A("v_lshrrev_b32 v%d, 3, v%d" % (t2, t0))
    A("s_lshr_b32 %s, %s, 3" % (s(sT + 2), s(sH)))
    A("s_lshl_b32 %s, %s, 1" % (s(sT + 2), s(sT + 2)))
    A("v_add_u32 v%d, %s, v%d" % (t2, s(sT + 2), t2))
    A("v_lshl_add_u32 v%d, v%d, 10, v%d" % (t1, t2, t1))
    A("v_and_b32 v%d, 1, v%d" % (t0, c))
    A("v_lshrrev_b32 v%d, 1, v%d" % (t2, c))
    A("v_lshl_add_u32 v%d, v%d, 1, v%d" % (t0, t0, t2))
    A("s_lshr_b32 %s, %s, 2" % (s(sT), s(sH)))
    A("s_lshl_b32 %s, %s, 4" % (s(sT), s(sT)))
    A("s_and_b32 %s, %s, 3" % (s(sT + 1), s(sH)))
    A("s_lshl_b32 %s, %s, 2" % (s(sT + 1), s(sT + 1)))
    A("s_add_u32 %s, %s, %s" % (s(sT), s(sT), s(sT + 1)))
    A("v_add_u32 v%d, %s, v%d" % (t0, s(sT), t0))
    A("v_lshlrev_b32 v%d, 4, v%d" % (t0, t0))
    A("v_and_b32 v%d, 1, v%d" % (t2, g))
    A("v_lshl_add_u32 v%d, v%d, 3, v%d" % (t3, t2, t0))
    A("v_add_u32 v%d, 8192, v%d" % (t3, t3))
    A("s_cmp_lt_u32 %s, 16" % s(sH)); A("s_cselect_b32 %s, 1, 0" % s(sT + 3)); A("s_cmp_eq_u32 %s, 0" % s(sWV)); A("s_cselect_b32 %s, %s, 0" % (s(sT + 3), s(sT + 3)))
    A("s_cmp_eq_u32 %s, 1" % s(sT + 3)); A("s_cselect_b64 vcc, -1, 0")
    A("v_cndmask_b32 v%d, v%d, v%d, vcc" % (t3, t4, t3))
    A("v_add_u32 v%d, 16, v%d" % (t0, t1)); A("v_add_u32 v%d, 4, v%d" % (t2, t3))
    A("v_cmp_gt_u32 vcc, 2, v%d" % g); A("s_nop 1")
    A("v_cndmask_b32 v%d, v%d, v%d, vcc" % (vMst, t3, t1)); A("v_cndmask_b32 v%d, v%d, v%d, vcc" % (vMx, t2, t0))
    A("v_cmp_gt_u32 vcc, 4, v%d" % c); A("s_nop 1")
    A("v_cndmask_b32 v%d, v%d, v%d, vcc" % (vMst, t4, vMst)); A("v_cndmask_b32 v%d, v%d, v%d, vcc" % (vMx, t4, vMx))
    A("v_lshlrev_b32 v%d, 3, v%d" % (t0, vL16))
    A("v_mov_b32 v%d, 0x%x" % (t1, VOP - 2048))
    A("v_cmp_lt_u32 vcc, 15, v%d" % lane)
    A("s_nop 1")
    A("v_cndmask_b32 v%d, 0, v%d, vcc" % (t1, t1))
    A("v_add_u32 v%d, v%d, v%d" % (t0, t0, t1))
    A("v_cmp_lt_u32 vcc, 31, v%d" % lane)
    A("s_nop 1")
    A("v_cndmask_b32 v%d, v%d, v%d, vcc" % (vPf, t0, t4))
    A("s_mov_b32 %s, 0xcccccccc" % s(sEXC))
    A("s_mov_b32 %s, 0xcccccccc" % s(sEXC + 1))
    def setmask(r, m):
        A("s_mov_b32 %s, 0x%x" % (s(r), m & 0xffffffff)); A("s_mov_b32 %s, 0x%x" % (s(r + 1), m >> 32))
    rows = lambda m16: m16 | (m16 << 16) | (m16 << 32) | (m16 << 48)
    for q in range(4): setmask(sMQ + 2 * q, rows(3 << (2 * q)))
    setmask(sODD, rows(0xaaaa))

def emit_rec_mem0(A):
    A.c("=== mem0 -> M staging")
    load_srd(A, sW, "mem0")
    lane, m, hi, gA, off, o8 = 16, 17, 18, 19, 20, 21
    A("v_lshrrev_b32 v%d, 4, v%d" % (lane, vL16))
    A("v_bfe_u32 v%d, v%d, 2, 2" % (m, lane))
    A("v_lshlrev_b32 v%d, 1, v%d" % (m, m))
    A("v_and_b32 v%d, 1, v%d" % (hi, lane))
    A("v_add_u32 v%d, v%d, v%d" % (m, m, hi))
    A("v_bfe_u32 v%d, v%d, 1, 1" % (hi, lane))
    A("v_lshrrev_b32 v%d, 4, v%d" % (gA, lane))
    A("v_lshl_add_u32 v%d, v%d, 1, v%d" % (hi, gA, hi))
    A("v_mul_u32_u24 v%d, 1152, v%d" % (m, m))
    A("s_lshr_b32 %s, %s, 1" % (s(sT), s(sWV)))
    A("s_mul_i32 %s, %s, 144" % (s(sT), s(sT)))
    A("s_and_b32 %s, %s, 1" % (s(sT + 1), s(sWV)))
    A("s_lshl_b32 %s, %s, 3" % (s(sT + 1), s(sT + 1)))
    A("s_add_u32 %s, %s, %s" % (s(sT), s(sT), s(sT + 1)))
    A("v_add_u32 v%d, %s, v%d" % (off, s(sT), hi))
    A("v_lshl_add_u32 v%d, v%d, 1, v%d" % (off, off, m))
    A("v_mul_u32_u24 v%d, 288, v%d" % (o8, gA))
    A("v_bfe_u32 v%d, v%d, 1, 1" % (22, lane))
    A("v_lshl_add_u32 v%d, v%d, 4, v%d" % (o8, 22, o8))
    A("v_add3_u32 v%d, v%d, v%d, 0" % (o8, o8, m))
    for k, (base, extra) in enumerate(((24, 0), (28, 576))):
        for j in range(8):
            A("buffer_load_ushort v%d, v%d, %s, 0 offen offset:%d" % (40 + j, off, s(sW, 4), extra + 32 * j))
        A("s_waitcnt vmcnt(0)")
        for j in range(4):
            A("v_lshl_or_b32 v%d, v%d, 16, v%d" % (base + j, 41 + 2 * j, 40 + 2 * j))
    A("buffer_load_dwordx4 v[32:35], v%d, %s, 0 offen offset:256" % (o8, s(sW, 4)))
    A("s_waitcnt vmcnt(0)")
    A("s_lshl_b32 %s, %s, 10" % (s(sT), s(sWV)))
    A("v_add_u32 v36, %s, v%d" % (s(sT), vL16))
    A("ds_write_b128 v36, v[24:27] offset:%d" % L_M)
    A("ds_write_b128 v36, v[28:31] offset:%d" % (L_M + 4096))
    A("ds_write_b128 v%d, v[32:35] offset:%d" % (vL16, L_M + 8192))
    A("s_waitcnt lgkmcnt(0)")
    A("s_barrier")

DUMPMAP = []
SCALE_LOG2E = 0.08838834764831845 * 1.4426950408889634
import struct
def f2u(x): return struct.unpack("<I", struct.pack("<f", x))[0]

def smf(A, acc, a_op, b_spec):
    A("v_smfmac_f32_16x16x64_bf16 %s, %s, %s, v%d" % (v(acc, 4), v(a_op, 4), RR(b_spec, 8), vIdx))

def zero_regs(A, r0, n):
    assert r0 % 2 == 0 and n % 2 == 0
    for i in range(0, n, 2): A("v_mov_b64 %s, 0" % v(r0 + i, 2))

DBGBUF = 0x4000000
PFD = 2
PFT = -1
ALIGN_PAD = 0
KVN = 20
DELAY_P = 0
DELAY_M = 0
def emit_rec_loop(A, fail, fast=True, prof=False, nsteps=64, dump=None, exp=(), pubflag=False, kvchk=False):
    st = "" if fast else " sc1"
    WSR = s(sWS, 4)
    lg = Q(A, "lgkmcnt"); vm = Q(A, "vmcnt")
    def stamp(i):
        if prof:
            A("s_memtime %s" % s(sPROF + 14, 2))
            A("s_waitcnt lgkmcnt(0)")
            A("s_sub_u32 %s, %s, %s" % (s(sPROF + 12), s(sPROF + 14), s(sPROF + 13)))
            A("s_add_u32 %s, %s, %s" % (s(sPROF + i), s(sPROF + i), s(sPROF + 12)))
            A("s_mov_b32 %s, %s" % (s(sPROF + 13), s(sPROF + 14)))
            lg.q = []
    dumpslot = [0]
    def dbg(tag, regs):
        if dump is None: return
        lab = A.newlab("dump")
        A.c("lint-skip-begin")
        A("s_cmp_eq_u32 %s, %d" % (s(sS), dump))
        A("s_cbranch_scc0 %s" % lab)
        A("s_lshl_b32 s60, %s, 2" % s(sH))
        A("s_add_u32 s60, s60, %s" % s(sWV))
        A("s_lshl_b32 s60, s60, 15")
        A("s_add_u32 s60, s60, 0x%x" % DBGBUF)
        A("s_nop 7")
        A("s_nop 7")
        A("s_waitcnt vmcnt(0) lgkmcnt(0)")
        A("v_lshrrev_b32 v%d, 2, v%d" % (vDum, vL16))
        for r in regs:
            A("s_add_u32 s61, s60, %d" % (dumpslot[0] * 256))
            A("buffer_store_dword v%d, v%d, %s, s61 offen" % (r, vDum, WSR))
            DUMPMAP.append((tag, r, dumpslot[0])); dumpslot[0] += 1
        A("s_waitcnt vmcnt(0)")
        A.label(lab)
        A.c("lint-skip-end")
    A.c("=== REC main loop")
    A("s_mov_b32 %s, 0" % s(sS))
    A("s_lshl_b32 %s, %s, 13" % (s(sT), s(sH)))
    A("s_lshl_b32 %s, %s, 11" % (s(sT + 1), s(sWV)))
    A("s_add_u32 %s, %s, %s" % (s(sKoff), s(sT), s(sT + 1)))
    A("s_add_u32 %s, %s, 0x%x" % (s(sVoff), s(sKoff), VOP))
    A("s_lshl_b32 %s, %s, 12" % (s(sT), s(sH)))
    A("s_lshl_b32 %s, %s, 10" % (s(sT + 2), s(sWV)))
    A("s_add_u32 %s, %s, %s" % (s(sKM), s(sT), s(sT + 2)))
    A("s_add_u32 %s, %s, 0x%x" % (s(sKM), s(sKM), KMEM))
    A("s_lshl_b32 %s, %s, 11" % (s(sT), s(sH)))
    A("s_lshl_b32 %s, %s, 9" % (s(sT + 2), s(sWV)))
    A("s_add_u32 %s, %s, %s" % (s(sVM), s(sT), s(sT + 2)))
    A("s_add_u32 %s, %s, 0x%x" % (s(sVM), s(sVM), VMEM))
    A("s_lshl_b32 %s, %s, 2" % (s(sT + 4), s(sH)))
    A("s_add_u32 %s, %s, %s" % (s(sT + 4), s(sT + 4), s(sWV)))
    A("s_lshl_b32 %s, %s, 6" % (s(sT + 4), s(sT + 4)))
    A("s_add_u32 %s, %s, 0x%x" % (s(sPRc), s(sT + 4), PBUF))
    A("s_add_u32 %s, %s, 0x%x" % (s(sPRo), s(sT + 4), PBUF + PSLOT))
    A("s_lshl_b32 %s, %s, 6" % (s(sT + 4), s(sH)))
    A("s_add_u32 %s, %s, 0x%x" % (s(sPXc), s(sT + 4), PBUF + 8192))
    A("s_add_u32 %s, %s, 0x%x" % (s(sPXo), s(sT + 4), PBUF + PSLOT + 8192))
    A("s_cmp_lt_u32 %s, 16" % s(sH))
    A("s_cselect_b32 %s, 1, 0" % s(sXTRA))
    A("s_cmp_eq_u32 %s, 0" % s(sWV))
    A("s_cselect_b32 %s, %s, 0" % (s(sXTRA), s(sXTRA)))
    A("s_mul_i32 %s, %s, %d" % (s(sT), s(sH), PSTR))
    A("s_add_u32 %s, %s, %s" % (s(sT + 2), s(sT), s(sT + 1)))
    A("s_add_u32 %s, %s, 0x%x" % (s(sPWc), s(sT + 2), PBUF))
    A("s_add_u32 %s, %s, 0x%x" % (s(sPWo), s(sT + 2), PBUF + PSLOT))
    A("s_lshl_b32 %s, %s, 8" % (s(sT + 3), s(sWV)))
    A("s_add_u32 %s, %s, 8192" % (s(sM3), s(sT + 3)))
    A("s_add_u32 %s, %s, %s" % (s(sT + 3), s(sT + 3), s(sT)))
    A("s_add_u32 %s, %s, 0x%x" % (s(sP9c), s(sT + 3), PBUF + 8192))
    A("s_add_u32 %s, %s, 0x%x" % (s(sP9o), s(sT + 3), PBUF + PSLOT + 8192))
    A("s_lshl_b32 %s, %s, 5" % (s(sFKM), s(sH))); A("s_add_u32 %s, %s, %s" % (s(sFKM), s(sFKM), s(sWV)))
    A("s_lshl_b32 %s, %s, 2" % (s(sFKM), s(sFKM))); A("s_add_u32 %s, %s, 0x%x" % (s(sFKM), s(sFKM), F_KM))
    A("s_mul_i32 %s, %s, 1280" % (s(sSTASH), s(sWV))); A("s_add_u32 %s, %s, %d" % (s(sSTASH), s(sSTASH), L_S))
    A("s_lshl_b32 %s, %s, 10" % (s(sMW1), s(sWV)))
    A("s_mov_b32 %s, 0x%x" % (s(sMc), MBUF + 9216))
    A("s_mov_b32 %s, 0x%x" % (s(sMo), MBUF))
    if prof:
        for i in range(12): A("s_mov_b32 %s, 0" % s(sPROF + i))
        A("s_memtime %s" % s(sPROF + 14, 2))
        A("s_waitcnt lgkmcnt(0)")
        A("s_mov_b32 %s, %s" % (s(sPROF + 13), s(sPROF + 14)))
    zero_regs(A, 44, 16)
    def loadKV():
        A("buffer_load_dwordx4 %s, v%d, %s, %s offen" % (v(Ks, 4), vL16, WSR, s(sKoff))); vm.add("ks")
    loadKV()
    top = A.newlab("rec_top"); done = A.newlab("rec_done")
    A(".p2align 6")
    for i in range(ALIGN_PAD): A("s_nop 0")
    m0 = A.mark()
    A.label(top)
    vm.q = ["ks"]
    def rdM(t, tag):
        A("ds_read_b128 %s, v%d offset:%d" % (v(Msp[t % 3], 4), vL16, L_M + t * 1024)); lg.add(tag)
    def rdLWh(buf, tile, half, tag):
        A("ds_read_b128 %s, v%d offset:%d" % (v(buf + 4 * half, 4), vLW, tile * 2048 + 1024 * half)); lg.add(tag)
    LW = lambda i: LWA if i % 2 == 0 else LWB
    A.c("SEC qk")
    rdM(0, ("mq", 0)); rdLWh(LWA, 0, 0, ("lw", 0)); rdLWh(LWA, 0, 1, ("lw", 0)); rdM(1, ("mq", 1)); rdM(2, ("mq", 2))
    SENT = 60
    A("v_mov_b64 v[60:61], -1")
    A("v_mov_b64 v[62:63], -1")
    def vfill(t):
        if t == 0: A("buffer_load_dwordx4 %s, v%d, %s, %s offen offset:1024" % (v(Ks + 4, 4), vL16, WSR, s(sKoff))); vm.add("ks")
        if t == 1: A("buffer_load_dwordx4 %s, v%d, %s, %s offen" % (v(Vs, 4), vL16, WSR, s(sVoff))); vm.add("vs")
        if t == 2: A("buffer_load_dwordx4 %s, v%d, %s, %s offen offset:1024" % (v(Vs + 4, 4), vL16, WSR, s(sVoff))); vm.add("vs")
        if t == PFT and "nopf" not in exp:
            A("s_add_u32 %s, %s, 0x%x" % (s(sT + 5), s(sKoff), PFD * 32 * 8192))
            A("buffer_load_dword v%d, v%d, %s, %s offen" % (vDum, vPf, WSR, s(sT + 5))); vm.add("pf")
        if t == 3: A("buffer_store_dwordx4 %s, v%d, %s, %s offen%s" % (v(SENT, 4), vL16, WSR, s(sPWo), st)); vm.add("rst")
        if t == 4: A("buffer_store_dwordx4 %s, v%d, %s, %s offen offset:1024%s" % (v(SENT, 4), vL16, WSR, s(sPWo), st)); vm.add("rst")
        if t == 5: A("buffer_store_dwordx2 %s, v%d, %s, %s offen%s" % (v(SENT, 2), vP9, WSR, s(sP9o), st)); vm.add("rst")
        if t == 6: A("buffer_store_dword v%d, v%d, %s, %s offen%s" % (SENT, vMst, WSR, s(sMc), st)); vm.add("rst")
        if t == 7: A("buffer_store_dword v%d, v%d, %s, %s offen%s" % (SENT, vMx, WSR, s(sMc), st)); vm.add("rst")
    for t in range(9):
        lg.wait(("mq", t))
        b = Msp[t % 3]
        smf(A, accQ[0], b, Wq_t(t, 0))
        if t + 1 < 9: rdLWh(LW(t + 1), t + 1, 0, ("lw", t + 1))
        else: zero_regs(A, 72, 2)
        smf(A, accQ[1], b, Wq_t(t, 1))
        if t + 1 < 9: rdLWh(LW(t + 1), t + 1, 1, ("lw", t + 1))
        else: zero_regs(A, 74, 2)
        smf(A, accQ[2], b, Wk0_t(t))
        vfill(t)
        if t == 8: zero_regs(A, 76, 2)
        lg.wait(("lw", t))
        smf(A, accQ[3], b, ('v', LW(t)))
        if t + 3 < 9: rdM(t + 3, ("mq", t + 3))
        else: rdM(t - 6, ("mv", t - 6))
    zero_regs(A, 78, 2)
    stamp(0)
    def VS(i):
        t, et = i // 2, i % 2
        if et == 0: lg.wait(("mv", t))
        smf(A, accV[et], Msp[t % 3], Wv_t(t, et))
        if et == 1 and t + 3 < 9: rdM(t + 3, ("mv", t + 3))
    A.c("SEC fix")
    A("s_nop 0")
    VS(0); VS(1)
    for x in (44, 48, 52, 56):
        A("v_add_f32 v%d, v%d, v%d" % (x, x, x + 2)); A("v_add_f32 v%d, v%d, v%d" % (x + 1, x + 1, x + 3))
    A("v_cvt_pk_bf16_f32 v44, v44, v45")
    A("v_cvt_pk_bf16_f32 v48, v48, v49")
    A("v_cvt_pk_bf16_f32 v45, v52, v53")
    A("v_cvt_pk_bf16_f32 v49, v56, v57")
    A("s_nop 1")
    A("v_mfma_f32_16x16x16_bf16 v[52:55], v[44:45], %s, 0" % v(vSel, 2))
    A("v_mfma_f32_16x16x16_bf16 v[56:59], v[48:49], %s, 0" % v(vSel, 2))
    VS(2); VS(3)
    A("s_nop 3")
    A("v_cvt_pk_bf16_f32 v44, v52, v53")
    A("v_cvt_pk_bf16_f32 v45, v54, v55")
    A("v_cvt_pk_bf16_f32 v46, v56, v57")
    A("v_cvt_pk_bf16_f32 v47, v58, v59")
    A("v_xor_b32 v60, 128, v%d" % vSw)
    vm.wait("ks")
    A("s_nop 0")
    A("v_mfma_f32_16x16x32_bf16 v[48:51], v[44:47], v[44:47], 0")
    A("v_mfma_f32_16x16x32_bf16 v[52:55], %s, v[44:47], 0" % v(Ks, 4))
    A("v_mfma_f32_16x16x32_bf16 v[56:59], %s, v[44:47], 0" % v(Ks + 4, 4))
    VS(4); VS(5)
    A("s_mov_b64 exec, %s" % s(sEXC, 2))
    A("s_nop 2")
    A("ds_write_b64 v%d, v[48:49]" % vSw0); lg.add("sw")
    A("ds_write_b128 v%d, v[52:55] offset:256" % vSw); lg.add("sw")
    A("ds_write_b128 v60, v[56:59] offset:768"); lg.add("sw")
    A("s_mov_b64 exec, -1")
    if "nopub" not in exp and "nokm" not in exp:
        A("buffer_store_dwordx4 v[44:47], v%d, %s, %s offen%s" % (vL16, WSR, s(sKM), "" if "plainpub" in exp else " sc1")); vm.add("km")
    if pubflag:
        A("v_mov_b32 v61, %s" % s(sS))
        A("buffer_store_dword v61, off, %s, %s sc1" % (WSR, s(sFKM))); vm.add("flg")
    if "nopf" not in exp and PFT < 0:
        A("s_add_u32 %s, %s, 0x%x" % (s(sT + 5), s(sKoff), PFD * 32 * 8192))
        A("buffer_load_dword v%d, v%d, %s, %s offen" % (vDum, vPf, WSR, s(sT + 5))); vm.add("pf")
    if kvchk:
        kq = A.newlab("kvq")
        A("s_and_b32 %s, %s, 7" % (s(sT + 6), s(sS))); A("s_cmp_eq_u32 %s, 5" % s(sT + 6)); A("s_cbranch_scc0 %s" % kq)
        A("s_lshr_b32 %s, %s, 3" % (s(sT + 6), s(sS))); A("s_lshl_b32 %s, %s, 2" % (s(sT + 6), s(sT + 6))); A("s_add_u32 %s, %s, %d" % (s(sT + 6), s(sT + 6), D_KV + 4))
        A.c("lint-skip-begin")
        A("buffer_load_dword v%d, off, %s, %s sc1" % (vDum, s(sDBG, 4), s(sT + 6)))
        A.c("lint-skip-end")
        A.label(kq)
    VS(6); VS(7)
    lg.waitall()
    A("s_barrier")
    stamp(1)
    A.c("SEC soft")
    RA = [52, 56, 16, 20]; R0 = [48, 49, 50, 51]
    for w_ in range(4):
        A("ds_read_b128 %s, v%d offset:%d" % (v(RA[w_], 4), vSr, 1280 * w_)); lg.add("sr")
    for w_ in range(4):
        A("ds_read_b32 v%d, v%d offset:%d" % (R0[w_], vSr0, 1280 * w_)); lg.add("sr")
    for i in range(8, 16): VS(i)
    lg.wait("sr")
    for i in range(4): A("v_add_f32 v%d, v%d, v%d" % (52 + i, 52 + i, 56 + i))
    for i in range(4): A("v_add_f32 v%d, v%d, v%d" % (16 + i, 16 + i, 20 + i))
    A("v_add_f32 v48, v48, v49")
    A("v_add_f32 v50, v50, v51")
    for i in range(4): A("v_add_f32 v%d, v%d, v%d" % (52 + i, 52 + i, 16 + i))
    A("v_add_f32 v48, v48, v50")
    dbg("S", [48, 52, 53, 54, 55])
    A("v_max3_f32 v44, v52, v53, v54")
    A("v_max3_f32 v44, v44, v55, v48")
    VS(16)
    A("s_nop 0")
    A("v_max_f32_dpp v44, v44, v44 quad_perm:[2,3,0,1] row_mask:0xf bank_mask:0xf")
    A("v_mov_b32 v45, v44")
    VS(17)
    A("s_nop 0")
    A("v_permlane16_swap_b32 v44, v45")
    A("v_max_f32 v44, v44, v45")
    A("v_mov_b32 v45, v44")
    A("v_lshrrev_b32 v62, 1, v%d" % vL16)
    A("v_add_u32 v%d, %d, v%d" % (vLW, L_W1 - L_V1, vLW))
    A("v_permlane32_swap_b32 v44, v45")
    A("v_max_f32 v44, v44, v45")
    A("s_mov_b32 %s, 0x%x" % (s(sT + 6), f2u(SCALE_LOG2E)))
    A("v_mul_f32 v44, %s, v44" % s(sT + 6))
    A("v_add_f32 v72, v72, v74"); A("v_add_f32 v73, v73, v75")
    A("v_add_f32 v76, v76, v78"); A("v_add_f32 v77, v77, v79")
    A("v_cvt_pk_bf16_f32 v60, v72, v73")
    A("v_cvt_pk_bf16_f32 v61, v76, v77")
    if "nopub" not in exp and "nokm" not in exp:
        A("buffer_store_dwordx2 v[60:61], v62, %s, %s offen%s" % (WSR, s(sVM), "" if "plainpub" in exp else " sc1")); vm.add("vmem")
    vals = [52, 53, 54, 55, 48]
    for r in vals: A("v_fma_f32 v%d, v%d, %s, -v44" % (r, r, s(sT + 6)))
    for r in vals: A("v_exp_f32 v%d, v%d" % (r, r))
    for i in range(4): A("v_mov_b32 v%d, 0x3f803f80" % (44 + i))
    A("v_cvt_pk_bf16_f32 v16, v52, v53")
    A("v_cvt_pk_bf16_f32 v17, v54, v55")
    A("v_mov_b32_dpp v49, v48 quad_perm:[2,3,0,1] row_mask:0xf bank_mask:0xf")
    A("v_mov_b32 v21, 0")
    A("v_mov_b32_dpp v18, v16 quad_perm:[2,3,0,1] row_mask:0xf bank_mask:0xf")
    A("v_mov_b32_dpp v19, v17 quad_perm:[2,3,0,1] row_mask:0xf bank_mask:0xf")
    A("v_cvt_pk_bf16_f32 v20, v48, v49")
    A("v_cvt_pk_bf16_f32 v23, v48, v49")
    A("v_mov_b32 v22, 0")
    vm.wait("vs")
    A("s_nop 0")
    A("v_mfma_f32_16x16x32_bf16 v[48:51], v[44:47], v[16:19], 0")
    A("v_mfma_f32_16x16x32_bf16 v[52:55], %s, v[16:19], 0" % v(Vs, 4))
    A("v_mfma_f32_16x16x32_bf16 v[56:59], %s, v[16:19], 0" % v(Vs + 4, 4))
    zero_regs(A, 32, 8)
    A("v_mfma_f32_16x16x16_bf16 v[48:51], v[44:45], v[20:21], v[48:51]")
    A("v_mfma_f32_16x16x16_bf16 v[52:55], v[60:61], v[20:21], v[52:55]")
    A("v_mfma_f32_16x16x16_bf16 v[56:59], v[60:61], v[22:23], v[56:59]")
    A("s_cmp_eq_u32 %s, %d" % (s(sS), nsteps - 1))
    A("s_cbranch_scc1 %s" % done)
    A.c("SEC oex")
    order = [8, 0, 1, 2, 3, 4, 5, 6, 7]
    rdLWh(LWA, order[0], 0, ("wo", 0)); rdLWh(LWA, order[0], 1, ("wo", 0))
    rdLWh(LWB, order[1], 0, ("wo", 1)); rdLWh(LWB, order[1], 1, ("wo", 1))
    A("v_rcp_f32 v46, v48")
    dbg("P", [16, 17, 18, 19, 20, 21, 22, 23, 46])
    dbg("oT", [52, 53, 54, 55, 56, 57, 58, 59])
    zero_regs(A, 24, 4)
    for i in range(8): A("v_mul_f32 v%d, v%d, v46" % (52 + i, 52 + i))
    A("v_cvt_pk_bf16_f32 v44, v52, v53")
    A("v_cvt_pk_bf16_f32 v45, v54, v55")
    A("v_cvt_pk_bf16_f32 v46, v56, v57")
    A("v_cvt_pk_bf16_f32 v47, v58, v59")
    A("s_mov_b64 exec, %s" % s(sEXC, 2))
    A("ds_write_b128 v%d, v[44:47]" % vOw); lg.add("ow")
    A("s_mov_b64 exec, -1")
    zero_regs(A, 28, 4)
    zero_regs(A, 40, 4)
    lg.waitall()
    A("s_barrier")
    stamp(2)
    A.c("SEC wo")
    A("ds_read_b128 v[52:55], v%d offset:%d" % (vL16, L_O)); lg.add("or0")
    A("ds_read_b128 v[56:59], v%d offset:%d" % (vL16, L_O + 1024)); lg.add("or1")
    zero_regs(A, 48, 4)
    zero_regs(A, 16, 8)
    zero_regs(A, 44, 4)
    A("v_mov_b32 v61, 0")
    dbg("Oop", [52, 53, 54, 55, 56, 57, 58, 59])
    acc = lambda tau: 16 + 4 * tau
    def post(i):
        tau = order[i]; x = acc(tau)
        A("v_add_f32 v%d, v%d, v%d" % (x, x, x + 2)); A("v_add_f32 v%d, v%d, v%d" % (x + 1, x + 1, x + 3))
        if tau == 8:
            A("v_cvt_pk_bf16_f32 v60, v48, v49")
        elif tau % 2 == 1:
            base = 16 if tau < 4 else 32
            j = (tau % 4) // 2
            A("v_cvt_pk_bf16_f32 v%d, v%d, v%d" % (base + j, acc(tau - 1), acc(tau))) if j == 0 else None
            A("v_cvt_pk_bf16_f32 v%d, v%d, v%d" % (base + 2 + j, acc(tau - 1) + 1, acc(tau) + 1))
            A("v_cvt_pk_bf16_f32 v%d, v%d, v%d" % (base + j, acc(tau - 1), acc(tau))) if j == 1 else None
    for i, tau in enumerate(order):
        if i == 0: lg.wait("or0")
        smf(A, acc(tau), 52, Wo0_t(tau))
        if i >= 1 and i + 1 < 9: rdLWh(LW(i + 1), order[i + 1], 1, ("wo", i + 1))
        if i == 0: lg.wait("or1")
        lg.wait(("wo", i))
        smf(A, acc(tau), 56, ('v', LW(i)))
        if i + 2 < 9: rdLWh(LW(i), order[i + 2], 0, ("wo", i + 2, 0))
        if i >= 2: post(i - 2)
        if i == 2:
            A("s_nop 1")
            A("v_mfma_f32_16x16x16_bf16 v[48:51], v[60:61], %s, 0" % v(vSel, 2))
        if i == 4:
            A("v_cvt_pk_bf16_f32 v60, v48, v49")
            A("v_cvt_pk_bf16_f32 v61, v50, v51")
            vm.wait("rst")
            A("buffer_store_dwordx2 v[60:61], v%d, %s, %s offen%s" % (vP9, WSR, s(sP9c), st)); vm.add("pst")
        if i == 6:
            A("buffer_store_dwordx4 v[16:19], v%d, %s, %s offen%s" % (vL16, WSR, s(sPWc), st)); vm.add("pst")
    A("v_add_u32 v%d, %d, v%d" % (vLW, -(L_W1 - L_V1) & 0xffffffff, vLW))
    A("s_nop 2")
    post(7)
    A("s_nop 1")
    post(8)
    dbg("Pout", [16, 17, 18, 19, 32, 33, 34, 35, 60, 61])
    A("buffer_store_dwordx4 v[32:35], v%d, %s, %s offen offset:1024%s" % (vL16, WSR, s(sPWc), st)); vm.add("pst")
    stamp(3)
    A.c("SEC pp")
    A("s_add_u32 %s, %s, %d" % (s(sT), s(sPRc), 16 * PSTR))
    A("s_add_u32 %s, %s, %d" % (s(sT + 1), s(sPXc), 16 * PSTR))
    def issueP():
        A("buffer_load_dwordx4 v[24:27], v%d, %s, %s offen sc1" % (vPL, WSR, s(sPRc)))
        A("buffer_load_dwordx4 v[28:31], v%d, %s, %s offen sc1" % (vPL, WSR, s(sT)))
        lab = A.newlab("nx")
        A("s_cmp_eq_u32 %s, 0" % s(sXTRA))
        A("s_cbranch_scc1 %s" % lab)
        A("buffer_load_dwordx4 v[52:55], v%d, %s, %s offen sc1" % (vPL, WSR, s(sPXc)))
        A("buffer_load_dwordx4 v[56:59], v%d, %s, %s offen sc1" % (vPL, WSR, s(sT + 1)))
        A.label(lab)
    A("v_mov_b32 v46, 0x3f80")
    A("v_mov_b32 v47, 0x3f800000")
    A("v_lshrrev_b32 v51, 2, v%d" % vL16)
    A("v_cndmask_b32 v46, v46, v47, %s" % s(sODD, 2))
    for q in range(4): A("v_cndmask_b32 v%d, 0, v46, %s" % (36 + q, s(sMQ + 2 * q, 2)))
    A("s_nop 1")
    for q in range(4): A("v_mov_b32_dpp v%d, v%d row_shr:8 row_mask:0xf bank_mask:0xf bound_ctrl:1" % (60 + q, 36 + q))
    for i in range(DELAY_P): A("s_nop 7")
    issueP()
    A("s_mov_b32 %s, %d" % (s(sSpin), SPIN_MAX))
    pl = A.newlab("p_poll"); pok = A.newlab("p_ok")
    A.label(pl)
    vm.waitall()
    A("v_max3_u32 v40, v24, v25, v26")
    A("v_max3_u32 v41, v27, v28, v29")
    A("v_max3_u32 v40, v40, v30, v31")
    xc = A.newlab("xchk")
    A("s_cmp_eq_u32 %s, 0" % s(sXTRA))
    A("s_cbranch_scc1 %s" % xc)
    A("v_max3_u32 v42, v52, v53, v54")
    A("v_max3_u32 v43, v55, v56, v57")
    A("v_max3_u32 v41, v41, v58, v59")
    A("v_max3_u32 v41, v41, v42, v43")
    A.label(xc)
    A("v_max_u32 v40, v40, v41")
    A("v_cmp_eq_u32 vcc, -1, v40")
    if "nosync" in exp: A("s_branch %s" % pok)
    A("s_cbranch_vccz %s" % pok)
    A.c("lint-skip-begin")
    issueP()
    if prof: A("s_add_u32 %s, %s, 1" % (s(sPROF + 8), s(sPROF + 8)))
    A("s_sub_u32 %s, %s, 1" % (s(sSpin), s(sSpin)))
    A("s_cmp_lg_u32 %s, 0" % s(sSpin))
    A("s_cbranch_scc1 %s" % pl)
    A("s_branch %s" % fail)
    A.c("lint-skip-end")
    A.label(pok)
    if kvchk:
        kc = A.newlab("kvc"); kl = A.newlab("kvl")
        A("s_and_b32 %s, %s, 7" % (s(sT + 6), s(sS))); A("s_cmp_eq_u32 %s, 5" % s(sT + 6)); A("s_cbranch_scc0 %s" % kc)
        A("s_cmp_ge_u32 %s, 56" % s(sS)); A("s_cbranch_scc1 %s" % kc)
        A.c("lint-skip-begin")
        A("s_lshr_b32 %s, %s, 3" % (s(sT + 6), s(sS))); A("s_lshl_b32 %s, %s, 2" % (s(sT + 6), s(sT + 6))); A("s_add_u32 %s, %s, %d" % (s(sT + 6), s(sT + 6), D_KV + 4))
        A("s_mov_b32 %s, %d" % (s(sSpin), SPIN_MAX))
        A.label(kl)
        A("v_cmp_gt_u32 vcc, %d, v%d" % (KVN, vDum)); A("s_cbranch_vccz %s" % kc)
        A("s_sleep 4")
        A("buffer_load_dword v%d, off, %s, %s sc1" % (vDum, s(sDBG, 4), s(sT + 6))); A("s_waitcnt vmcnt(0)")
        A("s_sub_u32 %s, %s, 1" % (s(sSpin), s(sSpin))); A("s_cmp_lg_u32 %s, 0" % s(sSpin)); A("s_cbranch_scc1 %s" % kl)
        A("s_branch %s" % fail)
        A.c("lint-skip-end")
        A.label(kc)
    stamp(4)
    A.c("SEC red")
    A("v_mfma_f32_16x16x32_bf16 v[40:43], v[36:39], v[24:27], 0")
    A("v_mfma_f32_16x16x32_bf16 v[40:43], v[36:39], v[28:31], v[40:43]")
    xl = A.newlab("xtra")
    A("s_cmp_eq_u32 %s, 0" % s(sXTRA))
    A("s_cbranch_scc1 %s" % xl)
    A("v_mfma_f32_16x16x32_bf16 v[40:43], v[60:63], v[52:55], v[40:43]")
    A("v_mfma_f32_16x16x32_bf16 v[40:43], v[60:63], v[56:59], v[40:43]")
    A.label(xl)
    A("s_add_u32 %s, %s, %s" % (s(sT), s(sMc), s(sMW1)))
    A("s_add_u32 %s, %s, 4096" % (s(sT + 2), s(sT)))
    A("s_add_u32 %s, %s, %s" % (s(sT + 1), s(sMc), s(sM3)))
    A("s_add_u32 %s, %s, 1" % (s(sS), s(sS)))
    if "nokv" not in exp:
        A("s_add_u32 %s, %s, 0x%x" % (s(sKoff), s(sKoff), 32 * 8192))
        A("s_add_u32 %s, %s, 0x%x" % (s(sVoff), s(sVoff), 32 * 8192))
    A("s_add_u32 %s, %s, 0x%x" % (s(sKM), s(sKM), 32 * 4096))
    A("s_add_u32 %s, %s, 0x%x" % (s(sVM), s(sVM), 32 * 2048))
    if "nokv" in exp: A("s_nop 1")
    for r in range(4): A("v_add_f32_dpp v%d, v%d, v%d row_shl:4 row_mask:0xf bank_mask:0xf" % (44 + r, 40 + r, 40 + r))
    for r in range(4): A("v_add_f32_dpp v%d, v%d, v%d row_shl:8 row_mask:0xf bank_mask:0xf" % (44 + r, 44 + r, 44 + r))
    A("v_cvt_pk_bf16_f32 v44, v44, v45")
    A("v_cvt_pk_bf16_f32 v45, v46, v47")
    A("buffer_store_dword v44, v%d, %s, %s offen%s" % (vMst, WSR, s(sMc), st))
    A("buffer_store_dword v45, v%d, %s, %s offen%s" % (vMx, WSR, s(sMc), st))
    stamp(5)
    A.c("SEC mp")
    def issueM():
        A("buffer_load_dwordx4 v[32:35], v%d, %s, %s offen sc1" % (vL16, WSR, s(sT)))
        A("buffer_load_dwordx4 v[36:39], v%d, %s, %s offen sc1" % (vL16, WSR, s(sT + 2)))
        A("buffer_load_dword v40, v51, %s, %s offen sc1" % (WSR, s(sT + 1)))
    zero_regs(A, 44, 6)
    zero_regs(A, 52, 8)
    for i in range(DELAY_M): A("s_nop 7")
    issueM()
    A("s_mov_b32 %s, %d" % (s(sSpin), SPIN_MAX))
    ml = A.newlab("m_poll"); mok = A.newlab("m_ok")
    A.label(ml)
    A("s_waitcnt vmcnt(0)")
    A("v_max3_u32 v68, v32, v33, v34")
    A("v_max3_u32 v69, v35, v36, v37")
    A("v_max3_u32 v70, v38, v39, v40")
    A("v_max3_u32 v68, v68, v69, v70")
    A("v_cmp_eq_u32 vcc, -1, v68")
    if "nosync" in exp: A("s_branch %s" % mok)
    A("s_cbranch_vccz %s" % mok)
    A.c("lint-skip-begin")
    issueM()
    if prof: A("s_add_u32 %s, %s, 1" % (s(sPROF + 9), s(sPROF + 9)))
    A("s_sub_u32 %s, %s, 1" % (s(sSpin), s(sSpin)))
    A("s_cmp_lg_u32 %s, 0" % s(sSpin))
    A("s_cbranch_scc1 %s" % ml)
    A("s_branch %s" % fail)
    A.c("lint-skip-end")
    A.label(mok)
    stamp(6)
    vm.q = []
    A.c("SEC stage")
    if "steptrace" in exp:
        A.c("lint-skip-begin")
        A("s_memrealtime s[98:99]"); A("s_waitcnt lgkmcnt(0)")
        A("s_lshl_b32 s99, %s, 2" % s(sH)); A("s_add_u32 s99, s99, %s" % s(sWV)); A("s_lshl_b32 s99, s99, 6"); A("s_add_u32 s99, s99, %s" % s(sS))
        A("s_lshl_b32 s99, s99, 2"); A("s_add_u32 s99, s99, 0x%x" % 0xEA00000)
        A("v_mov_b32 v68, s98"); A("buffer_store_dword v68, off, %s, s99" % WSR)
        A.c("lint-skip-end")
    A("s_lshl_b32 m0, %s, 10" % s(sWV))
    A("s_nop 0")
    for j in range(4): A("ds_write_addtid_b32 v%d offset:%d" % (32 + j, L_M + 256 * j))
    for j in range(4): A("ds_write_addtid_b32 v%d offset:%d" % (36 + j, L_M + 4096 + 256 * j))
    A("s_lshl_b32 m0, %s, 8" % s(sWV))
    A("s_nop 0")
    A("ds_write_addtid_b32 v40 offset:%d" % (L_M + 8192))
    loadKV()
    zero_regs(A, 50, 2)
    for a_, b_ in ((sPRc, sPRo), (sPWc, sPWo), (sP9c, sP9o), (sMc, sMo), (sPXc, sPXo)):
        A("s_mov_b32 %s, %s" % (s(sT), s(a_))); A("s_mov_b32 %s, %s" % (s(a_), s(b_))); A("s_mov_b32 %s, %s" % (s(b_), s(sT)))
    A("s_waitcnt lgkmcnt(0)")
    A("s_barrier")
    stamp(7)
    A("s_branch %s" % top)
    m1 = A.mark()
    A.label(done)
    A("s_waitcnt vmcnt(0) lgkmcnt(0)")
    if pubflag:
        A("v_mov_b32 v48, %d" % nsteps)
        A("buffer_store_dword v48, off, %s, %s sc1" % (WSR, s(sFKM)))
    return (m0, m1)

PROFBUF = 0x3E00000
def build_rec_test(prof=False, fast=True, nsteps=64, dump=None, exp=()):
    A = Asm()
    name = "rec_kernel"
    kstart(A, name)
    fail = "L_fail"; end = "L_end"
    A("s_cmp_ge_u32 s2, 256")
    A("s_cbranch_scc1 %s" % end)
    load_srd(A, sDBG, "dbg"); load_srd(A, sWS, "ws")
    A("v_lshrrev_b32 v1, 6, v0")
    A("s_nop 0")
    A("v_readfirstlane_b32 %s, v1" % s(sWV))
    emit_election(A, sDBG, sVX, sVT, sFAST, sBYTE, sT, fail)
    A("s_cmp_eq_u32 %s, 0" % s(sVX))
    A("s_cbranch_scc0 %s" % end)
    A("s_mov_b32 %s, %s" % (s(sH), s(sVT)))
    A("s_memrealtime s[96:97]")
    emit_rec_prologue(A, fail)
    emit_rec_consts(A)
    emit_rec_mem0(A)
    A("s_memrealtime s[98:99]")
    A("s_waitcnt lgkmcnt(0)")
    mm = emit_rec_loop(A, fail, fast=fast, prof=prof, nsteps=nsteps, dump=dump, exp=exp)
    A("s_memrealtime s[100:101]")
    A("s_waitcnt lgkmcnt(0)")
    A("s_sub_u32 %s, s98, s96" % s(sPROF + 10))
    A("s_sub_u32 %s, s100, s98" % s(sPROF + 11))
    for i in range(12): A("v_mov_b32 v%d, %s" % (16 + i, s(sPROF + i)))
    A("s_lshl_b32 %s, %s, 2" % (s(sT), s(sH)))
    A("s_add_u32 %s, %s, %s" % (s(sT), s(sT), s(sWV)))
    A("s_lshl_b32 %s, %s, 6" % (s(sT), s(sT)))
    A("s_add_u32 %s, %s, 0x%x" % (s(sT), s(sT), PROFBUF))
    A("v_mov_b32 v1, 0")
    A("s_mov_b64 exec, 1")
    for i in range(3): A("buffer_store_dwordx4 %s, v1, %s, %s offen offset:%d" % (v(16 + 4 * i, 4), s(sWS, 4), s(sT), 16 * i))
    A("s_endpgm")
    A.label(fail)
    A("v_mov_b32 v1, 0xf0")
    A("v_mov_b32 v2, 0xdead")
    A("s_mov_b64 exec, 1")
    A("buffer_store_dword v2, v1, %s, 0 offen sc1" % s(sDBG, 4))
    A.label(end)
    A("s_endpgm")
    body = A.lines[mm[0]:mm[1]]
    probs = lint(A.lines, "rec-linear", verbose=True) + lint(body + body, "rec-loop2", verbose=True)
    txt = HDR + A.text() + '.section .rodata,"a"\n' + kdesc(name)
    return txt, name, probs

if __name__ == "__main__":
    import sys
    from hiprun import add_metadata, assemble
    txt, name, probs = build_rec_test(prof=True)
    open("rec.s", "w").write(add_metadata(txt, [(name, 256)], 120))
    assemble("rec.s", "rec.co")
    print("assembled, lines:", txt.count("\n"))
```

```python
S_LEN = 2048; D = 576; H = 32; DH = 128; M = 8; SEG = 32; NSEG = 64; F = 4608
WS_BYTES = 0x10000000
KOP  = 0x0000000
VOP  = 0x1000000
QOP  = 0x2000000
KMEM = 0x3000000
VMEM = 0x3800000
PBUF = 0x3C00000
MBUF = 0x3D00000
PSTR = 9216 + 128
PSLOT = 32 * PSTR

def m_a(g): return 2 * g

def mchunk_d(t, lane, jA):
    i = lane & 15
    m = 2 * (i >> 2) + (i & 1); hi = (i >> 1) & 1; gA = lane >> 4
    if t < 8:
        d = 144 * (t >> 1) + 8 * (t & 1) + 2 * gA + hi + 16 * jA
    else:
        d = 144 * gA + 128 + 8 * hi + jA
    return m, d

ROW = 1152
PROW = 1664
P12  = 0x4000000
P67  = 0x8800000
TB   = 0xD900000
HNB  = 0xDC00000
HB   = 0xDF00000
GSB  = 0xE200000
X1B  = 0xE500000
STB  = 0xE800000
FLG  = 0xE900000
F_KM  = FLG + 0x2000
F_R12 = FLG + 0x400
F_R3  = FLG + 0x1800
F_R4  = FLG + 0x800
F_R5  = FLG + 0xA00
F_R67 = FLG + 0xC00
F_R8  = FLG + 0x1000
RING67 = 16
RING = 8
def sigma_pos(col):
    T = col >> 4; g = (col >> 2) & 3; r = col & 3
    return (T >> 1) * 32 + g * 8 + (T & 1) * 4 + r
```

```python
from gen_common import *
import gen_rec as gr, gen_g as gg, gen_pipe as gp

NAME = "sequential_preLN__memory_aug_recurrent_mem_tr__mixer_s_mlp__prompt_kernel"
sRANK = 23
B_INIT, B_KV, B_Q = 0x40, 0x20, 0x10

def set_byte(A, sDBG, sBYTE, bit, sWV, tv):
    A("s_waitcnt vmcnt(0)"); A("s_barrier")
    A("s_or_b32 %s, %s, 0x%x" % (s(sBYTE), s(sBYTE), bit))
    sk = A.newlab("sb")
    A("s_cmp_eq_u32 %s, 0" % s(sWV)); A("s_cbranch_scc0 %s" % sk)
    A("v_mov_b32 v%d, s2" % tv); A("v_mov_b32 v%d, %s" % (tv + 1, s(sBYTE)))
    A("s_mov_b64 exec, 1")
    A("buffer_store_byte v%d, v%d, %s, 0 offen sc1" % (tv + 1, tv, s(sDBG, 4)))
    A("s_mov_b64 exec, -1")
    A.label(sk)

def wait_bytes(A, sDBG, bits_all, bits_workers, fail, tv, st, fastreg, vxself=None):
    lp = A.newlab("wb"); ok = A.newlab("wb_ok")
    A("v_mbcnt_lo_u32_b32 v%d, -1, 0" % tv); A("v_mbcnt_hi_u32_b32 v%d, -1, v%d" % (tv, tv))
    A("v_lshlrev_b32 v%d, 2, v%d" % (tv + 1, tv))
    A("s_mov_b32 %s, %d" % (s(st), SPIN_MAX))
    A.label(lp)
    A("buffer_load_dword v%d, v%d, %s, 0 offen sc1" % (tv + 2, tv + 1, s(sDBG, 4)))
    A("s_waitcnt vmcnt(0)")
    A("v_mov_b32 v%d, 0" % (tv + 3))
    for b in range(4):
        A("v_bfe_u32 v%d, v%d, %d, 8" % (tv + 4, tv + 2, 8 * b))
        A("v_and_b32 v%d, 15, v%d" % (tv + 5, tv + 4))
        A("v_cmp_ne_u32 vcc, 0, v%d" % (tv + 5))
        A("v_cmp_le_u32 %s, 8, v%d" % (s(st + 2, 2), tv))
        A("s_cmp_eq_u32 %s, 1" % s(fastreg))
        A("s_cselect_b64 vcc, vcc, %s" % s(st + 2, 2))
        A("v_mov_b32 v%d, %d" % (tv + 5, bits_all)); A("v_mov_b32 v%d, %d" % (tv + 6, bits_all | bits_workers))
        A("v_cndmask_b32 v%d, v%d, v%d, vcc" % (tv + 5, tv + 5, tv + 6))
        A("v_and_b32 v%d, v%d, v%d" % (tv + 4, tv + 4, tv + 5)); A("v_xor_b32 v%d, v%d, v%d" % (tv + 4, tv + 4, tv + 5))
        A("v_or_b32 v%d, v%d, v%d" % (tv + 3, tv + 3, tv + 4))
    A("v_cmp_ne_u32 vcc, 0, v%d" % (tv + 3))
    A("s_cbranch_vccz %s" % ok)
    A("s_sleep 4")
    A("s_sub_u32 %s, %s, 1" % (s(st), s(st))); A("s_cmp_lg_u32 %s, 0" % s(st)); A("s_cbranch_scc1 %s" % lp)
    A("s_branch %s" % fail)
    A.label(ok)

def build(force_slow=False, timing=False, opts=()):
    gr.DELAY_P, gr.DELAY_M = 7, 4
    if not timing: gr.PFT = 3
    if not timing: gp.SLEEP = 8
    A = Asm(); kstart(A, NAME)
    fail, end = "L_fail", "L_end"
    sDBG, sWS, sWV, sFAST, sVX, sVT, sBYTE, sT = 12, 4, 17, 19, 20, 21, 22, 24
    A("s_cmp_ge_u32 s2, 256"); A("s_cbranch_scc1 %s" % end)
    if timing: A("s_memrealtime s[100:101]")
    load_srd(A, sDBG, "dbg"); load_srd(A, sWS, "ws")
    A("v_lshrrev_b32 v1, 6, v0"); A("s_nop 0"); A("v_readfirstlane_b32 %s, v1" % s(sWV)); A("s_nop 1")
    def estamp(slot):
        if "gtrace" not in opts: return
        lab = A.newlab("es")
        A("s_nop 1")
        A("s_cmp_eq_u32 %s, 0" % s(sWV)); A("s_cbranch_scc0 %s" % lab)
        A.c("lint-skip-begin")
        A("s_memrealtime s[98:99]"); A("s_waitcnt lgkmcnt(0)"); A("s_sub_u32 s98, s98, s100")
        A("s_lshl_b32 s99, s2, 7"); A("s_add_u32 s99, s99, 0x%x" % (FLG + 0x10000 + 4 * slot))
        A("v_mov_b32 v56, s98"); A("buffer_store_dword v56, off, %s, s99" % s(sWS, 4))
        A.c("lint-skip-end")
        A.label(lab)
    estamp(20)
    emit_election2(A, sDBG, sVX, sVT, sWV, sT, fail)
    if force_slow:
        A("s_lshr_b32 %s, s2, 5" % s(sVX)); A("s_and_b32 %s, s2, 31" % s(sVT))
    estamp(21)
    worker = "L_worker"
    A("s_cmp_eq_u32 %s, 0" % s(sVX)); A("s_cbranch_scc0 %s" % worker)
    A.c("################ recurrence group")
    A("s_mov_b32 %s, %s" % (s(gr.sH), s(sVT)))
    A("v_mov_b32 v2, -1"); A("v_mov_b32 v3, -1"); A("v_mov_b32 v4, -1"); A("v_mov_b32 v5, -1")
    A("v_lshlrev_b32 v1, 4, v0")
    A("s_mul_i32 %s, %s, %d" % (s(sT), s(gr.sH), PSTR)); A("s_add_u32 %s, %s, 0x%x" % (s(sT), s(sT), PBUF))
    for slot in range(2):
        for part in range(2):
            A("s_add_u32 %s, %s, %d" % (s(sT + 1), s(sT), slot * PSLOT + part * 4096))
            A("buffer_store_dwordx4 v[2:5], v1, %s, %s offen sc1" % (s(sWS, 4), s(sT + 1)))
        A("s_add_u32 %s, %s, %d" % (s(sT + 1), s(sT), slot * PSLOT + 8192))
        A("v_cmp_gt_u32 vcc, 1024, v1"); A("v_mov_b32 v6, 0x40000000"); A("s_nop 0"); A("v_cndmask_b32 v7, v6, v1, vcc")
        A("buffer_store_dwordx4 v[2:5], v7, %s, %s offen sc1" % (s(sWS, 4), s(sT + 1)))
    A("s_mul_i32 %s, %s, 576" % (s(sT), s(gr.sH))); A("s_add_u32 %s, %s, 0x%x" % (s(sT), s(sT), MBUF))
    A("v_cmp_gt_u32 vcc, 576, v1"); A("v_mov_b32 v6, 0x40000000"); A("s_nop 0"); A("v_cndmask_b32 v7, v6, v1, vcc")
    A("buffer_store_dwordx4 v[2:5], v7, %s, %s offen sc1" % (s(sWS, 4), s(sT)))
    arrive(A, sDBG, D_INIT, sWV, 8)
    estamp(22)
    gr.emit_rec_prologue(A, fail)
    estamp(23)
    gr.emit_rec_consts(A)
    gr.emit_rec_mem0(A)
    wait_counter(A, sDBG, D_INIT, 33, fail, 16, sT)
    A("v_mov_b32 v16, 0"); A("buffer_load_dword v17, v16, %s, 0 offen sc1" % s(sDBG, 4)); A("s_waitcnt vmcnt(0)")
    A("v_readfirstlane_b32 %s, v17" % s(sT)); A("s_nop 0"); A("s_cmp_ge_u32 %s, 32" % s(sT)); A("s_cselect_b32 %s, 1, 0" % s(sFAST))
    if force_slow: A("s_mov_b32 %s, 0" % s(sFAST))
    wait_counter(A, sDBG, D_KV, 64, fail, 16, sT)
    if timing: A("s_memrealtime s[96:97]"); A("s_memtime s[94:95]"); A("s_waitcnt lgkmcnt(0)"); A("s_mov_b32 s97, s94")
    slow = A.newlab("rec_slow"); rdone = A.newlab("rec_alldone")
    A("s_cmp_eq_u32 %s, 1" % s(sFAST)); A("s_cbranch_scc0 %s" % slow)
    mf = gr.emit_rec_loop(A, fail, fast=True, pubflag=True, exp=opts, kvchk=True, prof=("recprof" in opts))
    if "recprof" in opts:
        for i in range(12): A("v_mov_b32 v%d, %s" % (16 + i, s(gr.sPROF + i)))
        A("s_lshl_b32 s24, %s, 2" % s(gr.sH)); A("s_add_u32 s24, s24, %s" % s(sWV)); A("s_lshl_b32 s24, s24, 6"); A("s_add_u32 s24, s24, 0x%x" % gr.PROFBUF)
        A("v_mov_b32 v1, 0"); A("s_mov_b64 exec, 1")
        for i in range(3): A("buffer_store_dwordx4 %s, v1, %s, s24 offen offset:%d" % (v(16 + 4 * i, 4), s(sWS, 4), 16 * i))
        A("s_mov_b64 exec, -1")
    A("s_branch %s" % rdone)
    A.label(slow)
    ms = gr.emit_rec_loop(A, fail, fast=False, pubflag=True, kvchk=True)
    A.label(rdone)
    def tstamp(slot, wv=0):
        if not timing: return
        A("s_memrealtime s[98:99]"); A("s_waitcnt lgkmcnt(0)")
        A("s_sub_u32 s98, s98, s100"); A("s_sub_u32 s96, s96, s100")
        A("v_mov_b32 v16, s96"); A("v_mov_b32 v17, s98")
        A("s_lshl_b32 s24, s2, 4"); A("s_add_u32 s24, s24, 0x%x" % (FLG + 0x9000))
        A("v_mov_b32 v18, %s" % s(sRANK if slot else sVT)); A("v_mov_b32 v19, %d" % (slot + 1))
        A("s_cmp_eq_u32 %s, %d" % (s(sWV), wv)); lab = A.newlab("ts"); A("s_cbranch_scc0 %s" % lab)
        A("v_mov_b32 v1, 0"); A("s_mov_b64 exec, 1"); A("buffer_store_dwordx4 v[16:19], v1, %s, s24 offen" % s(sWS, 4))
        A.label(lab)
    if timing:
        A("s_memtime s[94:95]"); A("s_waitcnt lgkmcnt(0)"); A("s_sub_u32 %s, s94, s97" % s(sVT))
    tstamp(0)
    A("s_endpgm")
    A.label(worker)
    A.c("################ workers")
    A("s_sub_u32 %s, %s, 1" % (s(sRANK), s(sVX))); A("s_lshl_b32 %s, %s, 5" % (s(sRANK), s(sRANK))); A("s_add_u32 %s, %s, %s" % (s(sRANK), s(sRANK), s(sVT)))
    sk = A.newlab("noclr")
    A("s_cmp_eq_u32 %s, 0" % s(sRANK)); A("s_cbranch_scc0 %s" % sk)
    A("v_lshlrev_b32 v1, 4, v0"); A("v_mov_b64 v[2:3], 0"); A("v_mov_b64 v[4:5], 0"); A("s_mov_b32 %s, 0x%x" % (s(sT), FLG))
    A("buffer_store_dwordx4 v[2:5], v1, %s, %s offen sc1" % (s(sWS, 4), s(sT)))
    for k in range(2):
        A("s_add_u32 %s, %s, 4096" % (s(sT), s(sT)))
        A("buffer_store_dwordx4 v[2:5], v1, %s, %s offen sc1" % (s(sWS, 4), s(sT)))
    arrive(A, sDBG, D_INIT, sWV, 8)
    A.label(sk)
    estamp(22)
    nog = "L_nog"
    lo = A.newlab("g_lo"); gs = A.newlab("g_set")
    A("s_cmp_lt_u32 %s, 3" % s(sVX)); A("s_cbranch_scc1 %s" % lo)
    A("s_cmp_ge_u32 %s, 28" % s(sVT)); A("s_cbranch_scc1 %s" % nog)
    A("s_mul_i32 %s, %s, 37" % (s(sT), s(sVT))); A("s_lshr_b32 %s, %s, 8" % (s(sT), s(sT)))
    A("s_mul_i32 %s, %s, 7" % (s(sT + 1), s(sT))); A("s_sub_u32 %s, %s, %s" % (s(sT + 1), s(sVT), s(sT + 1)))
    A("s_add_u32 %s, %s, 1" % (s(gg.gTG), s(sT + 1)))
    A("s_sub_u32 %s, %s, 3" % (s(gg.gCG), s(sVX))); A("s_lshl_b32 %s, %s, 2" % (s(gg.gCG), s(gg.gCG))); A("s_add_u32 %s, %s, %s" % (s(gg.gCG), s(gg.gCG), s(sT)))
    A("s_mov_b32 %s, 20" % s(gg.gSTR)); A("s_mov_b32 %s, 6" % s(gg.gKVR))
    A("s_branch %s" % gs)
    A.label(lo)
    A("s_mov_b32 %s, 0" % s(gg.gTG)); A("s_mov_b32 %s, %s" % (s(gg.gCG), s(sRANK)))
    A("s_mov_b32 %s, 64" % s(gg.gSTR)); A("s_mov_b32 %s, 1" % s(gg.gKVR))
    A.label(gs)
    sKVO, sQO = 47, 48
    A("s_lshl_b32 %s, %s, 2" % (s(sKVO), s(gg.gTG))); A("s_add_u32 %s, %s, %d" % (s(sQO), s(sKVO), D_Q)); A("s_add_u32 %s, %s, %d" % (s(sKVO), s(sKVO), D_KV))
    if "gtrace" in opts:
        def gtr(A_, what):
            lab = A_.newlab("gtr")
            A_("s_cmp_eq_u32 %s, 0" % s(sWV)); A_("s_cbranch_scc0 %s" % lab)
            A_.c("lint-skip-begin")
            A_("s_memrealtime s[98:99]"); A_("s_waitcnt lgkmcnt(0)"); A_("s_sub_u32 s98, s98, s100")
            if what == "ln": A_("s_mov_b32 s99, 0")
            else:
                A_("s_lshl_b32 s99, %s, 1" % s(gg.gI)); A_("s_add_u32 s99, s99, %d" % (1 if what == "ready" else 2))
            A_("s_lshl_b32 s99, s99, 2"); A_("s_lshl_b32 s97, s2, 7"); A_("s_add_u32 s99, s99, s97"); A_("s_add_u32 s99, s99, 0x%x" % (FLG + 0x10000))
            A_("v_mov_b32 v56, s98"); A_("buffer_store_dword v56, off, %s, s99" % s(sWS, 4))
            A_.c("lint-skip-end")
            A_.label(lab)
        gg.GTRACE = gtr
    else: gg.GTRACE = None
    def ln_hook(A_, first):
        gg.emit_g_ln(A_, first)
        if gg.GTRACE: gg.GTRACE(A_, "ln")
    marks = gg.emit_g_gemm(A, kvflag=lambda A_: arrive(A_, sDBG, s(sKVO), sWV, 8), ln=ln_hook)
    arrive(A, sDBG, s(sQO), sWV, 8)
    A.label(nog)
    if timing: A("s_memrealtime s[96:97]"); A("s_waitcnt lgkmcnt(0)")
    NR3, NR8 = 16, 36
    roles = [("r12", 64, gp.emit_r12), ("r3", NR3, lambda A_, f_, hook=None: gp.emit_r3i(A_, f_, ncu=NR3, hook=hook)), ("r4", 18, gp.emit_r4), ("r5", 18, gp.emit_r5), ("r67", 72, gp.emit_r67),
             ("r8", NR8, lambda A_, f_, hook=None: gp.emit_r8i(A_, f_, ncu=NR8, hook=hook))]
    A("s_mov_b32 %s, 0" % s(gp.pPEND))
    if "nopipe" in opts:
        tstamp(1); A("s_endpgm")
    base = 0; labs = []
    for nm, cnt, fn in roles:
        lab = "L_role_" + nm; labs.append(lab)
        A("s_cmp_lt_u32 %s, %d" % (s(sRANK), base + cnt)); A("s_cbranch_scc1 %s" % lab)
        base += cnt
    A("s_endpgm")
    base = 0; rmarks = []
    for (nm, cnt, fn), lab in zip(roles, labs):
        A.label(lab)
        A("s_sub_u32 %s, %s, %d" % (s(gp.pID), s(sRANK), base))
        hv = {"r12": 232, "r67": 212}.get(nm, 232)
        kw = {}
        if nm == "r12":
            def gwait(A_):
                A_("s_lshr_b32 %s, %s, 3" % (s(sT + 2), s(gp.pS))); A_("s_cmp_eq_u32 %s, 0" % s(sT + 2)); A_("s_cselect_b32 %s, 64, 20" % s(sT + 3))
                A_("s_lshl_b32 %s, %s, 2" % (s(sT + 2), s(sT + 2))); A_("s_add_u32 %s, %s, %d" % (s(sT + 4), s(sT + 2), D_KV)); A_("s_add_u32 %s, %s, %d" % (s(sT + 5), s(sT + 2), D_Q))
                A_.c("lint-skip-begin")
                wait_counter(A_, sDBG, s(sT + 4), s(sT + 3), fail, 8, sT + 6)
                wait_counter(A_, sDBG, s(sT + 5), s(sT + 3), fail, 8, sT + 6)
                A_.c("lint-skip-end")
            kw["gwait"] = gwait
        rmarks.append((nm, fn(A, fail, hook=lambda A_, hv=hv: wait_counter(A_, sDBG, D_INIT, 33, fail, hv, sT), **kw)))
        tstamp(1, 3 if nm in ("r3", "r8") else 0)
        A("s_endpgm")
        base += cnt
    A.label(fail)
    A("s_mov_b64 exec, 1"); A("v_mov_b32 v1, 0"); A("v_mov_b32 v2, 0xdead"); A("s_mov_b32 s24, 0x%x" % (FLG + 0xfff0))
    A("buffer_store_dword v2, v1, %s, s24 offen sc1" % s(sWS, 4))
    A.label(end)
    A("s_endpgm")
    probs = []
    for (m0, m1), nm in ((mf, "rec-fast"), (ms, "rec-slow")): probs += lint(A.lines[m0:m1] * 2, nm, verbose=False)
    for m0, m1 in marks: probs += lint(A.lines[m0:m1] * 2, "g-loop", verbose=False)
    for nm, (m0, m1) in rmarks: probs += lint(A.lines[m0:m1] * 2, nm, verbose=False)
    lin = lint(A.lines, "linear", verbose=False)
    probs += [p for p in lin if "HAZARD" in p]
    for p in probs[:20]: print(p)
    hdr = open("cdna_kernels/%s.s.ref" % NAME[:-7]).read().split("; Override launch geometry")[0]
    hdr += "; @launch grid=(256,1,1) block=(256,1,1) lds=163840\n"
    txt = hdr + HDR + A.text() + '.section .rodata,"a"\n' + kdesc(NAME)
    return txt, probs

if __name__ == "__main__":
    import sys
    txt, probs = build(force_slow="slow" in sys.argv, timing="timing" in sys.argv)
    out = "cdna_kernels/%s.s" % NAME[:-7] if "final" in sys.argv else "mega.s"
    open(out, "w").write(txt)
    print("problems:", len(probs), "bytes:", len(txt), "->", out)
    import subprocess
    r = subprocess.run(["clang", "-x", "assembler", "-target", "amdgcn-amd-amdhsa", "-mcpu=gfx950", "-c", out, "-o", "mega_check.o"], capture_output=True, text=True)
    print("assemble:", "OK" if r.returncode == 0 else r.stderr[:1500])
```

```python
from gen_common import *
import struct
def f2u(x): return struct.unpack("<I", struct.pack("<f", x))[0]
pWS, pW, pDBG = 4, 8, 12
pID, pWV, pS, pFAST = 16, 17, 18, 19
pT = 24
pSPIN = 40
pFOFF = 41
pPEND = 42
SCALE_LOG2E = 0.08838834764831845 * 1.4426950408889634

SLEEP = 1
WARM = 0
TRACE = False
TRV = [250]
TRBUF = FLG + 0x4000
TR2 = FLG + 0x20000
def trace(A, idx, seg_last=62):
    if not TRACE: return
    lab = A.newlab("tr")
    if TRACE != "full":
        A("s_cmp_ge_u32 %s, %d" % (s(pS), seg_last)); A("s_cbranch_scc0 %s" % lab)
    A("s_cmp_eq_u32 %s, 0" % s(pWV)); A("s_cbranch_scc0 %s" % lab)
    A.c("lint-skip-begin")
    A("s_memrealtime s[98:99]"); A("s_waitcnt lgkmcnt(0)")
    A("s_sub_u32 s98, s98, s100")
    if TRACE == "full":
        A("s_lshl_b32 s99, s2, 6"); A("s_and_b32 s97, %s, 63" % s(pS)); A("s_add_u32 s99, s99, s97"); A("s_lshl_b32 s99, s99, 5"); A("s_add_u32 s99, s99, 0x%x" % (TR2 + 4 * idx))
    else:
        A("s_lshl_b32 s99, s2, 6"); A("s_add_u32 s99, s99, 0x%x" % (TRBUF + 4 * idx))
    A("v_mov_b32 v%d, s98" % TRV[0])
    A("buffer_store_dword v%d, off, %s, s99" % (TRV[0], s(pWS, 4)))
    A.c("lint-skip-end")
    A.label(lab)

def wait_flags(A, voff, soff_expr, target, fail, tmpv, sleep=None, sc="sc1", pend_sc=None, solo=None):
    if sleep is None: sleep = SLEEP
    if solo is None: solo = pend_sc is not None
    lp = A.newlab("wf"); ok = A.newlab("wf_ok"); rel = A.newlab("wf_rel")
    A("s_mov_b32 %s, %d" % (s(pSPIN), SPIN_MAX))
    first = A.newlab("wf_first")
    if solo:
        A("s_cmp_eq_u32 %s, 0" % s(pWV)); A("s_cbranch_scc0 %s" % first)
    A("buffer_load_dword v%d, v%d, %s, %s offen %s" % (tmpv, voff, s(pWS, 4), soff_expr, sc))
    A.label(first)
    A("s_waitcnt vmcnt(0)")
    if pend_sc is not None:
        sk = A.newlab("pend")
        A("s_cmp_eq_u32 %s, 0" % s(pPEND)); A("s_cbranch_scc1 %s" % sk)
        A("s_barrier")
        sk2 = A.newlab("pend2")
        A("s_cmp_eq_u32 %s, 0" % s(pWV)); A("s_cbranch_scc0 %s" % sk2)
        A("v_mov_b32 v%d, %s" % (tmpv + 1, s(pPEND)))
        A("buffer_store_dword v%d, off, %s, %s %s" % (tmpv + 1, s(pWS, 4), s(pFOFF), pend_sc))
        A.label(sk2)
        A("s_mov_b32 %s, 0" % s(pPEND))
        A.label(sk)
    if solo:
        A("s_cmp_eq_u32 %s, 0" % s(pWV)); A("s_cbranch_scc0 %s" % rel)
    A("v_cmp_gt_u32 vcc, %s, v%d" % (target, tmpv))
    A("s_cbranch_vccz %s" % ok)
    A.c("lint-skip-begin")
    A.label(lp)
    if sleep: A("s_sleep %d" % sleep)
    A("buffer_load_dword v%d, v%d, %s, %s offen %s" % (tmpv, voff, s(pWS, 4), soff_expr, sc))
    A("s_waitcnt vmcnt(0)")
    A("v_cmp_gt_u32 vcc, %s, v%d" % (target, tmpv))
    A("s_cbranch_vccz %s" % ok)
    A("s_sub_u32 %s, %s, 1" % (s(pSPIN), s(pSPIN)))
    A("s_cmp_lg_u32 %s, 0" % s(pSPIN))
    A("s_cbranch_scc1 %s" % lp)
    A("s_endpgm") if False else A("s_branch %s" % fail)
    A.c("lint-skip-end")
    A.label(ok)
    if solo:
        A.label(rel)
        A("s_barrier")

def set_flag(A, soff, valreg, tmpv, sc="sc1", barrier=True):
    A("s_waitcnt vmcnt(0)")
    if barrier: A("s_barrier")
    sk = A.newlab("sf")
    if barrier:
        A("s_cmp_eq_u32 %s, 0" % s(pWV)); A("s_cbranch_scc0 %s" % sk)
    A("v_mov_b32 v%d, %s" % (tmpv, valreg))
    A("v_mov_b32 v%d, 0" % (tmpv + 1))
    A("s_mov_b64 exec, 1")
    A("buffer_store_dword v%d, v%d, %s, %s offen %s" % (tmpv, tmpv + 1, s(pWS, 4), soff, sc))
    A("s_mov_b64 exec, -1")
    A.label(sk)
    trace(A, 3, 0)

def dma_linear(A, srd, sbase, nbytes, lds_base, vL16):
    n = nbytes // 4096
    A("s_lshl_b32 %s, %s, 10" % (s(pT + 9), s(pWV)))
    for i in range(n):
        A("s_add_u32 m0, %s, %d" % (s(pT + 9), lds_base + i * 4096))
        A("s_add_u32 %s, %s, %s" % (s(pT + 8), s(sbase), s(pT + 9)))
        if i: A("s_add_u32 %s, %s, %d" % (s(pT + 8), s(pT + 8), i * 4096))
        else: A("s_nop 0")
        A("buffer_load_dwordx4 v%d, %s, %s offen lds" % (vL16, s(srd, 4), s(pT + 8)))
        if i % 48 == 47: A("s_waitcnt vmcnt(16)")

def load_k128_weights(A, vtmp, WREG, rowbytes, lds_base, colbyte_sreg):
    A("v_and_b32 v%d, 63, v0" % vtmp)
    A("v_lshrrev_b32 v%d, 4, v%d" % (vtmp + 1, vtmp))
    A("v_bfe_u32 v%d, v%d, 2, 2" % (vtmp + 2, vtmp))
    A("v_lshl_add_u32 v%d, v%d, 2, v%d" % (vtmp + 1, vtmp + 1, vtmp + 2))
    A("v_mul_u32_u24 v%d, %d, v%d" % (vtmp + 1, rowbytes, vtmp + 1))
    A("v_and_b32 v%d, 3, v%d" % (vtmp + 2, vtmp))
    A("v_lshl_add_u32 v%d, v%d, 3, v%d" % (vtmp + 1, vtmp + 2, vtmp + 1))
    A("v_add_u32 v%d, %s, v%d" % (vtmp + 1, colbyte_sreg, vtmp + 1))
    cnt = 0
    for ks in range(4):
        for u in range(2):
            A("v_add_u32 v%d, %d, v%d" % (vtmp + 3, lds_base + (32 * ks + 16 * u) * rowbytes, vtmp + 1))
            for i in range(9):
                sp = WREG(i, ks)
                A("ds_read_b64_tr_b16 %s, v%d offset:%d" % (R((sp[0], sp[1] + 2 * u), 2), vtmp + 3, i * 32))
                cnt += 1
                if cnt % 12 == 0: A("s_waitcnt lgkmcnt(0)")
    A("s_waitcnt lgkmcnt(0)")

def k128_gemm(A, WREG, OB, ACC, lg_wait=None):
    for ks in range(4):
        if lg_wait: lg_wait(ks)
        for i in range(9):
            for tt in range(2):
                c = "0" if ks == 0 else v(ACC(i, tt), 4)
                A("v_mfma_f32_16x16x32_bf16 %s, %s, %s, %s" % (v(ACC(i, tt), 4), R(WREG(i, ks), 4), v(OB(tt, ks), 4), c))

def pstore_consts(A, vTokA, vTok9, vBP, vBP9, rowstride, tmp):
    A("v_and_b32 v%d, 63, v0" % tmp)
    A("v_lshrrev_b32 v%d, 3, v%d" % (tmp + 1, tmp)); A("v_and_b32 v%d, 7, v%d" % (tmp + 2, tmp))
    A("v_and_b32 v%d, 3, v%d" % (tmp + 3, tmp + 2)); A("v_lshlrev_b32 v%d, 4, v%d" % (tmp + 3, tmp + 3))
    A("v_lshrrev_b32 v%d, 2, v%d" % (tmp + 4, tmp + 2)); A("v_lshl_add_u32 v%d, v%d, 3, v%d" % (tmp + 3, tmp + 4, tmp + 3))
    A("v_add_u32 v%d, v%d, v%d" % (tmp + 3, tmp + 3, tmp + 1)); A("v_lshlrev_b32 v%d, 2, v%d" % (vBP, tmp + 3))
    A("s_mov_b32 %s, %d" % (s(pT + 8), rowstride)); A("v_mul_lo_u32 v%d, v%d, %s" % (vTokA, tmp + 1, s(pT + 8))); A("v_lshl_add_u32 v%d, v%d, 4, v%d" % (vTokA, tmp + 2, vTokA))
    A("v_lshrrev_b32 v%d, 2, v%d" % (tmp + 1, tmp)); A("v_and_b32 v%d, 3, v%d" % (tmp + 2, tmp))
    A("v_lshl_add_u32 v%d, v%d, 4, v%d" % (tmp + 3, tmp + 2, tmp + 1)); A("v_lshlrev_b32 v%d, 2, v%d" % (vBP9, tmp + 3))
    A("v_mul_lo_u32 v%d, v%d, %s" % (vTok9, tmp + 1, s(pT + 8))); A("v_lshl_add_u32 v%d, v%d, 3, v%d" % (vTok9, tmp + 2, vTok9)); A("v_add_u32 v%d, 256, v%d" % (vTok9, vTok9))

def pstore(A, ACC, vTokA, vTok9, vBP, vBP9, sbase, tmp, rowstride, sLO8, sc="sc1"):
    X, Y, Z = tmp, tmp + 4, tmp + 8
    for tt in range(2):
        for L in range(2):
            a0, a1, b0, b1 = ACC(4 * L, tt), ACC(4 * L + 1, tt), ACC(4 * L + 2, tt), ACC(4 * L + 3, tt)
            for (d, p, q) in ((X, a0, a1), (Y, b0, b1)):
                A("v_cvt_pk_bf16_f32 v%d, v%d, v%d" % (d, p, p + 1)); A("v_cvt_pk_bf16_f32 v%d, v%d, v%d" % (d + 1, p + 2, p + 3))
                A("v_cvt_pk_bf16_f32 v%d, v%d, v%d" % (d + 2, q, q + 1)); A("v_cvt_pk_bf16_f32 v%d, v%d, v%d" % (d + 3, q + 2, q + 3))
            A("s_mov_b64 vcc, %s" % s(sLO8, 2))
            A("s_nop 0")
            for d in range(4): A("v_cndmask_b32_dpp v%d, v%d, v%d, vcc row_shr:8 row_mask:0xf bank_mask:0xf bound_ctrl:1" % (Z + d, Y + d, X + d))
            A("s_not_b64 vcc, vcc")
            for d in range(4): A("v_cndmask_b32_dpp v%d, v%d, v%d, vcc row_shl:8 row_mask:0xf bank_mask:0xf bound_ctrl:1" % (Z + 4 + d, X + d, Y + d))
            for d in range(8): A("ds_bpermute_b32 v%d, v%d, v%d" % (tmp + 16 + d, vBP, Z + d))
            A("s_add_u32 %s, %s, %d" % (s(pT + 9), s(sbase), tt * 16 * rowstride + L * 128))
            A("s_add_u32 %s, %s, %d" % (s(pT + 10), s(pT + 9), 8 * rowstride))
            A("s_waitcnt lgkmcnt(4)")
            A("buffer_store_dwordx4 %s, v%d, %s, %s offen %s" % (v(tmp + 16, 4), vTokA, s(pWS, 4), s(pT + 9), sc))
            A("s_waitcnt lgkmcnt(0)")
            A("buffer_store_dwordx4 %s, v%d, %s, %s offen %s" % (v(tmp + 20, 4), vTokA, s(pWS, 4), s(pT + 10), sc))
        x = ACC(8, tt)
        A("v_cvt_pk_bf16_f32 v%d, v%d, v%d" % (X, x, x + 1)); A("v_cvt_pk_bf16_f32 v%d, v%d, v%d" % (X + 1, x + 2, x + 3))
        A("ds_bpermute_b32 v%d, v%d, v%d" % (Y, vBP9, X)); A("ds_bpermute_b32 v%d, v%d, v%d" % (Y + 1, vBP9, X + 1))
        A("s_add_u32 %s, %s, %d" % (s(pT + 9), s(sbase), tt * 16 * rowstride))
        A("s_waitcnt lgkmcnt(0)")
        A("buffer_store_dwordx2 %s, v%d, %s, %s offen %s" % (v(Y, 2), vTok9, s(pWS, 4), s(pT + 9), sc))

def emit_r12(A, fail, nseg=64, nsets=2, hook=None, gwait=None):
    A.c("=== R12: attention + Wo partial")
    sSET12 = 59
    A("s_lshr_b32 %s, %s, 5" % (s(sSET12), s(pID)))
    A("s_lshl_b32 %s, %s, 2" % (s(pFOFF), s(pID))); A("s_add_u32 %s, %s, 0x%x" % (s(pFOFF), s(pFOFF), F_R12))
    A("s_and_b32 %s, %s, 31" % (s(pID), s(pID)))
    vL16, vTok, vFl, vMaskT = 1, 2, 3, 4
    WREG = lambda i, ks: ('a', (i * 4 + ks) * 4)
    load_srd(A, pW, "Wo")
    A("v_and_b32 v5, 63, v0"); A("v_lshlrev_b32 v%d, 4, v5" % vL16)
    A("s_mul_i32 %s, %s, %d" % (s(pT), s(pID), 128 * 1152))
    dma_linear(A, pW, pT, 147456, 0, vL16)
    A("s_waitcnt vmcnt(0)"); A("s_barrier")
    A("s_mul_i32 %s, %s, 288" % (s(pT + 1), s(pWV)))
    load_k128_weights(A, 6, WREG, 1152, 0, s(pT + 1))
    A("s_barrier")
    A("v_and_b32 v6, 15, v5"); A("v_lshrrev_b32 v7, 4, v5")
    vTok9, vBP, vBP9, sLO8 = 248, 249, 251, 62
    pstore_consts(A, vTok, vTok9, vBP, vBP9, 32 * PROW, 136)
    A("s_mov_b32 %s, 0x00ff00ff" % s(sLO8)); A("s_mov_b32 %s, 0x00ff00ff" % s(sLO8 + 1))
    A("v_min_u32 v8, 35, v5"); A("v_subrev_u32 v9, 4, v8"); A("v_lshlrev_b32 v9, 2, v9"); A("v_add_u32 v9, 0x%x, v9" % F_R3)
    A("s_lshl_b32 %s, %s, 7" % (s(pT), s(pID))); A("s_add_u32 %s, %s, 0x%x" % (s(pT), s(pT), F_KM))
    A("v_lshl_add_u32 v%d, v8, 2, %s" % (vFl, s(pT))); A("v_cmp_gt_u32 %s, 4, v8" % s(60, 2)); A("s_nop 1")
    A("v_cndmask_b32 v%d, v9, v%d, %s" % (vFl, vFl, s(60, 2)))
    sMK = 44
    for r in range(4):
        A("v_lshl_add_u32 v8, v7, 2, %d" % r); A("v_cmp_le_u32 %s, v8, v6" % s(sMK + 2 * r, 2))
    tt_, part = pT + 2, pT + 3
    sTT, sPART, sQ, sOUT, sKM, sVM, sFK = 52, 53, 54, 55, 56, 57, 58
    A("s_and_b32 %s, %s, 1" % (s(sTT), s(pWV))); A("s_lshr_b32 %s, %s, 1" % (s(sPART), s(pWV)))
    A("s_lshl_b32 %s, %s, 13" % (s(sQ), s(pID)))
    A("s_lshl_b32 %s, %s, 12" % (s(sKM), s(pID))); A("s_add_u32 %s, %s, 0x%x" % (s(sKM), s(sKM), KMEM))
    A("s_lshl_b32 %s, %s, 11" % (s(sVM), s(pID))); A("s_lshl_b32 %s, %s, 10" % (s(pT), s(sPART))); A("s_add_u32 %s, %s, %s" % (s(sVM), s(sVM), s(pT))); A("s_add_u32 %s, %s, 0x%x" % (s(sVM), s(sVM), VMEM))
    A("s_lshl_b32 %s, %s, 4" % (s(sFK), s(pID))); A("s_add_u32 %s, %s, 0x%x" % (s(sFK), s(sFK), F_KM))
    A("s_mul_i32 %s, %s, 384" % (s(pT), s(pWV)))
    A("s_mul_i32 %s, %s, %d" % (s(sOUT), s(pID), PROW)); A("s_add_u32 %s, %s, %s" % (s(sOUT), s(sOUT), s(pT))); A("s_add_u32 %s, %s, 0x%x" % (s(sOUT), s(sOUT), P12))
    if hook: hook(A)
    A("s_mov_b32 %s, %s" % (s(pS), s(sSET12)))
    Qf = 16
    Kf = 32
    Vf = 64
    Xf = 80
    PV = 96
    T0, T1, T2 = 100, 104, 108
    OT = 112
    LS = 128
    ONE = 132
    PB = 136
    OB = lambda tt, ks: 144 + 4 * (tt * 4 + ks)
    ACCf = lambda i, tt: 176 + 4 * (i * 2 + tt)
    TMP = 8
    L_O = 0
    def load_qkv(seg):
        if gwait:
            gw = A.newlab("r12_gw")
            A("s_and_b32 %s, %s, 6" % (s(pT), s(seg))); A("s_cmp_eq_u32 %s, 0" % s(pT)); A("s_cbranch_scc0 %s" % gw)
            A("s_cmp_lt_u32 %s, 64" % s(seg)); A("s_cbranch_scc0 %s" % gw)
            gwait(A, seg)
            A.label(gw)
        A("s_lshl_b32 %s, %s, 18" % (s(pT), s(seg))); A("s_add_u32 %s, %s, %s" % (s(pT), s(pT), s(sQ)))
        A("s_lshl_b32 %s, %s, 10" % (s(pT + 1), s(sTT))); A("s_add_u32 %s, %s, %s" % (s(pT + 1), s(pT + 1), s(pT))); A("s_add_u32 %s, %s, 0x%x" % (s(pT + 1), s(pT + 1), QOP))
        for ks in range(4):
            A("s_add_u32 %s, %s, %d" % (s(pT + 2), s(pT + 1), ks * 2048))
            A("buffer_load_dwordx4 %s, v%d, %s, %s offen" % (v(Qf + 4 * ks, 4), vL16, s(pWS, 4), s(pT + 2)))
        for ks in range(4):
            A("s_add_u32 %s, %s, %d" % (s(pT + 2), s(pT), ks * 2048 + KOP))
            for kt in range(2):
                A("buffer_load_dwordx4 %s, v%d, %s, %s offen offset:%d" % (v(Kf + 16 * kt + 4 * ks, 4), vL16, s(pWS, 4), s(pT + 2), kt * 1024))
        A("s_lshl_b32 %s, %s, 12" % (s(pT + 1), s(sPART))); A("s_add_u32 %s, %s, %s" % (s(pT + 1), s(pT + 1), s(pT))); A("s_add_u32 %s, %s, 0x%x" % (s(pT + 1), s(pT + 1), VOP))
        for et in range(4):
            A("s_add_u32 %s, %s, %d" % (s(pT + 2), s(pT + 1), et * 1024))
            A("buffer_load_dwordx4 %s, v%d, %s, %s offen" % (v(Vf + 4 * et, 4), vL16, s(pWS, 4), s(pT + 2)))
    sNX12 = 43
    load_qkv(pS)
    A("s_waitcnt vmcnt(0)")
    top = A.newlab("r12_top")
    m0 = A.mark()
    A.label(top)
    for i in range(4): A("v_mov_b32 v%d, 0x3f803f80" % (ONE + i))
    A("s_waitcnt vmcnt(14)")
    for ks in range(4):
        for kt in range(2):
            T = T1 if kt == 0 else T2
            A("v_mfma_f32_16x16x32_bf16 %s, %s, %s, %s" % (v(T, 4), v(Kf + 16 * kt + 4 * ks, 4), v(Qf + 4 * ks, 4), "0" if ks == 0 else v(T, 4)))
    A("s_add_u32 %s, %s, 1" % (s(pT + 4), s(pS)))
    A("s_max_u32 %s, %s, %d" % (s(pT + 5), s(pS), RING - 1)); A("s_sub_u32 %s, %s, %d" % (s(pT + 5), s(pT + 5), RING - 1))
    A("v_mov_b32 v%d, %s" % (vMaskT, s(pT + 5))); A("v_mov_b32 v%d, %s" % (TMP + 3, s(pT + 4)))
    A("v_cndmask_b32 v%d, v%d, v%d, %s" % (vMaskT, vMaskT, TMP + 3, s(60, 2)))
    A("s_and_b32 %s, %s, 7" % (s(pT + 5), s(pS))); A("s_lshl_b32 %s, %s, 7" % (s(pT + 5), s(pT + 5)))
    A("v_mov_b32 v%d, %s" % (TMP + 3, s(pT + 5))); A("v_cndmask_b32 v%d, v%d, 0, %s" % (TMP + 3, TMP + 3, s(60, 2)))
    A("v_add_u32 v%d, v%d, v%d" % (TMP + 7, vFl, TMP + 3))
    wait_flags(A, TMP + 7, "0", "v%d" % vMaskT, fail, TMP, pend_sc="sc1")
    trace(A, 0)
    A("s_lshl_b32 %s, %s, 17" % (s(pT), s(pS))); A("s_add_u32 %s, %s, %s" % (s(pT), s(pT), s(sKM)))
    for ks in range(4):
        A("s_add_u32 %s, %s, %d" % (s(pT + 2), s(pT), ks * 1024))
        A("buffer_load_dwordx4 %s, v%d, %s, %s offen sc1" % (v(Xf + 4 * ks, 4), vL16, s(pWS, 4), s(pT + 2)))
    A("s_lshl_b32 %s, %s, 16" % (s(pT), s(pS))); A("s_add_u32 %s, %s, %s" % (s(pT), s(pT), s(sVM)))
    A("v_lshrrev_b32 v%d, 1, v%d" % (TMP, vL16))
    A("buffer_load_dwordx2 %s, v%d, %s, %s offen sc1" % (v(PV, 2), TMP, s(pWS, 4), s(pT)))
    A("buffer_load_dwordx2 %s, v%d, %s, %s offen offset:512 sc1" % (v(PV + 2, 2), TMP, s(pWS, 4), s(pT)))
    NEG = TMP + 1
    A("v_mov_b32 v%d, 0xff800000" % NEG)
    m1 = A.newlab("r12_tt1"); m2 = A.newlab("r12_msk")
    A("s_cmp_eq_u32 %s, 1" % s(sTT)); A("s_cbranch_scc1 %s" % m1)
    for r in range(4):
        A("v_cndmask_b32 v%d, v%d, v%d, %s" % (T1 + r, NEG, T1 + r, s(sMK + 2 * r, 2)))
        A("v_mov_b32 v%d, v%d" % (T2 + r, NEG))
    A("s_branch %s" % m2)
    A.label(m1)
    for r in range(4): A("v_cndmask_b32 v%d, v%d, v%d, %s" % (T2 + r, NEG, T2 + r, s(sMK + 2 * r, 2)))
    A.label(m2)
    A("s_waitcnt vmcnt(2)")
    trace(A, 1)
    for ks in range(4):
        A("v_mfma_f32_16x16x32_bf16 %s, %s, %s, %s" % (v(T0, 4), v(Xf + 4 * ks, 4), v(Qf + 4 * ks, 4), "0" if ks == 0 else v(T0, 4)))
    A("v_max3_f32 v%d, v%d, v%d, v%d" % (TMP + 2, T1, T1 + 1, T1 + 2))
    A("v_max3_f32 v%d, v%d, v%d, v%d" % (TMP + 3, T1 + 3, T2, T2 + 1))
    A("v_max3_f32 v%d, v%d, v%d, v%d" % (TMP + 2, TMP + 2, T2 + 2, T2 + 3))
    A("v_max_f32 v%d, v%d, v%d" % (TMP + 2, TMP + 2, TMP + 3))
    A("s_nop 3")
    A("v_max3_f32 v%d, v%d, v%d, v%d" % (TMP + 2, TMP + 2, T0, T0 + 1))
    x, y = TMP + 2, TMP + 3
    for sw in ("v_permlane16_swap_b32", "v_permlane32_swap_b32"):
        A("v_mov_b32 v%d, v%d" % (y, x)); A("s_nop 1"); A("%s v%d, v%d" % (sw, x, y)); A("v_max_f32 v%d, v%d, v%d" % (x, x, y))
    A("s_mov_b32 %s, 0x%x" % (s(pT + 6), f2u(SCALE_LOG2E)))
    A("v_mul_f32 v%d, %s, v%d" % (x, s(pT + 6), x))
    vals = [T0, T0 + 1] + [T1 + r for r in range(4)] + [T2 + r for r in range(4)]
    for r in vals: A("v_fma_f32 v%d, v%d, %s, -v%d" % (r, r, s(pT + 6), x))
    for r in vals: A("v_exp_f32 v%d, v%d" % (r, r))
    A("s_nop 0")
    A("v_cvt_pk_bf16_f32 v%d, v%d, v%d" % (PB, T1, T1 + 1)); A("v_cvt_pk_bf16_f32 v%d, v%d, v%d" % (PB + 1, T1 + 2, T1 + 3))
    A("v_cvt_pk_bf16_f32 v%d, v%d, v%d" % (PB + 2, T2, T2 + 1)); A("v_cvt_pk_bf16_f32 v%d, v%d, v%d" % (PB + 3, T2 + 2, T2 + 3))
    A("v_cvt_pk_bf16_f32 v%d, v%d, v%d" % (PB + 4, T0, T0 + 1)); A("v_mov_b32 v%d, 0" % (PB + 5))
    A("v_mov_b32 v%d, 0" % (PB + 6)); A("v_cvt_pk_bf16_f32 v%d, v%d, v%d" % (PB + 7, T0, T0 + 1))
    A("s_waitcnt vmcnt(0)")
    A("s_nop 0")
    A("v_mfma_f32_16x16x32_bf16 %s, %s, %s, 0" % (v(LS, 4), v(ONE, 4), v(PB, 4)))
    for et in range(4):
        A("v_mfma_f32_16x16x32_bf16 %s, %s, %s, 0" % (v(OT + 4 * et, 4), v(Vf + 4 * et, 4), v(PB, 4)))
    A("s_nop 1")
    A("v_mfma_f32_16x16x16_bf16 %s, %s, %s, %s" % (v(LS, 4), v(ONE, 2), v(PB + 4, 2), v(LS, 4)))
    for et in range(4):
        A("v_mfma_f32_16x16x16_bf16 %s, %s, %s, %s" % (v(OT + 4 * et, 4), v(PV + 2 * (et >> 1), 2), v(PB + 4 + 2 * (et & 1), 2), v(OT + 4 * et, 4)))
    A("s_add_u32 %s, %s, %d" % (s(sNX12), s(pS), nsets))
    A.c("lint-skip-begin") if False else None
    load_qkv(sNX12)
    A("v_rcp_f32 v%d, v%d" % (x, LS))
    A("s_nop 2")
    for i in range(16): A("v_mul_f32 v%d, v%d, v%d" % (OT + i, OT + i, x))
    for a_ in range(2):
        d = TMP + 4 if a_ == 0 else OT
        src = OT + 8 * a_
        dd = Xf + 4 * a_
        for q in range(4): A("v_cvt_pk_bf16_f32 v%d, v%d, v%d" % (dd + q, src + 2 * q, src + 2 * q + 1))
    A("s_lshl_b32 %s, %s, 12" % (s(pT), s(sTT))); A("s_lshl_b32 %s, %s, 11" % (s(pT + 1), s(sPART))); A("s_add_u32 %s, %s, %s" % (s(pT), s(pT), s(pT + 1)))
    A("v_add_u32 v%d, %s, v%d" % (TMP, s(pT), vL16))
    A("s_barrier")
    A("ds_write_b128 v%d, %s offset:%d" % (TMP, v(Xf, 4), L_O))
    A("ds_write_b128 v%d, %s offset:%d" % (TMP, v(Xf + 4, 4), L_O + 1024))
    A("s_waitcnt lgkmcnt(0)")
    A("s_barrier")
    for ks in range(4):
        for tt in range(2):
            A("ds_read_b128 %s, v%d offset:%d" % (v(OB(tt, ks), 4), vL16, L_O + tt * 4096 + ks * 1024))
    def lw(ks): A("s_waitcnt lgkmcnt(%d)" % (6 - 2 * ks))
    k128_gemm(A, WREG, OB, ACCf, lw)
    trace(A, 2)
    A("s_nop 7")
    A("s_and_b32 %s, %s, %d" % (s(pT), s(pS), RING - 1)); A("s_mul_i32 %s, %s, %d" % (s(pT), s(pT), 32 * 32 * PROW)); A("s_add_u32 %s, %s, %s" % (s(pT), s(pT), s(sOUT)))
    pstore(A, ACCf, vTok, vTok9, vBP, vBP9, pT, 144, 32 * PROW, sLO8)
    A("s_add_u32 %s, %s, 1" % (s(pPEND), s(pS)))
    A("s_add_u32 %s, %s, %d" % (s(pS), s(pS), nsets))
    A("s_cmp_lt_u32 %s, %d" % (s(pS), nseg))
    A("s_cbranch_scc1 %s" % top)
    m1 = A.mark()
    set_flag(A, s(pFOFF), s(pPEND), TMP)
    return (m0, m1)

def build_role_test(name, role_fn, idreg_expr):
    A = Asm(); kstart(A, name)
    fail = "L_fail_" + name; end = "L_end_" + name
    load_srd(A, pDBG, "dbg"); load_srd(A, pWS, "ws")
    A("v_lshrrev_b32 v1, 6, v0"); A("s_nop 0"); A("v_readfirstlane_b32 %s, v1" % s(pWV))
    A("s_mov_b32 %s, s2" % s(pID)); A("s_mov_b32 %s, 0" % s(pFAST)); A("s_mov_b32 %s, 0" % s(pPEND))
    A("s_memrealtime s[96:97]")
    mm = role_fn(A, fail)
    A("s_memrealtime s[100:101]"); A("s_waitcnt lgkmcnt(0)"); A("s_sub_u32 s100, s100, s96")
    A("v_mov_b32 v16, s100"); A("s_lshl_b32 %s, s2, 2" % s(pT)); A("s_add_u32 %s, %s, 0x%x" % (s(pT), s(pT), FLG + 0x1000))
    A("v_mov_b32 v1, 0"); A("s_mov_b64 exec, 1"); A("buffer_store_dword v16, v1, %s, %s offen" % (s(pWS, 4), s(pT)))
    A("s_endpgm")
    A.label(fail); A("v_mov_b32 v1, 0xf0"); A("v_mov_b32 v2, 0xdead"); A("s_mov_b64 exec, 1"); A("buffer_store_dword v2, v1, %s, 0 offen sc1" % s(pDBG, 4))
    A.label(end); A("s_endpgm")
    probs = lint(A.lines, name + "-linear", verbose=True)
    if mm: probs += lint(A.lines[mm[0]:mm[1]] * 2, name + "-loop", verbose=True)
    return HDR + A.text() + '.section .rodata,"a"\n' + kdesc(name), name, probs
if __name__ == "__main__":
    from hiprun import add_metadata, assemble
    txt, name, probs = build_role_test("r12_kernel", lambda A, f: emit_r12(A, f), None)
    open("r12.s", "w").write(add_metadata(txt, [(name, 256)], 120)); assemble("r12.s", "r12.co"); print("ok", txt.count("\n"))

def emit_sel(A, dst, tmp):
    A("v_and_b32 v%d, 15, v0" % tmp)
    A("v_mov_b32 v%d, 0x3f80" % (tmp + 1)); A("v_mov_b32 v%d, 0x3f800000" % (tmp + 2))
    A("v_and_b32 v%d, 1, v%d" % (dst, tmp)); A("v_cmp_eq_u32 vcc, 0, v%d" % dst); A("s_nop 1")
    A("v_cndmask_b32 v%d, v%d, v%d, vcc" % (tmp + 1, tmp + 2, tmp + 1))
    A("v_lshrrev_b32 v%d, 1, v%d" % (tmp, tmp))
    for q in range(4):
        A("v_cmp_eq_u32 vcc, %d, v%d" % (q, tmp)); A("s_nop 1"); A("v_cndmask_b32 v%d, 0, v%d, vcc" % (dst + q, tmp + 1))

def reduce_rows_consts(A, vM, vX, vX2, nprod, tmp):
    A("v_and_b32 v%d, 63, v0" % tmp); A("v_lshrrev_b32 v%d, 4, v%d" % (tmp + 1, tmp)); A("v_and_b32 v%d, 15, v%d" % (tmp + 2, tmp))
    A("v_mul_u32_u24 v%d, %d, v%d" % (vM, ROW, tmp + 1)); A("v_lshl_add_u32 v%d, v%d, 4, v%d" % (vM, tmp + 2, vM))
    A("v_lshrrev_b32 v%d, 1, v%d" % (tmp + 3, tmp + 2))
    A("v_lshl_add_u32 v%d, v%d, 2, v%d" % (vX, tmp + 3, tmp + 1)); A("v_mul_u32_u24 v%d, %d, v%d" % (vX, ROW, vX))
    A("v_and_b32 v%d, 1, v%d" % (tmp + 4, tmp + 2)); A("v_add_u32 v%d, 16, v%d" % (tmp + 4, tmp + 4))
    A("v_lshl_add_u32 v%d, v%d, 4, v%d" % (vX, tmp + 4, vX))
    if nprod > 32:
        A("v_add_u32 v%d, 32, v%d" % (vX2, tmp + 1)); A("v_mul_u32_u24 v%d, %d, v%d" % (vX2, ROW, vX2)); A("v_lshl_add_u32 v%d, v%d, 4, v%d" % (vX2, tmp + 4, vX2))
        A("v_mov_b32 v%d, 0x40000000" % (tmp + 4)); A("v_cmp_eq_u32 vcc, 0, v%d" % (tmp + 3)); A("s_nop 1")
        A("v_cndmask_b32 v%d, v%d, v%d, vcc" % (vX2, tmp + 4, vX2))

def reduce_issue(A, sbase, nprod, vM, vX, vX2, LD):
    nm = nprod // 4
    for n in range(nm):
        A("s_add_u32 %s, %s, %d" % (s(pT + 8), s(sbase), n * 4 * ROW))
        A("buffer_load_dwordx4 %s, v%d, %s, %s offen sc1" % (v(LD + 4 * n, 4), vM, s(pWS, 4), s(pT + 8)))
    A("buffer_load_dwordx4 %s, v%d, %s, %s offen sc1" % (v(LD + 4 * nm, 4), vX, s(pWS, 4), s(sbase)))
    if nprod > 32:
        A("buffer_load_dwordx4 %s, v%d, %s, %s offen sc1" % (v(LD + 4 * nm + 4, 4), vX2, s(pWS, 4), s(sbase)))
def reduce_consume(A, nprod, LD, SEL, DM, DX, younger=0):
    nm = nprod // 4; nx = 2 if nprod > 32 else 1
    for n in range(nm):
        A("s_waitcnt vmcnt(%d)" % (nm - 1 - n + nx + younger))
        A("v_mfma_f32_16x16x32_bf16 %s, %s, %s, %s" % (v(DM, 4), v(SEL, 4), v(LD + 4 * n, 4), "0" if n == 0 else v(DM, 4)))
    for k in range(nx):
        A("s_waitcnt vmcnt(%d)" % (nx - 1 - k + younger))
        A("v_mfma_f32_16x16x32_bf16 %s, %s, %s, %s" % (v(DX, 4), v(SEL, 4), v(LD + 4 * (nm + k), 4), "0" if k == 0 else v(DX, 4)))
    A("s_nop 7")
    for sh in (2, 4, 8):
        for r in range(4): A("v_add_f32_dpp v%d, v%d, v%d row_shl:%d row_mask:0xf bank_mask:0xf bound_ctrl:1" % (DX + r, DX + r, DX + r, sh))
def reduce_rows(A, sbase, nprod, vM, vX, vX2, LD, SEL, DM, DX):
    reduce_issue(A, sbase, nprod, vM, vX, vX2, LD)
    reduce_consume(A, nprod, LD, SEL, DM, DX)

def rowpos_consts(A, vSm, vSx, vNm, vNx, tmp):
    A("v_and_b32 v%d, 63, v0" % tmp); A("v_lshrrev_b32 v%d, 4, v%d" % (tmp + 1, tmp)); A("v_and_b32 v%d, 15, v%d" % (tmp + 2, tmp))
    A("s_mul_i32 %s, %s, 18" % (s(pT + 8), s(pWV)))
    for (vs, vn, add, cmax) in ((vSm, vNm, 0, 16), (vSx, vNx, 16, 2)):
        A("v_add_u32 v%d, %s, v%d" % (tmp + 3, s(pT + 8), tmp + 2))
        if add: A("v_add_u32 v%d, %d, v%d" % (tmp + 3, add, tmp + 3))
        A("v_lshlrev_b32 v%d, 4, v%d" % (vs, tmp + 3)); A("v_lshl_add_u32 v%d, v%d, 3, v%d" % (vs, tmp + 1, vs))
        A("v_lshrrev_b32 v%d, 2, v%d" % (vn, tmp + 3)); A("v_lshlrev_b32 v%d, 6, v%d" % (vn, vn))
        A("v_lshl_add_u32 v%d, v%d, 5, v%d" % (vn, tmp + 1, vn))
        A("v_and_b32 v%d, 3, v%d" % (tmp + 4, tmp + 3)); A("v_lshl_add_u32 v%d, v%d, 3, v%d" % (vn, tmp + 4, vn))
        A("v_cmp_gt_u32 vcc, %d, v%d" % (cmax, tmp + 2)); A("v_cmp_gt_u32 %s, 2, v%d" % (s(pT + 10, 2), tmp + 1)); A("s_nop 1")
        A("s_and_b64 vcc, vcc, %s" % s(pT + 10, 2)); A("v_mov_b32 v%d, 0x40000000" % (tmp + 4)); A("s_nop 0")
        A("v_cndmask_b32 v%d, v%d, v%d, vcc" % (vs, tmp + 4, vs)); A("v_cndmask_b32 v%d, v%d, v%d, vcc" % (vn, tmp + 4, vn))

def rb16(A, r):
    A("v_cvt_pk_bf16_f32 v%d, v%d, v%d" % (r, r, r)); A("v_lshlrev_b32 v%d, 16, v%d" % (r, r))

def wave_sum2(A, a_, b_, t):
    for sh in (1, 2, 4, 8):
        A("v_add_f32_dpp v%d, v%d, v%d row_ror:%d row_mask:0xf bank_mask:0xf" % (t, a_, a_, sh))
        A("v_add_f32_dpp v%d, v%d, v%d row_ror:%d row_mask:0xf bank_mask:0xf" % (t + 1, b_, b_, sh))
        A("v_mov_b32 v%d, v%d" % (a_, t)); A("v_mov_b32 v%d, v%d" % (b_, t + 1)); A("s_nop 0")
    for sw in ("v_permlane16_swap_b32", "v_permlane32_swap_b32"):
        A("v_mov_b32 v%d, v%d" % (t, a_)); A("v_mov_b32 v%d, v%d" % (t + 1, b_)); A("s_nop 0")
        A("%s v%d, v%d" % (sw, a_, t)); A("%s v%d, v%d" % (sw, b_, t + 1))
        A("v_add_f32 v%d, v%d, v%d" % (a_, a_, t)); A("v_add_f32 v%d, v%d, v%d" % (b_, b_, t + 1))

def ln_row(A, vals, vsum, vsq, t, lds_off, vLdsW, vLdsR):
    A("v_add_f32 v%d, v%d, v%d" % (vsum, vals[0], vals[1])); A("v_mul_f32 v%d, v%d, v%d" % (vsq, vals[0], vals[0]))
    A("v_fma_f32 v%d, v%d, v%d, v%d" % (vsq, vals[1], vals[1], vsq))
    for r in vals[2:]:
        A("v_add_f32 v%d, v%d, v%d" % (vsum, vsum, r)); A("v_fma_f32 v%d, v%d, v%d, v%d" % (vsq, r, r, vsq))
    A("s_nop 0")
    wave_sum2(A, vsum, vsq, t)
    A("v_mov_b32 v%d, v%d" % (t, vsum)); A("v_mov_b32 v%d, v%d" % (t + 1, vsq))
    A("s_mov_b64 exec, 1"); A("ds_write_b64 v%d, %s offset:%d" % (vLdsW, v(t, 2), lds_off)); A("s_mov_b64 exec, -1")
    A("s_waitcnt lgkmcnt(0)"); A("s_barrier")
    A("ds_read_b128 %s, v%d offset:%d" % (v(t, 4), vLdsR, lds_off)); A("ds_read_b128 %s, v%d offset:%d" % (v(t + 4, 4), vLdsR, lds_off + 16))
    A("s_waitcnt lgkmcnt(0)")
    A("v_add_f32 v%d, v%d, v%d" % (vsum, t, t + 2)); A("v_add_f32 v%d, v%d, v%d" % (vsq, t + 1, t + 3))
    A("v_add_f32 v%d, v%d, v%d" % (t, t + 4, t + 6)); A("v_add_f32 v%d, v%d, v%d" % (t + 1, t + 5, t + 7))
    A("v_add_f32 v%d, v%d, v%d" % (vsum, vsum, t)); A("v_add_f32 v%d, v%d, v%d" % (vsq, vsq, t + 1))
    A("v_mul_f32 v%d, 0x%x, v%d" % (vsum, f2u(1.0 / 576), vsum)); A("v_mul_f32 v%d, 0x%x, v%d" % (vsq, f2u(1.0 / 576), vsq))
    A("v_fma_f32 v%d, -v%d, v%d, v%d" % (vsq, vsum, vsum, vsq)); A("v_max_f32 v%d, 0, v%d" % (vsq, vsq))
    rb16(A, vsum); rb16(A, vsq)
    A("v_add_f32 v%d, 0x%x, v%d" % (vsq, f2u(1e-5), vsq)); rb16(A, vsq)
    A("v_sqrt_f32 v%d, v%d" % (vsq, vsq)); A("s_nop 0"); rb16(A, vsq)
    A("v_rcp_f32 v%d, v%d" % (vsq, vsq))
    for r in vals: A("v_sub_f32 v%d, v%d, v%d" % (r, r, vsum))
    for r in vals: rb16(A, r)
    for r in vals: A("v_mul_f32 v%d, v%d, v%d" % (r, r, vsq))
    for r in vals: rb16(A, r)

def unpack4(A, src, dst):
    A("v_lshlrev_b32 v%d, 16, v%d" % (dst, src)); A("v_and_b32 v%d, 0xffff0000, v%d" % (dst + 1, src))
    A("v_lshlrev_b32 v%d, 16, v%d" % (dst + 2, src + 1)); A("v_and_b32 v%d, 0xffff0000, v%d" % (dst + 3, src + 1))

def role_top(A, fail, vFl, sflag, target_expr_fn, tmp, first_label):
    pass

def emit_r3(A, fail, nseg=64):
    A.c("=== R3")
    vM, vX, vSm, vSx, vNm, vNx, vFl, vLW_, vLR = 1, 2, 3, 4, 5, 6, 7, 8, 9
    SEL, DM, DX, XQ, TMP, LD = 12, 16, 20, 24, 28, 48
    load_srd(A, pW, "x")
    emit_sel(A, SEL, TMP)
    reduce_rows_consts(A, vM, vX, None, 32, TMP)
    rowpos_consts(A, vSm, vSx, vNm, vNx, TMP)
    A("v_and_b32 v%d, 63, v0" % TMP); A("v_min_u32 v%d, 31, v%d" % (vFl, TMP)); A("v_lshlrev_b32 v%d, 2, v%d" % (vFl, vFl))
    A("v_mov_b32 v%d, 0" % vLR); A("s_lshl_b32 %s, %s, 3" % (s(pT), s(pWV))); A("v_mov_b32 v%d, %s" % (vLW_, s(pT)))
    A("s_lshl_b32 %s, %s, 2" % (s(pFOFF), s(pID))); A("s_add_u32 %s, %s, 0x%x" % (s(pFOFF), s(pFOFF), F_R3))
    sIN, sROW, sFL = 44, 45, 46
    A("s_mov_b32 %s, 0" % s(pS))
    top = A.newlab("r3_top"); m0 = A.mark(); A.label(top)
    A("s_lshl_b32 %s, %s, 5" % (s(sROW), s(pS))); A("s_add_u32 %s, %s, %s" % (s(sROW), s(sROW), s(pID))); A("s_mul_i32 %s, %s, %d" % (s(sROW), s(sROW), ROW))
    A("buffer_load_dwordx2 %s, v%d, %s, %s offen" % (v(XQ, 2), vNm, s(pW, 4), s(sROW)))
    A("buffer_load_dwordx2 %s, v%d, %s, %s offen" % (v(XQ + 2, 2), vNx, s(pW, 4), s(sROW)))
    A("s_and_b32 %s, %s, 1" % (s(sFL), s(pS))); A("s_lshl_b32 %s, %s, 7" % (s(sFL), s(sFL))); A("s_add_u32 %s, %s, 0x%x" % (s(sFL), s(sFL), F_R12))
    A("s_add_u32 %s, %s, 1" % (s(pT + 4), s(pS)))
    wait_flags(A, vFl, s(sFL), s(pT + 4), fail, TMP, pend_sc="sc1")
    trace(A, 0)
    A("s_and_b32 %s, %s, %d" % (s(sIN), s(pS), RING - 1)); A("s_mul_i32 %s, %s, %d" % (s(sIN), s(sIN), 32 * 32 * ROW)); A("s_mul_i32 %s, %s, %d" % (s(pT), s(pID), 32 * ROW))
    A("s_add_u32 %s, %s, %s" % (s(sIN), s(sIN), s(pT))); A("s_mul_i32 %s, %s, 288" % (s(pT), s(pWV))); A("s_add_u32 %s, %s, %s" % (s(sIN), s(sIN), s(pT)))
    A("s_add_u32 %s, %s, 0x%x" % (s(sIN), s(sIN), P12))
    reduce_rows(A, sIN, 32, vM, vX, None, LD, SEL, DM, DX)
    trace(A, 1)
    vals = [DM + r for r in range(4)] + [DX + r for r in range(4)]
    for r in vals: rb16(A, r)
    unpack4(A, XQ, TMP); unpack4(A, XQ + 2, TMP + 4)
    for i, r in enumerate(vals): A("v_add_f32 v%d, v%d, v%d" % (r, r, TMP + i))
    for r in vals: rb16(A, r)
    A("v_cmp_gt_u32 vcc, 0x40000000, v%d" % vSx); A("s_nop 1")
    for r in range(4): A("v_cndmask_b32 v%d, 0, v%d, vcc" % (DX + r, DX + r))
    def store_row(base):
        A("v_perm_b32 v%d, v%d, v%d, %s" % (TMP, DM + 1, DM, s(pT + 14))); A("v_perm_b32 v%d, v%d, v%d, %s" % (TMP + 1, DM + 3, DM + 2, s(pT + 14)))
        A("v_perm_b32 v%d, v%d, v%d, %s" % (TMP + 2, DX + 1, DX, s(pT + 14))); A("v_perm_b32 v%d, v%d, v%d, %s" % (TMP + 3, DX + 3, DX + 2, s(pT + 14)))
        A("s_add_u32 %s, %s, 0x%x" % (s(pT + 8), s(sROW), base))
        A("buffer_store_dwordx2 %s, v%d, %s, %s offen sc1" % (v(TMP, 2), vSm, s(pWS, 4), s(pT + 8)))
        A("buffer_store_dwordx2 %s, v%d, %s, %s offen sc1" % (v(TMP + 2, 2), vSx, s(pWS, 4), s(pT + 8)))
    A("s_mov_b32 %s, 0x07060302" % s(pT + 14))
    store_row(HB)
    ln_row(A, vals, TMP + 8, TMP + 9, TMP + 10, 0, vLW_, vLR)
    A("v_cmp_gt_u32 vcc, 0x40000000, v%d" % vSx); A("v_cmp_gt_u32 %s, 0x40000000, v%d" % (s(pT + 10, 2), vSm)) if False else None
    A("s_nop 1")
    for r in range(4): A("v_cndmask_b32 v%d, 0, v%d, vcc" % (DX + r, DX + r))
    A("v_cmp_gt_u32 vcc, 0x40000000, v%d" % vSm); A("s_nop 1")
    for r in range(4): A("v_cndmask_b32 v%d, 0, v%d, vcc" % (DM + r, DM + r))
    store_row(HNB)
    ln_row(A, vals, TMP + 8, TMP + 9, TMP + 10, 64, vLW_, vLR)
    store_row(TB)
    trace(A, 2)
    A("s_add_u32 %s, %s, 1" % (s(pS), s(pS))); A("s_mov_b32 %s, %s" % (s(pPEND), s(pS)))
    A("s_cmp_lt_u32 %s, %d" % (s(pS), nseg)); A("s_cbranch_scc1 %s" % top)
    m1 = A.mark()
    set_flag(A, s(pFOFF), s(pPEND), TMP)
    return (m0, m1)

def stage_consts(A, VS, vB0, tmp):
    A("v_and_b32 v%d, 63, v0" % tmp)
    for i in range(9):
        A("s_lshl_b32 %s, %s, 6" % (s(pT + 8), s(pWV))); A("s_add_u32 %s, %s, %d" % (s(pT + 8), s(pT + 8), 256 * i))
        A("v_add_u32 v%d, %s, v%d" % (tmp + 1, s(pT + 8), tmp))
        A("v_mul_u32_u24 v%d, 58255, v%d" % (tmp + 2, tmp + 1)); A("v_lshrrev_b32 v%d, 22, v%d" % (tmp + 2, tmp + 2))
        A("v_mul_u32_u24 v%d, 72, v%d" % (tmp + 3, tmp + 2)); A("v_sub_u32 v%d, v%d, v%d" % (tmp + 3, tmp + 1, tmp + 3))
        A("v_bfe_u32 v%d, v%d, 1, 3" % (tmp + 4, tmp + 2)); A("v_xor_b32 v%d, v%d, v%d" % (tmp + 3, tmp + 3, tmp + 4))
        A("v_lshlrev_b32 v%d, 4, v%d" % (tmp + 3, tmp + 3))
        A("v_mul_u32_u24 v%d, %d, v%d" % (tmp + 2, ROW, tmp + 2)); A("v_add_u32 v%d, v%d, v%d" % (VS + i, tmp + 2, tmp + 3))
    A("v_and_b32 v%d, 15, v%d" % (tmp + 1, tmp)); A("v_lshrrev_b32 v%d, 4, v%d" % (tmp + 2, tmp))
    A("v_bfe_u32 v%d, v%d, 1, 3" % (tmp + 3, tmp + 1)); A("v_xor_b32 v%d, v%d, v%d" % (tmp + 3, tmp + 3, tmp + 2)); A("v_lshlrev_b32 v%d, 4, v%d" % (tmp + 3, tmp + 3))
    A("v_mul_u32_u24 v%d, %d, v%d" % (tmp + 1, ROW, tmp + 1)); A("v_add_u32 v%d, v%d, v%d" % (vB0, tmp + 1, tmp + 3)); A("v_xor_b32 v%d, 64, v%d" % (vB0 + 1, vB0))

def stage_rows(A, sbase, VS, lds_base, sc="sc1"):
    A("s_lshl_b32 %s, %s, 10" % (s(pT + 9), s(pWV)))
    for i in range(9):
        A("s_add_u32 m0, %s, %d" % (s(pT + 9), lds_base + i * 4096)); A("s_nop 0")
        A("buffer_load_dwordx4 v%d, %s, %s offen %s lds" % (VS + i, s(pWS, 4), s(sbase), sc))

def bfrag_read(A, dst, vB0, lds_base, tt, ks):
    A("ds_read_b128 %s, v%d offset:%d" % (v(dst, 4), vB0 + (ks & 1), lds_base + tt * 16 * ROW + (ks >> 1) * 128))

def load_w576(A, srd, scol, grow, rowbytes, ntile, WREG, tilebyte_sreg, tmp):
    lanes_per_row = rowbytes // 16; rows_per = 64 // lanes_per_row; ninstr = 576 // rows_per // 4
    A("v_and_b32 v%d, 63, v0" % tmp)
    A("v_lshrrev_b32 v%d, %d, v%d" % (tmp + 1, lanes_per_row.bit_length() - 1, tmp)); A("v_and_b32 v%d, %d, v%d" % (tmp + 2, lanes_per_row - 1, tmp))
    A("s_mov_b32 %s, %d" % (s(pT + 8), grow)); A("v_mul_lo_u32 v%d, v%d, %s" % (tmp + 1, tmp + 1, s(pT + 8))); A("v_lshl_add_u32 v%d, v%d, 4, v%d" % (tmp + 1, tmp + 2, tmp + 1))
    A("s_mul_i32 %s, %s, %d" % (s(pT + 10), s(pWV), rows_per * grow)); A("s_add_u32 %s, %s, %s" % (s(pT + 10), s(pT + 10), s(scol)))
    A("s_lshl_b32 %s, %s, 10" % (s(pT + 9), s(pWV)))
    for i in range(ninstr):
        A("s_add_u32 m0, %s, %d" % (s(pT + 9), i * 4096))
        A("s_add_u32 %s, %s, %d" % (s(pT + 8), s(pT + 10), i * 4 * rows_per * grow))
        A("buffer_load_dwordx4 v%d, %s, %s offen lds" % (tmp + 1, s(srd, 4), s(pT + 8)))
    A("s_waitcnt vmcnt(0)"); A("s_barrier")
    A("v_lshrrev_b32 v%d, 4, v%d" % (tmp + 1, tmp)); A("v_bfe_u32 v%d, v%d, 2, 2" % (tmp + 2, tmp)); A("v_lshl_add_u32 v%d, v%d, 2, v%d" % (tmp + 1, tmp + 1, tmp + 2))
    A("v_mul_u32_u24 v%d, %d, v%d" % (tmp + 1, rowbytes, tmp + 1)); A("v_and_b32 v%d, 3, v%d" % (tmp + 2, tmp)); A("v_lshl_add_u32 v%d, v%d, 3, v%d" % (tmp + 1, tmp + 2, tmp + 1))
    A("v_add_u32 v%d, %s, v%d" % (tmp + 1, tilebyte_sreg, tmp + 1))
    cnt = 0
    for ks in range(18):
        for u in range(2):
            A("v_add_u32 v%d, %d, v%d" % (tmp + 3, (32 * ks + 16 * u) * rowbytes, tmp + 1))
            for i in range(ntile):
                sp = WREG(i, ks)
                A("ds_read_b64_tr_b16 %s, v%d offset:%d" % (R((sp[0], sp[1] + 2 * u), 2), tmp + 3, i * 32)); cnt += 1
                if cnt % 12 == 0: A("s_waitcnt lgkmcnt(0)")
    A("s_waitcnt lgkmcnt(0)"); A("s_barrier")

GC0 = -2.0 * 0.7978845608028654 * 1.4426950408889634
GC1 = GC0 * 0.044715
def gelu(A, regs, t):
    A("s_mov_b32 %s, 0x%x" % (s(pT + 12), f2u(GC1))); A("s_mov_b32 %s, 0x%x" % (s(pT + 13), f2u(GC0)))
    for i, r in enumerate(regs): A("v_mul_f32 v%d, v%d, v%d" % (t + i, r, r))
    for i, r in enumerate(regs): A("v_mov_b32 v%d, %s" % (t + len(regs), s(pT + 13))) if i == 0 else None
    for i, r in enumerate(regs): A("v_fma_f32 v%d, v%d, %s, v%d" % (t + i, t + i, s(pT + 12), t + len(regs)))
    for i, r in enumerate(regs): A("v_mul_f32 v%d, v%d, v%d" % (t + i, t + i, r))
    for i, r in enumerate(regs): A("v_exp_f32 v%d, v%d" % (t + i, t + i))
    for i, r in enumerate(regs): A("v_add_f32 v%d, 1.0, v%d" % (t + i, t + i))
    for i, r in enumerate(regs): A("v_rcp_f32 v%d, v%d" % (t + i, t + i))
    A("s_nop 0")
    for i, r in enumerate(regs): A("v_mul_f32 v%d, v%d, v%d" % (r, r, t + i))

def small_gemm(A, WREG, ACC, BF, vB0, lds_base, ntile, fillers=None):
    fillers = [l for l in (fillers or []) if not l.startswith(";")]
    def rd(ks):
        for tt in range(2): bfrag_read(A, BF[ks & 1][tt], vB0, lds_base, tt, ks)
    rd(0)
    nm = 18 * ntile * 2; per = -(-len(fillers) // (nm - 4)) if fillers else 0
    for ks in range(18):
        if ks + 1 < 18:
            rd(ks + 1); A("s_waitcnt lgkmcnt(2)")
        else: A("s_waitcnt lgkmcnt(0)")
        for i in range(ntile):
            for tt in range(2):
                A("v_mfma_f32_16x16x32_bf16 %s, %s, %s, %s" % (v(ACC(i, tt), 4), R(WREG(i, ks), 4), v(BF[ks & 1][tt], 4), "0" if ks == 0 else v(ACC(i, tt), 4)))
                for _ in range(per):
                    if fillers: A(fillers.pop(0))
    while fillers: A(fillers.pop(0))

def emit_r4(A, fail, nseg=64, st="sc1", nsets=2, hook=None):
    A.c("=== R4")
    sSET = 47
    A("s_lshl_b32 %s, %s, 2" % (s(pFOFF), s(pID))); A("s_add_u32 %s, %s, 0x%x" % (s(pFOFF), s(pFOFF), F_R4))
    A("s_cmp_ge_u32 %s, 9" % s(pID)); A("s_cselect_b32 %s, 1, 0" % s(sSET)); A("s_mul_i32 %s, %s, 9" % (s(pT), s(sSET))); A("s_sub_u32 %s, %s, %s" % (s(pID), s(pID), s(pT)))
    WREG = lambda i, ks: ('a', 4 * ks)
    vFl, vB0, vOut, VS, TMP = 1, 2, 4, 6, 16
    BF = [[40, 44], [48, 52]]; ACC = lambda i, tt: 56 + 4 * tt
    load_srd(A, pW, "w1")
    A("s_lshl_b32 %s, %s, 7" % (s(pT), s(pID)))
    A("s_lshl_b32 %s, %s, 5" % (s(pT + 1), s(pWV)))
    load_w576(A, pW, pT, 1152, 128, 1, WREG, s(pT + 1), TMP)
    stage_consts(A, VS, vB0, TMP)
    A("v_and_b32 v%d, 63, v0" % TMP); A("v_min_u32 v%d, 31, v%d" % (vFl, TMP)); A("v_lshlrev_b32 v%d, 2, v%d" % (vFl, vFl))
    sTl, sDL, sPOS = 44, 45, 46
    A("s_lshl_b32 %s, %s, 2" % (s(sTl), s(pID))); A("s_add_u32 %s, %s, %s" % (s(sTl), s(sTl), s(pWV)))
    A("s_mov_b32 %s, 1" % s(sDL))
    for thr, d in ((9, -1), (18, 2), (27, -2)):
        A("s_cmp_ge_u32 %s, %d" % (s(sTl), thr)); A("s_cselect_b32 %s, %d, %s" % (s(sDL), d, s(sDL)))
    A("s_lshr_b32 %s, %s, 1" % (s(sPOS), s(sTl))); A("s_lshl_b32 %s, %s, 6" % (s(sPOS), s(sPOS)))
    A("s_and_b32 %s, %s, 1" % (s(pT), s(sTl))); A("s_lshl_b32 %s, %s, 3" % (s(pT), s(pT))); A("s_add_u32 %s, %s, %s" % (s(sPOS), s(sPOS), s(pT)))
    A("s_add_u32 %s, %s, 0x%x" % (s(sPOS), s(sPOS), GSB))
    vC, vG16 = 4, 5
    A("v_and_b32 v%d, 15, v%d" % (vC, TMP)); A("v_lshrrev_b32 v%d, 4, v%d" % (vG16, TMP)); A("v_lshlrev_b32 v%d, 4, v%d" % (vG16, vG16))
    A("v_mov_b64 v[%d:%d], 0" % (TMP + 2, TMP + 3))
    A("s_cmp_gt_i32 %s, 0" % s(sDL)); A("s_cselect_b32 %s, 0, 2046" % s(pT))
    A("v_add_u32 v%d, %s, v%d" % (TMP + 4, s(pT), vC))
    A("s_abs_i32 %s, %s" % (s(pT + 1), s(sDL)))
    A("s_cmp_eq_u32 %s, 2" % s(pT + 1)); A("s_cselect_b32 %s, 3, 0" % s(pT + 2))
    A("s_cmp_eq_i32 %s, 1" % s(sDL)); A("s_cselect_b32 %s, 1, %s" % (s(pT + 2), s(pT + 2)))
    A("s_cmp_eq_i32 %s, -1" % s(sDL)); A("s_cselect_b32 %s, 2, %s" % (s(pT + 2), s(pT + 2)))
    A("v_lshlrev_b32 v%d, v%d, 1" % (TMP + 5, vC) if False else "v_mov_b32 v%d, 1" % (TMP + 5)); A("v_lshlrev_b32 v%d, v%d, v%d" % (TMP + 5, vC, TMP + 5))
    A("v_and_b32 v%d, %s, v%d" % (TMP + 5, s(pT + 2), TMP + 5)); A("v_cmp_ne_u32 vcc, 0, v%d" % (TMP + 5))
    A("v_mul_u32_u24 v%d, %d, v%d" % (TMP + 4, ROW, TMP + 4)); A("v_add_u32 v%d, v%d, v%d" % (TMP + 4, TMP + 4, vG16)); A("v_mov_b32 v%d, 0x40000000" % (TMP + 6))
    A("v_cndmask_b32 v%d, v%d, v%d, vcc" % (TMP + 4, TMP + 6, TMP + 4))
    A("buffer_store_dwordx2 %s, v%d, %s, %s offen %s" % (v(TMP + 2, 2), TMP + 4, s(pWS, 4), s(sPOS), st))
    if hook: hook(A)
    A("s_mov_b32 %s, %s" % (s(pS), s(sSET)))
    top = A.newlab("r4_top"); m0 = A.mark(); A.label(top)
    A("s_add_u32 %s, %s, 1" % (s(pT + 4), s(pS)))
    A("s_and_b32 %s, %s, 7" % (s(pT + 5), s(pS))); A("s_lshl_b32 %s, %s, 7" % (s(pT + 5), s(pT + 5))); A("s_add_u32 %s, %s, 0x%x" % (s(pT + 5), s(pT + 5), F_R3))
    wait_flags(A, vFl, s(pT + 5), s(pT + 4), fail, TMP, pend_sc=st)
    trace(A, 0)
    A("s_mul_i32 %s, %s, %d" % (s(pT), s(pS), 32 * ROW)); A("s_add_u32 %s, %s, 0x%x" % (s(pT), s(pT), TB))
    stage_rows(A, pT, VS, 0)
    A("s_waitcnt vmcnt(0)"); A("s_barrier")
    trace(A, 1)
    small_gemm(A, WREG, ACC, BF, vB0, 0, 1)
    A("s_nop 7")
    regs = [56 + i for i in range(8)]
    for r in regs: rb16(A, r)
    gelu(A, regs, TMP)
    for tt in range(2):
        x = 56 + 4 * tt
        A("v_cvt_pk_bf16_f32 v%d, v%d, v%d" % (TMP + 2 * tt, x, x + 1)); A("v_cvt_pk_bf16_f32 v%d, v%d, v%d" % (TMP + 2 * tt + 1, x + 2, x + 3))
        A("s_lshl_b32 %s, %s, 5" % (s(pT), s(pS))); A("s_add_i32 %s, %s, %s" % (s(pT), s(pT), s(sDL))); A("s_add_i32 %s, %s, %d" % (s(pT), s(pT), 16 * tt))
        A("v_add_u32 v%d, %s, v%d" % (TMP + 4, s(pT), vC))
        A("v_cmp_gt_u32 vcc, 2048, v%d" % (TMP + 4))
        A("v_mul_u32_u24 v%d, %d, v%d" % (TMP + 4, ROW, TMP + 4)); A("v_add_u32 v%d, v%d, v%d" % (TMP + 4, TMP + 4, vG16)); A("v_mov_b32 v%d, 0x40000000" % (TMP + 5))
        A("v_cndmask_b32 v%d, v%d, v%d, vcc" % (TMP + 4, TMP + 5, TMP + 4))
        A("buffer_store_dwordx2 %s, v%d, %s, %s offen %s" % (v(TMP + 2 * tt, 2), TMP + 4, s(pWS, 4), s(sPOS), st))
    A("s_add_u32 %s, %s, 1" % (s(pPEND), s(pS))); A("s_add_u32 %s, %s, %d" % (s(pS), s(pS), nsets))
    A("s_cmp_lt_u32 %s, %d" % (s(pS), nseg)); A("s_cbranch_scc1 %s" % top)
    m1 = A.mark()
    set_flag(A, s(pFOFF), s(pPEND), TMP + 8, sc=st)
    return (m0, m1)

def emit_r5(A, fail, nseg=64, st_in="sc1", nsets=2, hook=None):
    A.c("=== R5")
    sSET = 47
    A("s_lshl_b32 %s, %s, 2" % (s(pFOFF), s(pID))); A("s_add_u32 %s, %s, 0x%x" % (s(pFOFF), s(pFOFF), F_R5))
    A("s_cmp_ge_u32 %s, 9" % s(pID)); A("s_cselect_b32 %s, 1, 0" % s(sSET)); A("s_mul_i32 %s, %s, 9" % (s(pT), s(sSET))); A("s_sub_u32 %s, %s, %s" % (s(pID), s(pID), s(pT)))
    WREG = lambda i, ks: ('a', 4 * ks)
    vFl, vB0, vC, vRowG, VS, TMP = 1, 2, 4, 5, 6, 16
    BF = [[40, 44], [48, 52]]; ACC = lambda i, tt: 56 + 4 * tt; HN = 64
    load_srd(A, pW, "w2")
    A("s_lshl_b32 %s, %s, 7" % (s(pT), s(pID))); A("s_lshl_b32 %s, %s, 5" % (s(pT + 1), s(pWV)))
    load_w576(A, pW, pT, 1152, 128, 1, WREG, s(pT + 1), TMP)
    stage_consts(A, VS, vB0, TMP)
    A("v_and_b32 v%d, 63, v0" % TMP); A("v_min_u32 v%d, 17, v%d" % (vFl, TMP))
    sOWN, vTgt = 48, 15
    A("v_cmp_le_u32 vcc, 9, v%d" % vFl); A("s_cmp_eq_u32 %s, 1" % s(sSET)); A("s_cselect_b64 %s, vcc, 0" % s(sOWN, 2))
    A("s_not_b64 vcc, vcc"); A("s_cmp_eq_u32 %s, 0" % s(sSET)); A("s_cselect_b64 %s, vcc, %s" % (s(sOWN, 2), s(sOWN, 2)))
    A("v_lshlrev_b32 v%d, 2, v%d" % (vFl, vFl))
    sTl, sPOS = 44, 46
    A("s_lshl_b32 %s, %s, 2" % (s(sTl), s(pID))); A("s_add_u32 %s, %s, %s" % (s(sTl), s(sTl), s(pWV)))
    A("s_lshr_b32 %s, %s, 1" % (s(sPOS), s(sTl))); A("s_lshl_b32 %s, %s, 6" % (s(sPOS), s(sPOS)))
    A("s_and_b32 %s, %s, 1" % (s(pT), s(sTl))); A("s_lshl_b32 %s, %s, 3" % (s(pT), s(pT))); A("s_add_u32 %s, %s, %s" % (s(sPOS), s(sPOS), s(pT)))
    A("v_and_b32 v%d, 15, v%d" % (vC, TMP)); A("v_lshrrev_b32 v%d, 4, v%d" % (TMP + 1, TMP))
    A("v_mul_u32_u24 v%d, %d, v%d" % (vRowG, ROW, vC)); A("v_lshl_add_u32 v%d, v%d, 4, v%d" % (vRowG, TMP + 1, vRowG))
    L_ST = 36864
    if hook: hook(A)
    A("s_mov_b32 %s, %s" % (s(pS), s(sSET)))
    top = A.newlab("r5_top"); m0 = A.mark(); A.label(top)
    A("s_add_u32 %s, %s, 1" % (s(pT + 4), s(pS))); A("s_add_u32 %s, %s, 2" % (s(pT + 5), s(pS)))
    A("s_cmp_eq_u32 %s, 63" % s(pS)); A("s_cselect_b32 %s, %s, %s" % (s(pT + 5), s(pS), s(pT + 5)))
    A("v_mov_b32 v%d, %s" % (vTgt, s(pT + 4))); A("v_mov_b32 v%d, %s" % (TMP + 3, s(pT + 5)))
    A("v_cndmask_b32 v%d, v%d, v%d, %s" % (vTgt, TMP + 3, vTgt, s(sOWN, 2)))
    A("s_mov_b32 %s, 0x%x" % (s(pT + 5), F_R4))
    wait_flags(A, vFl, s(pT + 5), "v%d" % vTgt, fail, TMP, sc=st_in, pend_sc="sc1")
    trace(A, 0)
    A("s_mul_i32 %s, %s, %d" % (s(pT + 6), s(pS), 32 * ROW))
    A("s_add_u32 %s, %s, 0x%x" % (s(pT), s(pT + 6), GSB))
    stage_rows(A, pT, VS, 0, sc=st_in)
    A("s_add_u32 %s, %s, %s" % (s(pT + 6), s(pT + 6), s(sPOS)))
    for tt in range(2):
        A("s_add_u32 %s, %s, 0x%x" % (s(pT), s(pT + 6), HNB + tt * 16 * ROW))
        A("buffer_load_dwordx2 %s, v%d, %s, %s offen sc1" % (v(HN + 2 * tt, 2), vRowG, s(pWS, 4), s(pT)))
    A("s_waitcnt vmcnt(0)"); A("s_barrier")
    trace(A, 1)
    small_gemm(A, WREG, ACC, BF, vB0, 0, 1)
    A("s_nop 7")
    regs = [56 + i for i in range(8)]
    for r in regs: rb16(A, r)
    for tt in range(2): unpack4(A, HN + 2 * tt, TMP + 4 * tt)
    for i, r in enumerate(regs): A("v_add_f32 v%d, v%d, v%d" % (r, r, TMP + i))
    for r in regs: rb16(A, r)
    for tt in range(2):
        x = 56 + 4 * tt
        A("v_cvt_pk_bf16_f32 v%d, v%d, v%d" % (TMP + 2 * tt, x, x + 1)); A("v_cvt_pk_bf16_f32 v%d, v%d, v%d" % (TMP + 2 * tt + 1, x + 2, x + 3))
        A("s_add_u32 %s, %s, 0x%x" % (s(pT), s(pT + 6), X1B + tt * 16 * ROW))
        A("buffer_store_dwordx2 %s, v%d, %s, %s offen sc1" % (v(TMP + 2 * tt, 2), vRowG, s(pWS, 4), s(pT)))
    for tt in range(2):
        x = 56 + 4 * tt; a_, b_ = TMP + 8 + 2 * tt, TMP + 9 + 2 * tt
        A("v_add_f32 v%d, v%d, v%d" % (a_, x, x + 1)); A("v_mul_f32 v%d, v%d, v%d" % (b_, x, x))
        A("v_add_f32 v%d, v%d, v%d" % (a_, a_, x + 2)); A("v_fma_f32 v%d, v%d, v%d, v%d" % (b_, x + 1, x + 1, b_))
        A("v_add_f32 v%d, v%d, v%d" % (a_, a_, x + 3)); A("v_fma_f32 v%d, v%d, v%d, v%d" % (b_, x + 2, x + 2, b_))
        A("v_fma_f32 v%d, v%d, v%d, v%d" % (b_, x + 3, x + 3, b_))
    for sw in ("v_permlane16_swap_b32", "v_permlane32_swap_b32"):
        for k in range(4): A("v_mov_b32 v%d, v%d" % (TMP + 12 + k, TMP + 8 + k))
        A("s_nop 0")
        for k in range(4): A("%s v%d, v%d" % (sw, TMP + 8 + k, TMP + 12 + k))
        for k in range(4): A("v_add_f32 v%d, v%d, v%d" % (TMP + 8 + k, TMP + 8 + k, TMP + 12 + k))
    A("s_lshl_b32 %s, %s, 8" % (s(pT), s(pWV))); A("v_lshl_add_u32 v%d, v%d, 3, %s" % (TMP, vC, s(pT)))
    A("s_mov_b64 exec, 0xffff")
    A("ds_write_b64 v%d, %s offset:%d" % (TMP, v(TMP + 8, 2), L_ST)); A("ds_write_b64 v%d, %s offset:%d" % (TMP, v(TMP + 10, 2), L_ST + 128))
    A("s_mov_b64 exec, -1")
    A("s_waitcnt lgkmcnt(0)"); A("s_barrier")
    sk = A.newlab("r5_st")
    A("s_cmp_eq_u32 %s, 0" % s(pWV)); A("s_cbranch_scc0 %s" % sk)
    A("v_and_b32 v%d, 31, v0" % TMP); A("v_lshlrev_b32 v%d, 3, v%d" % (TMP, TMP))
    for w_ in range(4): A("ds_read_b64 %s, v%d offset:%d" % (v(TMP + 2 + 2 * w_, 2), TMP, L_ST + 256 * w_))
    A("s_waitcnt lgkmcnt(0)")
    A("v_add_f32 v%d, v%d, v%d" % (TMP + 2, TMP + 2, TMP + 4)); A("v_add_f32 v%d, v%d, v%d" % (TMP + 3, TMP + 3, TMP + 5))
    A("v_add_f32 v%d, v%d, v%d" % (TMP + 6, TMP + 6, TMP + 8)); A("v_add_f32 v%d, v%d, v%d" % (TMP + 7, TMP + 7, TMP + 9))
    A("v_add_f32 v%d, v%d, v%d" % (TMP + 2, TMP + 2, TMP + 6)); A("v_add_f32 v%d, v%d, v%d" % (TMP + 3, TMP + 3, TMP + 7))
    A("s_mul_i32 %s, %s, 9" % (s(pT), s(pS))); A("s_add_u32 %s, %s, %s" % (s(pT), s(pT), s(pID))); A("s_lshl_b32 %s, %s, 8" % (s(pT), s(pT))); A("s_add_u32 %s, %s, 0x%x" % (s(pT), s(pT), STB))
    A("s_mov_b32 exec_hi, 0")
    A("buffer_store_dwordx2 %s, v%d, %s, %s offen sc1" % (v(TMP + 2, 2), TMP, s(pWS, 4), s(pT)))
    A("s_mov_b64 exec, -1")
    A.label(sk)
    A("s_add_u32 %s, %s, 1" % (s(pPEND), s(pS))); A("s_add_u32 %s, %s, %d" % (s(pS), s(pS), nsets))
    A("s_cmp_lt_u32 %s, %d" % (s(pS), nseg)); A("s_cbranch_scc1 %s" % top)
    m1 = A.mark()
    set_flag(A, s(pFOFF), s(pPEND), TMP + 12)
    return (m0, m1)

def emit_r67(A, fail, nseg=64, nsets=2, hook=None):
    A.c("=== R67")
    TRV[0] = 210
    sN, sSET = 44, 45
    A("s_cmp_ge_u32 %s, 36" % s(pID)); A("s_cselect_b32 %s, 1, 0" % s(sSET))
    A("s_mul_i32 %s, %s, 36" % (s(pT), s(sSET))); A("s_sub_u32 %s, %s, %s" % (s(sN), s(pID), s(pT)))
    W3 = lambda i, ks: ('a', (i * 18 + ks) * 4)
    def W4(i, ks):
        k = i * 4 + ks
        return ('a', 144 + 4 * k) if k < 28 else ('v', 224 + 4 * (k - 28))
    vFl, vB0, vTok, vSt, vSt8, vL16, VS, TMP = 1, 2, 4, 5, 15, 16, 6, 20
    vTgt = 17
    CS, ST = 48, 56
    BF = [[60, 64], [68, 72]]
    ACC3 = lambda i, tt: 76 + 4 * (i * 2 + tt)
    OB = lambda tt, ks: 96 + 4 * (tt * 4 + ks)
    ACC4 = lambda i, tt: 128 + 4 * (i * 2 + tt)
    A("v_and_b32 v%d, 63, v0" % TMP); A("v_lshlrev_b32 v%d, 4, v%d" % (vL16, TMP))
    load_srd(A, pW, "w3")
    A("s_lshl_b32 %s, %s, 8" % (s(pT), s(sN))); A("s_lshl_b32 %s, %s, 6" % (s(pT + 1), s(pWV)))
    load_w576(A, pW, pT, 9216, 256, 2, W3, s(pT + 1), TMP)
    for i in range(4): A("v_mov_b32 v%d, 0x3f803f80" % (TMP + 8 + i))
    A("s_nop 1")
    for i in range(2):
        for ks in range(18):
            A("v_mfma_f32_16x16x32_bf16 %s, %s, %s, %s" % (v(CS + 4 * i, 4), R(W3(i, ks), 4), v(TMP + 8, 4), "0" if ks == 0 else v(CS + 4 * i, 4)))
    load_srd(A, pW, "w4")
    A("s_mul_i32 %s, %s, %d" % (s(pT), s(sN), 128 * 1152))
    dma_linear(A, pW, pT, 147456, 0, vL16)
    A("s_waitcnt vmcnt(0)"); A("s_barrier")
    A("s_mul_i32 %s, %s, 288" % (s(pT + 1), s(pWV)))
    load_k128_weights(A, TMP, W4, 1152, 0, s(pT + 1))
    A("s_barrier")
    stage_consts(A, VS, vB0, TMP)
    A("v_and_b32 v%d, 63, v0" % TMP)
    A("v_min_u32 v%d, 40, v%d" % (TMP + 1, TMP)); A("v_subrev_u32 v%d, 9, v%d" % (TMP + 2, TMP + 1)); A("v_lshlrev_b32 v%d, 2, v%d" % (TMP + 2, TMP + 2)); A("v_add_u32 v%d, 0x%x, v%d" % (TMP + 2, F_R8, TMP + 2))
    A("s_mul_i32 %s, %s, 36" % (s(pT), s(sSET))); A("s_add_u32 %s, %s, 0x%x" % (s(pT), s(pT), F_R5))
    A("v_lshl_add_u32 v%d, v%d, 2, %s" % (vFl, TMP + 1, s(pT))); A("v_cmp_gt_u32 %s, 9, v%d" % (s(60, 2), TMP + 1)); A("s_nop 1")
    A("v_cndmask_b32 v%d, v%d, v%d, %s" % (vFl, TMP + 2, vFl, s(60, 2)))
    A("v_and_b32 v%d, 15, v%d" % (TMP + 1, TMP)); A("v_lshrrev_b32 v%d, 4, v%d" % (TMP + 2, TMP))
    vTok9, vBP, vBP9, sLO8 = 200, 201, 202, 62
    pstore_consts(A, vTok, vTok9, vBP, vBP9, 36 * PROW, 204)
    A("s_mov_b32 %s, 0x00ff00ff" % s(sLO8)); A("s_mov_b32 %s, 0x00ff00ff" % s(sLO8 + 1))
    A("v_lshlrev_b32 v%d, 8, v%d" % (vSt, TMP + 2)); A("v_lshl_add_u32 v%d, v%d, 3, v%d" % (vSt, TMP + 1, vSt))
    A("v_lshlrev_b32 v%d, 3, v%d" % (vSt8, TMP + 1)); A("v_add_u32 v%d, 2048, v%d" % (vSt8, vSt8)); A("v_mov_b32 v%d, 0x40000000" % (TMP + 3))
    A("v_cmp_eq_u32 vcc, 0, v%d" % (TMP + 2)); A("s_nop 1"); A("v_cndmask_b32 v%d, v%d, v%d, vcc" % (vSt8, TMP + 3, vSt8))
    sOUT = 46
    A("s_mul_i32 %s, %s, 384" % (s(pT), s(pWV)))
    A("s_mul_i32 %s, %s, %d" % (s(sOUT), s(sN), PROW)); A("s_add_u32 %s, %s, %s" % (s(sOUT), s(sOUT), s(pT))); A("s_add_u32 %s, %s, 0x%x" % (s(sOUT), s(sOUT), P67))
    A("s_lshl_b32 %s, %s, 2" % (s(pFOFF), s(pID))); A("s_add_u32 %s, %s, 0x%x" % (s(pFOFF), s(pFOFF), F_R67))
    L_O, L_V = 0, 8192
    SR = 212
    vBc, vPA = 203, 204
    vBc, vPA, vPR = 204, 206, 207
    sBUF, sPRE, sNX = 47, 52, 53
    if hook: hook(A)
    A("s_mov_b32 %s, %s" % (s(pS), s(sSET))); A("s_mov_b32 %s, 16384" % s(sBUF)); A("s_mov_b32 %s, 0" % s(sPRE))
    def poll_regs(seg):
        A("s_add_u32 %s, %s, 1" % (s(pT + 4), s(seg)))
        A("s_max_u32 %s, %s, %d" % (s(pT + 5), s(seg), RING67 - 1)); A("s_sub_u32 %s, %s, %d" % (s(pT + 5), s(pT + 5), RING67 - 1))
        A("v_mov_b32 v%d, %s" % (vTgt, s(pT + 5))); A("v_mov_b32 v%d, %s" % (vPR, s(pT + 4)))
        A("v_cndmask_b32 v%d, v%d, v%d, %s" % (vTgt, vTgt, vPR, s(60, 2)))
        A("s_and_b32 %s, %s, %d" % (s(pT + 5), s(seg), RING67 - 1)); A("s_lshl_b32 %s, %s, 7" % (s(pT + 5), s(pT + 5)))
        A("v_mov_b32 v%d, %s" % (vPR, s(pT + 5))); A("v_cndmask_b32 v%d, v%d, 0, %s" % (vPR, vPR, s(60, 2)))
        A("v_add_u32 v%d, v%d, v%d" % (vPA, vFl, vPR))
    def fetch(seg, bufreg):
        A("s_mul_i32 %s, %s, %d" % (s(pT), s(seg), 32 * ROW)); A("s_add_u32 %s, %s, 0x%x" % (s(pT), s(pT), X1B))
        A("s_lshl_b32 %s, %s, 10" % (s(pT + 9), s(pWV))); A("s_add_u32 %s, %s, %s" % (s(pT + 9), s(pT + 9), s(bufreg)))
        for i in range(9):
            A("s_add_u32 m0, %s, %d" % (s(pT + 9), i * 4096)); A("s_nop 0")
            A("buffer_load_dwordx4 v%d, %s, %s offen sc1 lds" % (VS + i, s(pWS, 4), s(pT)))
        A("s_mul_i32 %s, %s, %d" % (s(pT), s(seg), 9 * 256)); A("s_add_u32 %s, %s, 0x%x" % (s(pT), s(pT), STB))
        for tt in range(2):
            A("buffer_load_dwordx2 %s, v%d, %s, %s offen offset:%d sc1" % (v(SR + 6 * tt, 2), vSt, s(pWS, 4), s(pT), 128 * tt))
            A("buffer_load_dwordx2 %s, v%d, %s, %s offen offset:%d sc1" % (v(SR + 6 * tt + 2, 2), vSt, s(pWS, 4), s(pT), 1024 + 128 * tt))
            A("buffer_load_dwordx2 %s, v%d, %s, %s offen offset:%d sc1" % (v(SR + 6 * tt + 4, 2), vSt8, s(pWS, 4), s(pT), 128 * tt))
    NST = 10
    top = A.newlab("r67_top"); pre = A.newlab("r67_pre"); go = A.newlab("r67_go")
    m0 = A.mark(); A.label(top)
    trace(A, 4)
    A("s_cmp_eq_u32 %s, 1" % s(sPRE)); A("s_cbranch_scc1 %s" % pre)
    poll_regs(pS)
    wait_flags(A, vPA, "0", "v%d" % vTgt, fail, TMP, pend_sc="sc1")
    trace(A, 0)
    fetch(pS, sBUF)
    A("s_waitcnt vmcnt(0)")
    A("s_branch %s" % go)
    A.label(pre)
    A("s_waitcnt vmcnt(%d)" % NST)
    A.label(go)
    A("s_barrier")
    trace(A, 1)
    A("s_add_u32 %s, %s, %d" % (s(sNX), s(pS), nsets))
    A("v_add_u32 v%d, %s, v%d" % (vBc, s(sBUF), vB0)); A("v_add_u32 v%d, %s, v%d" % (vBc + 1, s(sBUF), vB0 + 1))
    SA = Asm(); _A = A; A = SA
    for tt in range(2):
        b = SR + 6 * tt
        for k in range(2):
            A("v_add_f32 v%d, v%d, v%d" % (TMP + 6 * tt + k, b + k, b + 2 + k)); A("v_add_f32 v%d, v%d, v%d" % (TMP + 6 * tt + k, TMP + 6 * tt + k, b + 4 + k))
    st4 = [TMP, TMP + 1, TMP + 6, TMP + 7]
    for sw in ("v_permlane16_swap_b32", "v_permlane32_swap_b32"):
        for k in range(4): A("v_mov_b32 v%d, v%d" % (TMP + 12 + k, st4[k]))
        A("s_nop 0")
        for k in range(4): A("%s v%d, v%d" % (sw, st4[k], TMP + 12 + k))
        for k in range(4): A("v_add_f32 v%d, v%d, v%d" % (st4[k], st4[k], TMP + 12 + k))
    for tt in range(2):
        vsum, vsq = TMP + 6 * tt, TMP + 6 * tt + 1
        A("v_mul_f32 v%d, 0x%x, v%d" % (vsum, f2u(1.0 / 576), vsum)); A("v_mul_f32 v%d, 0x%x, v%d" % (vsq, f2u(1.0 / 576), vsq))
        A("v_fma_f32 v%d, -v%d, v%d, v%d" % (vsq, vsum, vsum, vsq)); A("v_max_f32 v%d, 0, v%d" % (vsq, vsq))
        rb16(A, vsum); rb16(A, vsq)
        A("v_add_f32 v%d, 0x%x, v%d" % (vsq, f2u(1e-5), vsq)); rb16(A, vsq)
        A("v_sqrt_f32 v%d, v%d" % (vsq, vsq)); A("s_nop 0"); rb16(A, vsq)
        A("v_rcp_f32 v%d, v%d" % (ST + 2 * tt, vsq)); A("v_mov_b32 v%d, v%d" % (ST + 2 * tt + 1, vsum))
    A = _A
    small_gemm(A, W3, ACC3, BF, vBc, 0, 2, fillers=list(SA.lines))
    trace(A, 5)
    A("s_nop 7")
    for tt in range(2):
        regs = []
        for i in range(2):
            for r in range(4):
                x = ACC3(i, tt) + r; regs.append(x)
                A("v_fma_f32 v%d, -v%d, v%d, v%d" % (x, ST + 2 * tt + 1, CS + 4 * i + r, x))
        for x in regs: A("v_mul_f32 v%d, v%d, v%d" % (x, x, ST + 2 * tt))
        for x in regs: rb16(A, x)
        gelu(A, regs, TMP)
        d = 92
        for q in range(4): A("v_cvt_pk_bf16_f32 v%d, v%d, v%d" % (d + q, regs[2 * q], regs[2 * q + 1]))
        A("s_lshl_b32 %s, %s, 10" % (s(pT), s(pWV))); A("v_add_u32 v%d, %s, v%d" % (TMP + 10, s(pT), vL16))
        A("ds_write_b128 v%d, %s offset:%d" % (TMP + 10, v(d, 4), L_O + tt * 4096))
        A("s_nop 1")
    A("s_waitcnt vmcnt(0) lgkmcnt(0)"); A("s_barrier")
    for ks in range(4):
        for tt in range(2): A("ds_read_b128 %s, v%d offset:%d" % (v(OB(tt, ks), 4), vL16, L_O + tt * 4096 + ks * 1024))
    poll_regs(sNX)
    pb = A.newlab("r67_pb"); pb2 = A.newlab("r67_pb2")
    A("s_cmp_eq_u32 %s, 0" % s(pWV)); A("s_cbranch_scc0 %s" % pb)
    A("s_cmp_eq_u32 %s, 0" % s(pPEND)); A("s_cbranch_scc1 %s" % pb2)
    A("v_mov_b32 v%d, %s" % (TMP, s(pPEND))); A("buffer_store_dword v%d, off, %s, %s sc1" % (TMP, s(pWS, 4), s(pFOFF)))
    A.label(pb2)
    A("buffer_load_dword v%d, v%d, %s, 0 offen sc1" % (vPR, vPA, s(pWS, 4)))
    A.label(pb)
    A("s_mov_b32 %s, 0" % s(pPEND))
    k128_gemm(A, W4, OB, ACC4, lambda ks: A("s_waitcnt lgkmcnt(%d)" % (6 - 2 * ks)))
    vw = A.newlab("r67_vw")
    A("s_cmp_eq_u32 %s, 0" % s(pWV)); A("s_cbranch_scc0 %s" % vw)
    A("s_waitcnt vmcnt(0)")
    A("v_cmp_gt_u32 vcc, v%d, v%d" % (vTgt, vPR))
    A("s_cmp_lt_u32 %s, %d" % (s(sNX), nseg)); A("s_cselect_b32 %s, 1, 0" % s(pT + 6))
    A("s_cmp_eq_u64 vcc, 0"); A("s_cselect_b32 %s, %s, 0" % (s(pT + 6), s(pT + 6)))
    A("v_mov_b32 v%d, %s" % (vPR, s(pT + 6))); A("v_mov_b32 v%d, %d" % (vPA, L_V))
    A("ds_write_b32 v%d, v%d" % (vPA, vPR))
    A("s_waitcnt lgkmcnt(0)")
    A.label(vw)
    A("s_barrier")
    A("v_mov_b32 v%d, %d" % (vPA, L_V)); A("ds_read_b32 v%d, v%d" % (vPR, vPA))
    A("s_sub_u32 %s, %d, %s" % (s(sBUF), 16384 + 53248, s(sBUF)))
    A("s_waitcnt lgkmcnt(0)"); A("v_readfirstlane_b32 %s, v%d" % (s(sPRE), vPR))
    nf = A.newlab("r67_nf")
    A("s_nop 0")
    A("s_cmp_eq_u32 %s, 1" % s(sPRE)); A("s_cbranch_scc0 %s" % nf)
    A.c("lint-skip-begin")
    fetch(sNX, sBUF)
    A.c("lint-skip-end")
    A.label(nf)
    trace(A, 2)
    A("s_nop 7")
    A("s_and_b32 %s, %s, %d" % (s(pT), s(pS), RING67 - 1)); A("s_mul_i32 %s, %s, %d" % (s(pT), s(pT), 32 * 36 * PROW)); A("s_add_u32 %s, %s, %s" % (s(pT), s(pT), s(sOUT)))
    pstore(A, ACC4, vTok, vTok9, vBP, vBP9, pT, TMP, 36 * PROW, sLO8)
    trace(A, 6)
    A("s_add_u32 %s, %s, 1" % (s(pPEND), s(pS)))
    A("s_mov_b32 %s, %s" % (s(pS), s(sNX)))
    A("s_cmp_lt_u32 %s, %d" % (s(pS), nseg)); A("s_cbranch_scc1 %s" % top)
    m1 = A.mark()
    set_flag(A, s(pFOFF), s(pPEND), TMP)
    return (m0, m1)

def emit_r8(A, fail, nseg=64, nsets=2):
    A.c("=== R8")
    TRV[0] = 250
    vM, vX, vX2, vSm, vSx, vNm, vNx, vFl = 1, 2, 3, 4, 5, 6, 7, 8
    SEL, DM, DX, TMP = 12, 16, 20, 32
    HQ = [24, 152]; XQ = [28, 156]; LD = [48, 96]
    OUT = 48
    load_srd(A, OUT, "out")
    emit_sel(A, SEL, TMP)
    reduce_rows_consts(A, vM, vX, vX2, 36, TMP)
    rowpos_consts(A, vSm, vSx, vNm, vNx, TMP)
    A("v_and_b32 v%d, 63, v0" % TMP); A("v_min_u32 v%d, 35, v%d" % (vFl, TMP)); A("v_lshlrev_b32 v%d, 2, v%d" % (vFl, vFl))
    sIN, sROW, sFL = 44, 45, 46
    A("s_lshl_b32 %s, %s, 2" % (s(pFOFF), s(pID))); A("s_add_u32 %s, %s, 0x%x" % (s(pFOFF), s(pFOFF), F_R8))
    A("s_mov_b32 %s, 0" % s(pS))
    top = A.newlab("r8_top"); m0 = A.mark(); A.label(top)
    A("s_lshl_b32 %s, %s, 5" % (s(sROW), s(pS))); A("s_lshl_b32 %s, %s, 1" % (s(pT), s(pID))); A("s_add_u32 %s, %s, %s" % (s(sROW), s(sROW), s(pT))); A("s_mul_i32 %s, %s, %d" % (s(sROW), s(sROW), ROW))
    if nsets == 2:
        A("s_and_b32 %s, %s, 1" % (s(sFL), s(pS))); A("s_mul_i32 %s, %s, 144" % (s(sFL), s(sFL))); A("s_add_u32 %s, %s, 0x%x" % (s(sFL), s(sFL), F_R67))
    else: A("s_mov_b32 %s, 0x%x" % (s(sFL), F_R67))
    A("s_add_u32 %s, %s, 1" % (s(pT + 4), s(pS)))
    wait_flags(A, vFl, s(sFL), s(pT + 4), fail, TMP, pend_sc="sc1")
    trace(A, 0)
    A("s_and_b32 %s, %s, %d" % (s(sIN), s(pS), RING - 1)); A("s_mul_i32 %s, %s, %d" % (s(sIN), s(sIN), 32 * 36 * ROW)); A("s_mul_i32 %s, %s, %d" % (s(pT), s(pID), 2 * 36 * ROW))
    A("s_add_u32 %s, %s, %s" % (s(sIN), s(sIN), s(pT))); A("s_mul_i32 %s, %s, 288" % (s(pT), s(pWV))); A("s_add_u32 %s, %s, %s" % (s(sIN), s(sIN), s(pT)))
    A("s_add_u32 %s, %s, 0x%x" % (s(sIN), s(sIN), P67))
    for k in range(2):
        A("s_add_u32 %s, %s, 0x%x" % (s(pT), s(sROW), HB + k * ROW)); A("s_add_u32 %s, %s, 0x%x" % (s(pT + 1), s(sROW), X1B + k * ROW))
        A("buffer_load_dwordx2 %s, v%d, %s, %s offen sc1" % (v(HQ[k], 2), vSm, s(pWS, 4), s(pT))); A("buffer_load_dwordx2 %s, v%d, %s, %s offen sc1" % (v(HQ[k] + 2, 2), vSx, s(pWS, 4), s(pT)))
        A("buffer_load_dwordx2 %s, v%d, %s, %s offen sc1" % (v(XQ[k], 2), vSm, s(pWS, 4), s(pT + 1))); A("buffer_load_dwordx2 %s, v%d, %s, %s offen sc1" % (v(XQ[k] + 2, 2), vSx, s(pWS, 4), s(pT + 1)))
        if k == 1: A("s_add_u32 %s, %s, %d" % (s(sIN), s(sIN), 36 * ROW))
        reduce_issue(A, sIN, 36, vM, vX, vX2, LD[k])
    for k in range(2):
        reduce_consume(A, 36, LD[k], SEL, DM, DX, younger=(15 if k == 0 else 2))
        vals = [DM + r for r in range(4)] + [DX + r for r in range(4)]
        for r in vals: rb16(A, r)
        unpack4(A, XQ[k], TMP); unpack4(A, XQ[k] + 2, TMP + 4)
        for i, r in enumerate(vals): A("v_add_f32 v%d, v%d, v%d" % (r, r, TMP + i))
        for r in vals: rb16(A, r)
        unpack4(A, HQ[k], TMP); unpack4(A, HQ[k] + 2, TMP + 4)
        for i, r in enumerate(vals): A("v_add_f32 v%d, v%d, v%d" % (r, r, TMP + i))
        A("v_cvt_pk_bf16_f32 v%d, v%d, v%d" % (TMP + 8, DM, DM + 1)); A("v_cvt_pk_bf16_f32 v%d, v%d, v%d" % (TMP + 9, DM + 2, DM + 3))
        A("v_cvt_pk_bf16_f32 v%d, v%d, v%d" % (TMP + 10, DX, DX + 1)); A("v_cvt_pk_bf16_f32 v%d, v%d, v%d" % (TMP + 11, DX + 2, DX + 3))
        A("s_add_u32 %s, %s, %d" % (s(pT), s(sROW), k * ROW))
        A("buffer_store_dwordx2 %s, v%d, %s, %s offen" % (v(TMP + 8, 2), vNm, s(OUT, 4), s(pT)))
        A("buffer_store_dwordx2 %s, v%d, %s, %s offen" % (v(TMP + 10, 2), vNx, s(OUT, 4), s(pT)))
    trace(A, 1)
    A("s_add_u32 %s, %s, 1" % (s(pS), s(pS))); A("s_mov_b32 %s, %s" % (s(pPEND), s(pS)))
    A("s_cmp_lt_u32 %s, %d" % (s(pS), nseg)); A("s_cbranch_scc1 %s" % top)
    m1 = A.mark()
    A("s_waitcnt vmcnt(0)")
    trace(A, 3, 0)
    return (m0, m1)

def rw_consts(A, nprod, vM, vX, SEL, SEL2, vS, vN, tmp):
    emit_sel(A, SEL, tmp)
    A("s_nop 1")
    for q in range(4): A("v_mov_b32_dpp v%d, v%d row_shr:8 row_mask:0xf bank_mask:0xf bound_ctrl:1" % (SEL2 + q, SEL + q))
    A("v_and_b32 v%d, 63, v0" % tmp); A("v_lshrrev_b32 v%d, 4, v%d" % (tmp + 1, tmp)); A("v_and_b32 v%d, 15, v%d" % (tmp + 2, tmp))
    A("v_mul_u32_u24 v%d, %d, v%d" % (vM, PROW, tmp + 1)); A("v_lshl_add_u32 v%d, v%d, 4, v%d" % (vM, tmp + 2, vM))
    A("v_lshrrev_b32 v%d, 3, v%d" % (tmp + 3, tmp + 2)); A("v_lshl_add_u32 v%d, v%d, 2, v%d" % (vX, tmp + 3, tmp + 1)); A("v_mul_u32_u24 v%d, %d, v%d" % (vX, PROW, vX))
    A("v_bfe_u32 v%d, v%d, 1, 2" % (tmp + 4, tmp + 2)); A("v_mul_u32_u24 v%d, 384, v%d" % (tmp + 4, tmp + 4)); A("v_add_u32 v%d, v%d, v%d" % (vX, vX, tmp + 4))
    A("v_and_b32 v%d, 1, v%d" % (tmp + 4, tmp + 2)); A("v_lshl_add_u32 v%d, v%d, 4, v%d" % (vX, tmp + 4, vX)); A("v_add_u32 v%d, 256, v%d" % (vX, vX))
    for k in range(3):
        T_, gq = tmp + 3, tmp + 5
        A("v_and_b32 v%d, 1, v%d" % (tmp + 4, tmp + 1))
        if k < 2:
            A("v_lshrrev_b32 v%d, 1, v%d" % (T_, tmp + 1)); A("v_add_u32 v%d, %d, v%d" % (T_, 2 * k, T_)); A("v_mul_u32_u24 v%d, 9, v%d" % (T_, T_))
            A("v_lshrrev_b32 v%d, 2, v%d" % (gq, tmp + 2)); A("v_lshl_add_u32 v%d, v%d, 1, v%d" % (T_, gq, T_)); A("v_add_u32 v%d, v%d, v%d" % (T_, T_, tmp + 4))
            A("v_and_b32 v%d, 3, v%d" % (gq, tmp + 2))
        else:
            A("v_bfe_u32 v%d, v%d, 1, 2" % (T_, tmp + 2)); A("v_mul_u32_u24 v%d, 9, v%d" % (T_, T_)); A("v_add_u32 v%d, 8, v%d" % (T_, T_))
            A("v_and_b32 v%d, 1, v%d" % (gq, tmp + 2)); A("v_lshl_add_u32 v%d, v%d, 1, v%d" % (gq, gq, tmp + 4))
        A("v_lshrrev_b32 v%d, 1, v%d" % (vS[k], T_)); A("v_lshlrev_b32 v%d, 6, v%d" % (vS[k], vS[k])); A("v_lshl_add_u32 v%d, v%d, 4, v%d" % (vS[k], gq, vS[k]))
        A("v_and_b32 v%d, 1, v%d" % (tmp + 6, T_)); A("v_lshl_add_u32 v%d, v%d, 3, v%d" % (vS[k], tmp + 6, vS[k]))
        A("v_lshlrev_b32 v%d, 5, v%d" % (vN[k], T_)); A("v_lshl_add_u32 v%d, v%d, 3, v%d" % (vN[k], gq, vN[k]))
        if k == 2:
            A("v_cmp_gt_u32 vcc, 8, v%d" % (tmp + 2)); A("v_cmp_gt_u32 %s, 2, v%d" % (s(pT + 10, 2), tmp + 1)); A("s_nop 1")
            A("s_and_b64 vcc, vcc, %s" % s(pT + 10, 2)); A("v_mov_b32 v%d, 0x40000000" % (tmp + 6)); A("s_nop 0")
            A("v_cndmask_b32 v%d, v%d, v%d, vcc" % (vS[k], tmp + 6, vS[k])); A("v_cndmask_b32 v%d, v%d, v%d, vcc" % (vN[k], tmp + 6, vN[k]))

def rw_loads(nprod):
    nm = nprod // 4; nx = (nprod + 7) // 8
    return [("m", grp, n) for grp in range(4) for n in range(nm)] + [("x", 0, n) for n in range(nx)]
def rw_stream(A, sbases, nprod, vM, vX, vX9, SEL, SEL2, D, after_token, NS=56, pre=0):
    one = rw_loads(nprod)
    loads = [(k,) + l for k in range(len(sbases)) for l in one]
    n_all = len(loads)
    q = [None] * pre
    def issue(i):
        k, kind, grp, n = loads[i]
        if kind == "m":
            A("s_add_u32 %s, %s, %d" % (s(pT + 8), s(sbases[k]), n * 4 * PROW + grp * 384)); va = vM
        else:
            A("s_add_u32 %s, %s, %d" % (s(pT + 8), s(sbases[k]), n * 8 * PROW)); va = vX if (n + 1) * 8 <= nprod else vX9
        A("buffer_load_dwordx4 %s, v%d, %s, %s offen sc1" % (a(4 * (i % NS), 4), va, s(pWS, 4), s(pT + 8)))
        q.append(i)
    nxt = 0
    while nxt < min(NS, n_all) and len(q) < 60: issue(nxt); nxt += 1
    for i in range(n_all):
        pos = q.index(i)
        A("s_waitcnt vmcnt(%d)" % min(63, len(q) - 1 - pos)); del q[:pos + 1]
        k, kind, grp, n = loads[i]
        if kind == "m":
            d = D[grp >> 1]; sel = SEL if grp % 2 == 0 else SEL2; first = (grp % 2 == 0 and n == 0)
        else:
            d = D[2]; sel = SEL; first = (n == 0)
        A("v_mfma_f32_16x16x32_bf16 %s, %s, %s, %s" % (v(d, 4), v(sel, 4), a(4 * (i % NS), 4), "0" if first else v(d, 4)))
        while nxt < n_all and len(q) < 60 and nxt < i + 1 + NS - 1: issue(nxt); nxt += 1
        if i + 1 == n_all or loads[i + 1][0] != k:
            A("s_nop 7")
            for r in range(4): A("v_add_f32_dpp v%d, v%d, v%d row_shl:8 row_mask:0xf bank_mask:0xf bound_ctrl:1" % (D[2] + r, D[2] + r, D[2] + r))
            nst = after_token(k)
            q.extend([None] * nst)

def ln_wave(A, vals, t, vmask):
    vsum, vsq = t, t + 1
    A("v_add_f32 v%d, v%d, v%d" % (vsum, vals[0], vals[1])); A("v_mul_f32 v%d, v%d, v%d" % (vsq, vals[0], vals[0]))
    A("v_fma_f32 v%d, v%d, v%d, v%d" % (vsq, vals[1], vals[1], vsq))
    for r in vals[2:]:
        A("v_add_f32 v%d, v%d, v%d" % (vsum, vsum, r)); A("v_fma_f32 v%d, v%d, v%d, v%d" % (vsq, r, r, vsq))
    A("s_nop 0")
    wave_sum2(A, vsum, vsq, t + 2)
    A("v_mul_f32 v%d, 0x%x, v%d" % (vsum, f2u(1.0 / 576), vsum)); A("v_mul_f32 v%d, 0x%x, v%d" % (vsq, f2u(1.0 / 576), vsq))
    A("v_fma_f32 v%d, -v%d, v%d, v%d" % (vsq, vsum, vsum, vsq)); A("v_max_f32 v%d, 0, v%d" % (vsq, vsq))
    rb16(A, vsum); rb16(A, vsq)
    A("v_add_f32 v%d, 0x%x, v%d" % (vsq, f2u(1e-5), vsq)); rb16(A, vsq)
    A("v_sqrt_f32 v%d, v%d" % (vsq, vsq)); A("s_nop 0"); rb16(A, vsq)
    A("v_rcp_f32 v%d, v%d" % (vsq, vsq))
    for r in vals: A("v_sub_f32 v%d, v%d, v%d" % (r, r, vsum))
    for r in vals: rb16(A, r)
    for r in vals: A("v_mul_f32 v%d, v%d, v%d" % (r, r, vsq))
    for r in vals: rb16(A, r)
    A("v_cmp_gt_u32 vcc, 0x40000000, v%d" % vmask); A("s_nop 1")
    for r in vals[8:]: A("v_cndmask_b32 v%d, 0, v%d, vcc" % (r, r))

def wave_flag(A, soff, valreg, tmpv):
    A("s_waitcnt vmcnt(0)")
    A("v_mov_b32 v%d, %s" % (tmpv, valreg))
    A("buffer_store_dword v%d, off, %s, %s sc1" % (tmpv, s(pWS, 4), soff))

def emit_r3w(A, fail, nseg=64, hook=None):
    A.c("=== R3 (wave independent)")
    TRV[0] = 250
    vM, vX, vFl = 1, 2, 3
    vS, vN = [4, 5, 6], [7, 8, 9]
    SEL, SEL2, TMP = 12, 16, 20
    D = [36, 40, 44]; XQ = 48; LD = 56
    load_srd(A, pW, "x")
    rw_consts(A, 32, vM, vX, SEL, SEL2, vS, vN, TMP)
    A("v_and_b32 v%d, 63, v0" % TMP); A("v_min_u32 v%d, 31, v%d" % (vFl, TMP)); A("v_lshlrev_b32 v%d, 2, v%d" % (vFl, vFl))
    sIN, sROW, sFL = 44, 45, 46
    A("s_and_b32 %s, %s, 1" % (s(sFL), s(pWV))); A("s_lshl_b32 %s, %s, 7" % (s(sFL), s(sFL))); A("s_add_u32 %s, %s, 0x%x" % (s(sFL), s(sFL), F_R12))
    A("s_lshl_b32 %s, %s, 2" % (s(pFOFF), s(pID))); A("s_add_u32 %s, %s, %s" % (s(pFOFF), s(pFOFF), s(pWV))); A("s_lshl_b32 %s, %s, 2" % (s(pFOFF), s(pFOFF))); A("s_add_u32 %s, %s, 0x%x" % (s(pFOFF), s(pFOFF), F_R3))
    if hook: hook(A)
    A("s_mov_b32 %s, %s" % (s(pS), s(pWV))); A("s_mov_b32 %s, 0x07060302" % s(pT + 14))
    vals = [D[k] + r for k in range(3) for r in range(4)]
    top = A.newlab("r3_top"); m0 = A.mark(); A.label(top)
    A("s_lshl_b32 %s, %s, 5" % (s(sROW), s(pS))); A("s_add_u32 %s, %s, %s" % (s(sROW), s(sROW), s(pID))); A("s_mul_i32 %s, %s, %d" % (s(sROW), s(sROW), ROW))
    for k in range(3): A("buffer_load_dwordx2 %s, v%d, %s, %s offen" % (v(XQ + 2 * k, 2), vN[k], s(pW, 4), s(sROW)))
    A("s_add_u32 %s, %s, 1" % (s(pT + 4), s(pS)))
    wait_flags(A, vFl, s(sFL), s(pT + 4), fail, TMP)
    trace(A, 0, 60)
    A("s_and_b32 %s, %s, %d" % (s(sIN), s(pS), RING - 1)); A("s_mul_i32 %s, %s, %d" % (s(sIN), s(sIN), 32 * 32 * PROW)); A("s_mul_i32 %s, %s, %d" % (s(pT), s(pID), 32 * PROW))
    A("s_add_u32 %s, %s, %s" % (s(sIN), s(sIN), s(pT))); A("s_add_u32 %s, %s, 0x%x" % (s(sIN), s(sIN), P12))
    rw_stream(A, [sIN], 32, vM, vX, None, SEL, SEL2, D, lambda k: 0)
    trace(A, 1, 60)
    A("v_cmp_gt_u32 vcc, 0x40000000, v%d" % vS[2]); A("s_nop 1")
    for r in vals[8:]: A("v_cndmask_b32 v%d, 0, v%d, vcc" % (r, r))
    for r in vals: rb16(A, r)
    for k in range(3): unpack4(A, XQ + 2 * k, TMP + 4 * k)
    for i, r in enumerate(vals): A("v_add_f32 v%d, v%d, v%d" % (r, r, TMP + i))
    for r in vals: rb16(A, r)
    def store_row(base):
        A("s_add_u32 %s, %s, 0x%x" % (s(pT + 8), s(sROW), base))
        for k in range(3):
            A("v_perm_b32 v%d, v%d, v%d, %s" % (TMP + 2 * k, D[k] + 1, D[k], s(pT + 14))); A("v_perm_b32 v%d, v%d, v%d, %s" % (TMP + 2 * k + 1, D[k] + 3, D[k] + 2, s(pT + 14)))
            A("buffer_store_dwordx2 %s, v%d, %s, %s offen sc1" % (v(TMP + 2 * k, 2), vS[k], s(pWS, 4), s(pT + 8)))
    store_row(HB)
    ln_wave(A, vals, TMP + 8, vS[2]); store_row(HNB)
    ln_wave(A, vals, TMP + 8, vS[2]); store_row(TB)
    trace(A, 2, 60)
    A("s_add_u32 %s, %s, 1" % (s(pT + 4), s(pS)))
    wave_flag(A, s(pFOFF), s(pT + 4), TMP)
    A("s_add_u32 %s, %s, 4" % (s(pS), s(pS)))
    A("s_cmp_lt_u32 %s, %d" % (s(pS), nseg)); A("s_cbranch_scc1 %s" % top)
    m1 = A.mark()
    trace(A, 3, 0)
    return (m0, m1)

def emit_r8w(A, fail, nseg=64):
    A.c("=== R8 (wave independent)")
    TRV[0] = 250
    vM, vX, vX9, vFl = 1, 2, 10, 3
    vS, vN = [4, 5, 6], [7, 8, 9]
    SEL, SEL2, TMP = 12, 16, 20
    D = [36, 40, 44]; HQ, XQ, LD = 48, 152, 56
    OUT = 48
    load_srd(A, OUT, "out")
    rw_consts(A, 36, vM, vX, SEL, SEL2, vS, vN, TMP)
    A("v_and_b32 v%d, 8, v0" % TMP); A("v_mov_b32 v%d, 0x40000000" % (TMP + 1)); A("v_cmp_eq_u32 vcc, 0, v%d" % TMP); A("s_nop 1")
    A("v_cndmask_b32 v%d, v%d, v%d, vcc" % (vX9, TMP + 1, vX))
    A("v_and_b32 v%d, 63, v0" % TMP); A("v_min_u32 v%d, 35, v%d" % (vFl, TMP)); A("v_lshlrev_b32 v%d, 2, v%d" % (vFl, vFl))
    sIN, sROW, sFL = 44, 45, 46
    A("s_and_b32 %s, %s, 1" % (s(sFL), s(pWV))); A("s_mul_i32 %s, %s, 144" % (s(sFL), s(sFL))); A("s_add_u32 %s, %s, 0x%x" % (s(sFL), s(sFL), F_R67))
    A("s_lshl_b32 %s, %s, 2" % (s(pFOFF), s(pID))); A("s_add_u32 %s, %s, %s" % (s(pFOFF), s(pFOFF), s(pWV))); A("s_lshl_b32 %s, %s, 2" % (s(pFOFF), s(pFOFF))); A("s_add_u32 %s, %s, 0x%x" % (s(pFOFF), s(pFOFF), F_R8))
    A("s_mov_b32 %s, %s" % (s(pS), s(pWV)))
    vals = [D[k] + r for k in range(3) for r in range(4)]
    top = A.newlab("r8_top"); m0 = A.mark(); A.label(top)
    A("s_add_u32 %s, %s, 1" % (s(pT + 4), s(pS)))
    wait_flags(A, vFl, s(sFL), s(pT + 4), fail, TMP)
    trace(A, 0, 60)
    sROW2, sIN2 = 47, 52
    HQ2, XQ2 = [HQ, 160], [XQ, 166]
    for k2 in range(2):
        sr, si = (sROW, sROW2)[k2], (sIN, sIN2)[k2]
        A("s_lshl_b32 %s, %s, 5" % (s(sr), s(pS))); A("s_lshl_b32 %s, %s, 1" % (s(pT), s(pID))); A("s_add_u32 %s, %s, %s" % (s(sr), s(sr), s(pT)))
        A("s_add_u32 %s, %s, %d" % (s(sr), s(sr), k2)); A("s_mul_i32 %s, %s, %d" % (s(sr), s(sr), ROW))
        A("s_add_u32 %s, %s, 0x%x" % (s(pT), s(sr), HB)); A("s_add_u32 %s, %s, 0x%x" % (s(pT + 1), s(sr), X1B))
        for k in range(3):
            A("buffer_load_dwordx2 %s, v%d, %s, %s offen sc1" % (v(HQ2[k2] + 2 * k, 2), vS[k], s(pWS, 4), s(pT)))
            A("buffer_load_dwordx2 %s, v%d, %s, %s offen sc1" % (v(XQ2[k2] + 2 * k, 2), vS[k], s(pWS, 4), s(pT + 1)))
        A("s_and_b32 %s, %s, %d" % (s(si), s(pS), RING - 1)); A("s_mul_i32 %s, %s, %d" % (s(si), s(si), 32 * 36 * PROW))
        A("s_lshl_b32 %s, %s, 1" % (s(pT), s(pID))); A("s_add_u32 %s, %s, %d" % (s(pT), s(pT), k2)); A("s_mul_i32 %s, %s, %d" % (s(pT), s(pT), 36 * PROW))
        A("s_add_u32 %s, %s, %s" % (s(si), s(si), s(pT))); A("s_add_u32 %s, %s, 0x%x" % (s(si), s(si), P67))
    A("s_waitcnt vmcnt(6)") if False else None
    def fin(k2):
        for r in vals: rb16(A, r)
        for k in range(3): unpack4(A, XQ2[k2] + 2 * k, TMP + 4 * k)
        for i, r in enumerate(vals): A("v_add_f32 v%d, v%d, v%d" % (r, r, TMP + i))
        for r in vals: rb16(A, r)
        for k in range(3): unpack4(A, HQ2[k2] + 2 * k, TMP + 4 * k)
        for i, r in enumerate(vals): A("v_add_f32 v%d, v%d, v%d" % (r, r, TMP + i))
        for k in range(3):
            A("v_cvt_pk_bf16_f32 v%d, v%d, v%d" % (TMP + 12 + 2 * k - 12 + 0, D[k], D[k] + 1)) if False else None
        for k in range(3):
            A("v_cvt_pk_bf16_f32 v%d, v%d, v%d" % (TMP + 2 * k, D[k], D[k] + 1)); A("v_cvt_pk_bf16_f32 v%d, v%d, v%d" % (TMP + 2 * k + 1, D[k] + 2, D[k] + 3))
            A("buffer_store_dwordx2 %s, v%d, %s, %s offen" % (v(TMP + 2 * k, 2), vN[k], s(OUT, 4), s((sROW, sROW2)[k2])))
        return 3
    rw_stream(A, [sIN, sIN2], 36, vM, vX, vX9, SEL, SEL2, D, fin, pre=12)
    trace(A, 1, 60)
    A("s_add_u32 %s, %s, 1" % (s(pT + 4), s(pS)))
    A("v_mov_b32 v%d, %s" % (TMP + 8, s(pT + 4)))
    A("buffer_store_dword v%d, off, %s, %s sc1" % (TMP + 8, s(pWS, 4), s(pFOFF)))
    A("s_add_u32 %s, %s, 4" % (s(pS), s(pS)))
    A("s_cmp_lt_u32 %s, %d" % (s(pS), nseg)); A("s_cbranch_scc1 %s" % top)
    m1 = A.mark()
    A("s_waitcnt vmcnt(0)")
    trace(A, 3, 0)
    return (m0, m1)


KLAG = 8
def emit_r38(A, fail, nseg=64):
    A.c("=== R3 + R8 (wave independent)")
    TRV[0] = 250
    vM, vX, vX9, vFl3, vFl8 = 1, 2, 10, 3, 11
    vS, vN = [4, 5, 6], [7, 8, 9]
    SEL, SEL2, TMP = 12, 16, 20
    D = [36, 40, 44]; XQ, HQ = 48, 54
    OUT = 48
    load_srd(A, pW, "x"); load_srd(A, OUT, "out")
    rw_consts(A, 36, vM, vX, SEL, SEL2, vS, vN, TMP)
    A("v_and_b32 v%d, 8, v0" % TMP); A("v_mov_b32 v%d, 0x40000000" % (TMP + 1)); A("v_cmp_eq_u32 vcc, 0, v%d" % TMP); A("s_nop 1")
    A("v_cndmask_b32 v%d, v%d, v%d, vcc" % (vX9, TMP + 1, vX))
    A("v_and_b32 v%d, 63, v0" % TMP); A("v_min_u32 v%d, 31, v%d" % (vFl3, TMP)); A("v_lshlrev_b32 v%d, 2, v%d" % (vFl3, vFl3))
    A("v_min_u32 v%d, 35, v%d" % (vFl8, TMP)); A("v_lshlrev_b32 v%d, 2, v%d" % (vFl8, vFl8))
    sIN, sROW, sFL3, sFL8, sFO8, sS8 = 44, 45, 46, 47, 52, 53
    A("s_and_b32 %s, %s, 1" % (s(pT), s(pWV)))
    A("s_lshl_b32 %s, %s, 7" % (s(sFL3), s(pT))); A("s_add_u32 %s, %s, 0x%x" % (s(sFL3), s(sFL3), F_R12))
    A("s_mul_i32 %s, %s, 144" % (s(sFL8), s(pT))); A("s_add_u32 %s, %s, 0x%x" % (s(sFL8), s(sFL8), F_R67))
    A("s_lshl_b32 %s, %s, 2" % (s(pT), s(pID))); A("s_add_u32 %s, %s, %s" % (s(pT), s(pT), s(pWV))); A("s_lshl_b32 %s, %s, 2" % (s(pT), s(pT)))
    A("s_add_u32 %s, %s, 0x%x" % (s(pFOFF), s(pT), F_R3)); A("s_add_u32 %s, %s, 0x%x" % (s(sFO8), s(pT), F_R8))
    A("s_mov_b32 %s, %s" % (s(pS), s(pWV))); A("s_mov_b32 %s, 0x07060302" % s(pT + 14))
    vals = [D[k] + r for k in range(3) for r in range(4)]
    top = A.newlab("r38_top"); no3 = A.newlab("r38_no3"); no8 = A.newlab("r38_no8")
    m0 = A.mark(); A.label(top)
    A("s_cmp_lt_u32 %s, %d" % (s(pS), nseg)); A("s_cbranch_scc0 %s" % no3)
    A("s_lshl_b32 %s, %s, 5" % (s(sROW), s(pS))); A("s_add_u32 %s, %s, %s" % (s(sROW), s(sROW), s(pID))); A("s_mul_i32 %s, %s, %d" % (s(sROW), s(sROW), ROW))
    for k in range(3): A("buffer_load_dwordx2 %s, v%d, %s, %s offen" % (v(XQ + 2 * k, 2), vN[k], s(pW, 4), s(sROW)))
    A("s_add_u32 %s, %s, 1" % (s(pT + 4), s(pS)))
    wait_flags(A, vFl3, s(sFL3), s(pT + 4), fail, TMP)
    trace(A, 0, 60)
    A("s_and_b32 %s, %s, %d" % (s(sIN), s(pS), RING - 1)); A("s_mul_i32 %s, %s, %d" % (s(sIN), s(sIN), 32 * 32 * PROW)); A("s_mul_i32 %s, %s, %d" % (s(pT), s(pID), 32 * PROW))
    A("s_add_u32 %s, %s, %s" % (s(sIN), s(sIN), s(pT))); A("s_add_u32 %s, %s, 0x%x" % (s(sIN), s(sIN), P12))
    rw_stream(A, [sIN], 32, vM, vX, None, SEL, SEL2, D, lambda k: 0)
    trace(A, 1, 60)
    A("v_cmp_gt_u32 vcc, 0x40000000, v%d" % vS[2]); A("s_nop 1")
    for r in vals[8:]: A("v_cndmask_b32 v%d, 0, v%d, vcc" % (r, r))
    for r in vals: rb16(A, r)
    for k in range(3): unpack4(A, XQ + 2 * k, TMP + 4 * k)
    for i, r in enumerate(vals): A("v_add_f32 v%d, v%d, v%d" % (r, r, TMP + i))
    for r in vals: rb16(A, r)
    def store_row(base):
        A("s_add_u32 %s, %s, 0x%x" % (s(pT + 8), s(sROW), base))
        for k in range(3):
            A("v_perm_b32 v%d, v%d, v%d, %s" % (TMP + 2 * k, D[k] + 1, D[k], s(pT + 14))); A("v_perm_b32 v%d, v%d, v%d, %s" % (TMP + 2 * k + 1, D[k] + 3, D[k] + 2, s(pT + 14)))
            A("buffer_store_dwordx2 %s, v%d, %s, %s offen sc1" % (v(TMP + 2 * k, 2), vS[k], s(pWS, 4), s(pT + 8)))
    store_row(HB)
    ln_wave(A, vals, TMP + 8, vS[2]); store_row(HNB)
    ln_wave(A, vals, TMP + 8, vS[2]); store_row(TB)
    A("s_add_u32 %s, %s, 1" % (s(pT + 4), s(pS)))
    wave_flag(A, s(pFOFF), s(pT + 4), TMP)
    trace(A, 2, 60)
    A.label(no3)
    A("s_cmp_ge_u32 %s, %d" % (s(pS), KLAG)); A("s_cbranch_scc0 %s" % no8)
    A("s_sub_u32 %s, %s, %d" % (s(sS8), s(pS), KLAG))
    A("s_lshl_b32 %s, %s, 5" % (s(sROW), s(sS8))); A("s_add_u32 %s, %s, %s" % (s(sROW), s(sROW), s(pID))); A("s_mul_i32 %s, %s, %d" % (s(sROW), s(sROW), ROW))
    A("s_add_u32 %s, %s, 1" % (s(pT + 4), s(sS8)))
    wait_flags(A, vFl8, s(sFL8), s(pT + 4), fail, TMP)
    A("s_add_u32 %s, %s, 0x%x" % (s(pT), s(sROW), HB)); A("s_add_u32 %s, %s, 0x%x" % (s(pT + 1), s(sROW), X1B))
    for k in range(3):
        A("buffer_load_dwordx2 %s, v%d, %s, %s offen sc1" % (v(HQ + 2 * k, 2), vS[k], s(pWS, 4), s(pT)))
        A("buffer_load_dwordx2 %s, v%d, %s, %s offen sc1" % (v(XQ + 2 * k, 2), vS[k], s(pWS, 4), s(pT + 1)))
    A("s_and_b32 %s, %s, %d" % (s(sIN), s(sS8), RING - 1)); A("s_mul_i32 %s, %s, %d" % (s(sIN), s(sIN), 32 * 36 * PROW)); A("s_mul_i32 %s, %s, %d" % (s(pT), s(pID), 36 * PROW))
    A("s_add_u32 %s, %s, %s" % (s(sIN), s(sIN), s(pT))); A("s_add_u32 %s, %s, 0x%x" % (s(sIN), s(sIN), P67))
    def fin(k2):
        A("s_add_u32 %s, %s, 1" % (s(pT + 4), s(sS8)))
        A("v_mov_b32 v%d, %s" % (TMP + 14, s(pT + 4)))
        A("buffer_store_dword v%d, off, %s, %s sc1" % (TMP + 14, s(pWS, 4), s(sFO8)))
        for r in vals: rb16(A, r)
        for k in range(3): unpack4(A, XQ + 2 * k, TMP + 4 * k)
        for i, r in enumerate(vals): A("v_add_f32 v%d, v%d, v%d" % (r, r, TMP + i))
        for r in vals: rb16(A, r)
        for k in range(3): unpack4(A, HQ + 2 * k, TMP + 4 * k)
        for i, r in enumerate(vals): A("v_add_f32 v%d, v%d, v%d" % (r, r, TMP + i))
        for k in range(3):
            A("v_cvt_pk_bf16_f32 v%d, v%d, v%d" % (TMP + 2 * k, D[k], D[k] + 1)); A("v_cvt_pk_bf16_f32 v%d, v%d, v%d" % (TMP + 2 * k + 1, D[k] + 2, D[k] + 3))
            A("buffer_store_dwordx2 %s, v%d, %s, %s offen" % (v(TMP + 2 * k, 2), vN[k], s(OUT, 4), s(sROW)))
        return 4
    rw_stream(A, [sIN], 36, vM, vX, vX9, SEL, SEL2, D, fin, pre=6)
    A.label(no8)
    A("s_add_u32 %s, %s, 4" % (s(pS), s(pS)))
    A("s_cmp_lt_u32 %s, %d" % (s(pS), nseg + KLAG)); A("s_cbranch_scc1 %s" % top)
    m1 = A.mark()
    A("s_waitcnt vmcnt(0)")
    trace(A, 3, 0)
    return (m0, m1)


def emit_r8i(A, fail, ncu=20, hook=None):
    A.c("=== R8 (items)")
    TRV[0] = 250
    vM, vX, vX9, vFl = 1, 2, 10, 3
    vS, vN = [4, 5, 6], [7, 8, 9]
    SEL, SEL2, TMP = 12, 16, 20
    D = [36, 40, 44]; XQ, HQ = 48, 54
    OUT = 48
    load_srd(A, OUT, "out")
    rw_consts(A, 36, vM, vX, SEL, SEL2, vS, vN, TMP)
    A("v_and_b32 v%d, 8, v0" % TMP); A("v_mov_b32 v%d, 0x40000000" % (TMP + 1)); A("v_cmp_eq_u32 vcc, 0, v%d" % TMP); A("s_nop 1")
    A("v_cndmask_b32 v%d, v%d, v%d, vcc" % (vX9, TMP + 1, vX))
    A("v_and_b32 v%d, 63, v0" % TMP); A("v_min_u32 v%d, 35, v%d" % (vFl, TMP)); A("v_lshlrev_b32 v%d, 2, v%d" % (vFl, vFl))
    sIN, sROW, sFL, sIT, sTOK = 44, 45, 46, 47, 52
    if hook: hook(A)
    A("s_lshl_b32 %s, %s, 2" % (s(sIT), s(pID))); A("s_add_u32 %s, %s, %s" % (s(sIT), s(sIT), s(pWV)))
    vals = [D[k] + r for k in range(3) for r in range(4)]
    top = A.newlab("r8_top"); m0 = A.mark(); A.label(top)
    A("s_lshr_b32 %s, %s, 5" % (s(pS), s(sIT))); A("s_and_b32 %s, %s, 31" % (s(sTOK), s(sIT)))
    A("s_mul_i32 %s, %s, %d" % (s(sROW), s(sIT), ROW))
    A("s_and_b32 %s, %s, 1" % (s(sFL), s(pS))); A("s_mul_i32 %s, %s, 144" % (s(sFL), s(sFL))); A("s_add_u32 %s, %s, 0x%x" % (s(sFL), s(sFL), F_R67))
    A("s_add_u32 %s, %s, 1" % (s(pT + 4), s(pS)))
    wait_flags(A, vFl, s(sFL), s(pT + 4), fail, TMP)
    trace(A, 0, 62)
    A("s_add_u32 %s, %s, 0x%x" % (s(pT), s(sROW), HB)); A("s_add_u32 %s, %s, 0x%x" % (s(pT + 1), s(sROW), X1B))
    for k in range(3):
        A("buffer_load_dwordx2 %s, v%d, %s, %s offen sc1" % (v(HQ + 2 * k, 2), vS[k], s(pWS, 4), s(pT)))
        A("buffer_load_dwordx2 %s, v%d, %s, %s offen sc1" % (v(XQ + 2 * k, 2), vS[k], s(pWS, 4), s(pT + 1)))
    A("s_and_b32 %s, %s, %d" % (s(sIN), s(pS), RING67 - 1)); A("s_mul_i32 %s, %s, %d" % (s(sIN), s(sIN), 32 * 36 * PROW)); A("s_mul_i32 %s, %s, %d" % (s(pT), s(sTOK), 36 * PROW))
    A("s_add_u32 %s, %s, %s" % (s(sIN), s(sIN), s(pT))); A("s_add_u32 %s, %s, 0x%x" % (s(sIN), s(sIN), P67))
    A("s_and_b32 %s, %s, %d" % (s(pFOFF), s(pS), RING67 - 1)); A("s_lshl_b32 %s, %s, 5" % (s(pFOFF), s(pFOFF))); A("s_add_u32 %s, %s, %s" % (s(pFOFF), s(pFOFF), s(sTOK)))
    A("s_lshl_b32 %s, %s, 2" % (s(pFOFF), s(pFOFF))); A("s_add_u32 %s, %s, 0x%x" % (s(pFOFF), s(pFOFF), F_R8))
    def fin(k2):
        A("s_add_u32 %s, %s, 1" % (s(pT + 4), s(pS)))
        A("v_mov_b32 v%d, %s" % (TMP + 14, s(pT + 4)))
        A("buffer_store_dword v%d, off, %s, %s sc1" % (TMP + 14, s(pWS, 4), s(pFOFF)))
        for r in vals: rb16(A, r)
        for k in range(3): unpack4(A, XQ + 2 * k, TMP + 4 * k)
        for i, r in enumerate(vals): A("v_add_f32 v%d, v%d, v%d" % (r, r, TMP + i))
        for r in vals: rb16(A, r)
        for k in range(3): unpack4(A, HQ + 2 * k, TMP + 4 * k)
        for i, r in enumerate(vals): A("v_add_f32 v%d, v%d, v%d" % (r, r, TMP + i))
        for k in range(3):
            A("v_cvt_pk_bf16_f32 v%d, v%d, v%d" % (TMP + 2 * k, D[k], D[k] + 1)); A("v_cvt_pk_bf16_f32 v%d, v%d, v%d" % (TMP + 2 * k + 1, D[k] + 2, D[k] + 3))
            A("buffer_store_dwordx2 %s, v%d, %s, %s offen" % (v(TMP + 2 * k, 2), vN[k], s(OUT, 4), s(sROW)))
        return 4
    rw_stream(A, [sIN], 36, vM, vX, vX9, SEL, SEL2, D, fin, pre=6)
    trace(A, 1, 62)
    A("s_add_u32 %s, %s, %d" % (s(sIT), s(sIT), 4 * ncu))
    A("s_cmp_lt_u32 %s, 2048" % s(sIT)); A("s_cbranch_scc1 %s" % top)
    m1 = A.mark()
    A("s_waitcnt vmcnt(0)")
    trace(A, 3, 0)
    return (m0, m1)


def emit_r3i(A, fail, ncu=16, hook=None):
    A.c("=== R3 (items)")
    TRV[0] = 250
    vM, vX, vFl = 1, 2, 3
    vS, vN = [4, 5, 6], [7, 8, 9]
    SEL, SEL2, TMP = 12, 16, 20
    D = [36, 40, 44]; XQ = 48
    load_srd(A, pW, "x")
    rw_consts(A, 32, vM, vX, SEL, SEL2, vS, vN, TMP)
    A("v_and_b32 v%d, 63, v0" % TMP); A("v_min_u32 v%d, 31, v%d" % (vFl, TMP)); A("v_lshlrev_b32 v%d, 2, v%d" % (vFl, vFl))
    sIN, sROW, sFL, sIT, sTOK = 44, 45, 46, 47, 52
    if hook: hook(A)
    A("s_lshl_b32 %s, %s, 2" % (s(sIT), s(pID))); A("s_add_u32 %s, %s, %s" % (s(sIT), s(sIT), s(pWV)))
    A("s_mov_b32 %s, 0x07060302" % s(pT + 14))
    vals = [D[k] + r for k in range(3) for r in range(4)]
    top = A.newlab("r3_top"); m0 = A.mark(); A.label(top)
    A("s_lshr_b32 %s, %s, 5" % (s(pS), s(sIT))); A("s_and_b32 %s, %s, 31" % (s(sTOK), s(sIT)))
    A("s_mul_i32 %s, %s, %d" % (s(sROW), s(sIT), ROW))
    for k in range(3): A("buffer_load_dwordx2 %s, v%d, %s, %s offen" % (v(XQ + 2 * k, 2), vN[k], s(pW, 4), s(sROW)))
    A("s_and_b32 %s, %s, 1" % (s(sFL), s(pS))); A("s_lshl_b32 %s, %s, 7" % (s(sFL), s(sFL))); A("s_add_u32 %s, %s, 0x%x" % (s(sFL), s(sFL), F_R12))
    A("s_add_u32 %s, %s, 1" % (s(pT + 4), s(pS)))
    wait_flags(A, vFl, s(sFL), s(pT + 4), fail, TMP)
    trace(A, 0, 62)
    A("s_and_b32 %s, %s, %d" % (s(sIN), s(pS), RING - 1)); A("s_mul_i32 %s, %s, %d" % (s(sIN), s(sIN), 32 * 32 * PROW)); A("s_mul_i32 %s, %s, %d" % (s(pT), s(sTOK), 32 * PROW))
    A("s_add_u32 %s, %s, %s" % (s(sIN), s(sIN), s(pT))); A("s_add_u32 %s, %s, 0x%x" % (s(sIN), s(sIN), P12))
    A("s_and_b32 %s, %s, 7" % (s(pFOFF), s(pS))); A("s_lshl_b32 %s, %s, 5" % (s(pFOFF), s(pFOFF))); A("s_add_u32 %s, %s, %s" % (s(pFOFF), s(pFOFF), s(sTOK)))
    A("s_lshl_b32 %s, %s, 2" % (s(pFOFF), s(pFOFF))); A("s_add_u32 %s, %s, 0x%x" % (s(pFOFF), s(pFOFF), F_R3))
    rw_stream(A, [sIN], 32, vM, vX, None, SEL, SEL2, D, lambda k: 0)
    trace(A, 1, 62)
    A("v_cmp_gt_u32 vcc, 0x40000000, v%d" % vS[2]); A("s_nop 1")
    for r in vals[8:]: A("v_cndmask_b32 v%d, 0, v%d, vcc" % (r, r))
    for r in vals: rb16(A, r)
    for k in range(3): unpack4(A, XQ + 2 * k, TMP + 4 * k)
    for i, r in enumerate(vals): A("v_add_f32 v%d, v%d, v%d" % (r, r, TMP + i))
    for r in vals: rb16(A, r)
    def store_row(base):
        A("s_add_u32 %s, %s, 0x%x" % (s(pT + 8), s(sROW), base))
        for k in range(3):
            A("v_perm_b32 v%d, v%d, v%d, %s" % (TMP + 2 * k, D[k] + 1, D[k], s(pT + 14))); A("v_perm_b32 v%d, v%d, v%d, %s" % (TMP + 2 * k + 1, D[k] + 3, D[k] + 2, s(pT + 14)))
            A("buffer_store_dwordx2 %s, v%d, %s, %s offen sc1" % (v(TMP + 2 * k, 2), vS[k], s(pWS, 4), s(pT + 8)))
    store_row(HB)
    ln_wave(A, vals, TMP + 8, vS[2]); store_row(HNB)
    ln_wave(A, vals, TMP + 8, vS[2]); store_row(TB)
    trace(A, 2, 62)
    A("s_add_u32 %s, %s, 1" % (s(pT + 4), s(pS)))
    wave_flag(A, s(pFOFF), s(pT + 4), TMP)
    A("s_add_u32 %s, %s, %d" % (s(sIT), s(sIT), 4 * ncu))
    A("s_cmp_lt_u32 %s, 2048" % s(sIT)); A("s_cbranch_scc1 %s" % top)
    m1 = A.mark()
    trace(A, 3, 0)
    return (m0, m1)
```

```python
from gen_common import *
import gen_rec as gr, gen_g as gg, gen_pipe as gp

NAME = "sequential_preLN__memory_aug_recurrent_mem_tr__mixer_s_mlp__prompt_kernel"
sRANK = 23
NRS = (26, 26)
B_INIT, B_KV, B_Q = 0x40, 0x20, 0x10

def set_byte(A, sDBG, sBYTE, bit, sWV, tv):
    A("s_waitcnt vmcnt(0)"); A("s_barrier")
    A("s_or_b32 %s, %s, 0x%x" % (s(sBYTE), s(sBYTE), bit))
    sk = A.newlab("sb")
    A("s_cmp_eq_u32 %s, 0" % s(sWV)); A("s_cbranch_scc0 %s" % sk)
    A("v_mov_b32 v%d, s2" % tv); A("v_mov_b32 v%d, %s" % (tv + 1, s(sBYTE)))
    A("s_mov_b64 exec, 1")
    A("buffer_store_byte v%d, v%d, %s, 0 offen sc1" % (tv + 1, tv, s(sDBG, 4)))
    A("s_mov_b64 exec, -1")
    A.label(sk)

def wait_bytes(A, sDBG, bits_all, bits_workers, fail, tv, st, fastreg, vxself=None):
    lp = A.newlab("wb"); ok = A.newlab("wb_ok")
    A("v_mbcnt_lo_u32_b32 v%d, -1, 0" % tv); A("v_mbcnt_hi_u32_b32 v%d, -1, v%d" % (tv, tv))
    A("v_lshlrev_b32 v%d, 2, v%d" % (tv + 1, tv))
    A("s_mov_b32 %s, %d" % (s(st), SPIN_MAX))
    A.label(lp)
    A("buffer_load_dword v%d, v%d, %s, 0 offen sc1" % (tv + 2, tv + 1, s(sDBG, 4)))
    A("s_waitcnt vmcnt(0)")
    A("v_mov_b32 v%d, 0" % (tv + 3))
    for b in range(4):
        A("v_bfe_u32 v%d, v%d, %d, 8" % (tv + 4, tv + 2, 8 * b))
        A("v_and_b32 v%d, 15, v%d" % (tv + 5, tv + 4))
        A("v_cmp_ne_u32 vcc, 0, v%d" % (tv + 5))
        A("v_cmp_le_u32 %s, 8, v%d" % (s(st + 2, 2), tv))
        A("s_cmp_eq_u32 %s, 1" % s(fastreg))
        A("s_cselect_b64 vcc, vcc, %s" % s(st + 2, 2))
        A("v_mov_b32 v%d, %d" % (tv + 5, bits_all)); A("v_mov_b32 v%d, %d" % (tv + 6, bits_all | bits_workers))
        A("v_cndmask_b32 v%d, v%d, v%d, vcc" % (tv + 5, tv + 5, tv + 6))
        A("v_and_b32 v%d, v%d, v%d" % (tv + 4, tv + 4, tv + 5)); A("v_xor_b32 v%d, v%d, v%d" % (tv + 4, tv + 4, tv + 5))
        A("v_or_b32 v%d, v%d, v%d" % (tv + 3, tv + 3, tv + 4))
    A("v_cmp_ne_u32 vcc, 0, v%d" % (tv + 3))
    A("s_cbranch_vccz %s" % ok)
    A("s_sleep 4")
    A("s_sub_u32 %s, %s, 1" % (s(st), s(st))); A("s_cmp_lg_u32 %s, 0" % s(st)); A("s_cbranch_scc1 %s" % lp)
    A("s_branch %s" % fail)
    A.label(ok)

def build(force_slow=False, timing=False, opts=()):
    gr.DELAY_P, gr.DELAY_M = 7, 4
    if not timing: gr.PFT = 3
    if not timing: gp.SLEEP = 8
    A = Asm(); kstart(A, NAME)
    fail, end = "L_fail", "L_end"
    sDBG, sWS, sWV, sFAST, sVX, sVT, sBYTE, sT = 12, 4, 17, 19, 20, 21, 22, 24
    A("s_cmp_ge_u32 s2, 256"); A("s_cbranch_scc1 %s" % end)
    if timing: A("s_memrealtime s[100:101]")
    load_srd(A, sDBG, "dbg"); load_srd(A, sWS, "ws")
    A("v_lshrrev_b32 v1, 6, v0"); A("s_nop 0"); A("v_readfirstlane_b32 %s, v1" % s(sWV)); A("s_nop 1")
    def estamp(slot):
        if "gtrace" not in opts: return
        lab = A.newlab("es")
        A("s_nop 1")
        A("s_cmp_eq_u32 %s, 0" % s(sWV)); A("s_cbranch_scc0 %s" % lab)
        A.c("lint-skip-begin")
        A("s_memrealtime s[98:99]"); A("s_waitcnt lgkmcnt(0)"); A("s_sub_u32 s98, s98, s100")
        A("s_lshl_b32 s99, s2, 7"); A("s_add_u32 s99, s99, 0x%x" % (FLG + 0x10000 + 4 * slot))
        A("v_mov_b32 v56, s98"); A("buffer_store_dword v56, off, %s, s99" % s(sWS, 4))
        A.c("lint-skip-end")
        A.label(lab)
    estamp(20)
    emit_election2(A, sDBG, sVX, sVT, sWV, sT, fail)
    if force_slow:
        A("s_lshr_b32 %s, s2, 5" % s(sVX)); A("s_and_b32 %s, s2, 31" % s(sVT))
    estamp(21)
    worker = "L_worker"
    A("s_cmp_eq_u32 %s, 0" % s(sVX)); A("s_cbranch_scc0 %s" % worker)
    A.c("################ recurrence group")
    A("s_mov_b32 %s, %s" % (s(gr.sH), s(sVT)))
    A("v_mov_b32 v2, -1"); A("v_mov_b32 v3, -1"); A("v_mov_b32 v4, -1"); A("v_mov_b32 v5, -1")
    A("v_lshlrev_b32 v1, 4, v0")
    A("s_mul_i32 %s, %s, %d" % (s(sT), s(gr.sH), PSTR)); A("s_add_u32 %s, %s, 0x%x" % (s(sT), s(sT), PBUF))
    for slot in range(2):
        for part in range(2):
            A("s_add_u32 %s, %s, %d" % (s(sT + 1), s(sT), slot * PSLOT + part * 4096))
            A("buffer_store_dwordx4 v[2:5], v1, %s, %s offen sc1" % (s(sWS, 4), s(sT + 1)))
        A("s_add_u32 %s, %s, %d" % (s(sT + 1), s(sT), slot * PSLOT + 8192))
        A("v_cmp_gt_u32 vcc, 1024, v1"); A("v_mov_b32 v6, 0x40000000"); A("s_nop 0"); A("v_cndmask_b32 v7, v6, v1, vcc")
        A("buffer_store_dwordx4 v[2:5], v7, %s, %s offen sc1" % (s(sWS, 4), s(sT + 1)))
    A("s_mul_i32 %s, %s, 576" % (s(sT), s(gr.sH))); A("s_add_u32 %s, %s, 0x%x" % (s(sT), s(sT), MBUF))
    A("v_cmp_gt_u32 vcc, 576, v1"); A("v_mov_b32 v6, 0x40000000"); A("s_nop 0"); A("v_cndmask_b32 v7, v6, v1, vcc")
    A("buffer_store_dwordx4 v[2:5], v7, %s, %s offen sc1" % (s(sWS, 4), s(sT)))
    arrive(A, sDBG, D_INIT, sWV, 8)
    estamp(22)
    gr.emit_rec_prologue(A, fail)
    estamp(23)
    gr.emit_rec_consts(A)
    gr.emit_rec_mem0(A)
    wait_counter(A, sDBG, D_INIT, 33, fail, 16, sT)
    A("v_mov_b32 v16, 0"); A("buffer_load_dword v17, v16, %s, 0 offen sc1" % s(sDBG, 4)); A("s_waitcnt vmcnt(0)")
    A("v_readfirstlane_b32 %s, v17" % s(sT)); A("s_nop 0"); A("s_cmp_ge_u32 %s, 32" % s(sT)); A("s_cselect_b32 %s, 1, 0" % s(sFAST))
    if force_slow: A("s_mov_b32 %s, 0" % s(sFAST))
    wait_counter(A, sDBG, D_KV, 64, fail, 16, sT)
    if timing: A("s_memrealtime s[96:97]"); A("s_memtime s[94:95]"); A("s_waitcnt lgkmcnt(0)"); A("s_mov_b32 s97, s94")
    slow = A.newlab("rec_slow"); rdone = A.newlab("rec_alldone")
    A("s_cmp_eq_u32 %s, 1" % s(sFAST)); A("s_cbranch_scc0 %s" % slow)
    mf = gr.emit_rec_loop(A, fail, fast=True, pubflag=True, exp=opts, kvchk=True, prof=("recprof" in opts))
    if "recprof" in opts:
        for i in range(12): A("v_mov_b32 v%d, %s" % (16 + i, s(gr.sPROF + i)))
        A("s_lshl_b32 s24, %s, 2" % s(gr.sH)); A("s_add_u32 s24, s24, %s" % s(sWV)); A("s_lshl_b32 s24, s24, 6"); A("s_add_u32 s24, s24, 0x%x" % gr.PROFBUF)
        A("v_mov_b32 v1, 0"); A("s_mov_b64 exec, 1")
        for i in range(3): A("buffer_store_dwordx4 %s, v1, %s, s24 offen offset:%d" % (v(16 + 4 * i, 4), s(sWS, 4), 16 * i))
        A("s_mov_b64 exec, -1")
    A("s_branch %s" % rdone)
    A.label(slow)
    ms = gr.emit_rec_loop(A, fail, fast=False, pubflag=True, kvchk=True)
    A.label(rdone)
    def tstamp(slot, wv=0):
        if not timing: return
        A("s_memrealtime s[98:99]"); A("s_waitcnt lgkmcnt(0)")
        A("s_sub_u32 s98, s98, s100"); A("s_sub_u32 s96, s96, s100")
        A("v_mov_b32 v16, s96"); A("v_mov_b32 v17, s98")
        A("s_lshl_b32 s24, s2, 4"); A("s_add_u32 s24, s24, 0x%x" % (FLG + 0x9000))
        A("v_mov_b32 v18, %s" % s(sRANK if slot else sVT)); A("v_mov_b32 v19, %d" % (slot + 1))
        A("s_cmp_eq_u32 %s, %d" % (s(sWV), wv)); lab = A.newlab("ts"); A("s_cbranch_scc0 %s" % lab)
        A("v_mov_b32 v1, 0"); A("s_mov_b64 exec, 1"); A("buffer_store_dwordx4 v[16:19], v1, %s, s24 offen" % s(sWS, 4))
        A.label(lab)
    if timing:
        A("s_memtime s[94:95]"); A("s_waitcnt lgkmcnt(0)"); A("s_sub_u32 %s, s94, s97" % s(sVT))
    tstamp(0)
    A("s_endpgm")
    A.label(worker)
    A.c("################ workers")
    A("s_sub_u32 %s, %s, 1" % (s(sRANK), s(sVX))); A("s_lshl_b32 %s, %s, 5" % (s(sRANK), s(sRANK))); A("s_add_u32 %s, %s, %s" % (s(sRANK), s(sRANK), s(sVT)))
    sk = A.newlab("noclr")
    A("s_cmp_eq_u32 %s, 0" % s(sRANK)); A("s_cbranch_scc0 %s" % sk)
    A("v_lshlrev_b32 v1, 4, v0"); A("v_mov_b64 v[2:3], 0"); A("v_mov_b64 v[4:5], 0"); A("s_mov_b32 %s, 0x%x" % (s(sT), FLG))
    A("buffer_store_dwordx4 v[2:5], v1, %s, %s offen sc1" % (s(sWS, 4), s(sT)))
    for k in range(2):
        A("s_add_u32 %s, %s, 4096" % (s(sT), s(sT)))
        A("buffer_store_dwordx4 v[2:5], v1, %s, %s offen sc1" % (s(sWS, 4), s(sT)))
    arrive(A, sDBG, D_INIT, sWV, 8)
    A.label(sk)
    estamp(22)
    nog = "L_nog"
    lo = A.newlab("g_lo"); gs = A.newlab("g_set")
    A("s_cmp_lt_u32 %s, 3" % s(sVX)); A("s_cbranch_scc1 %s" % lo)
    A("s_cmp_ge_u32 %s, 28" % s(sVT)); A("s_cbranch_scc1 %s" % nog)
    A("s_mul_i32 %s, %s, 37" % (s(sT), s(sVT))); A("s_lshr_b32 %s, %s, 8" % (s(sT), s(sT)))
    A("s_mul_i32 %s, %s, 7" % (s(sT + 1), s(sT))); A("s_sub_u32 %s, %s, %s" % (s(sT + 1), s(sVT), s(sT + 1)))
    A("s_add_u32 %s, %s, 1" % (s(gg.gTG), s(sT + 1)))
    A("s_sub_u32 %s, %s, 3" % (s(gg.gCG), s(sVX))); A("s_lshl_b32 %s, %s, 2" % (s(gg.gCG), s(gg.gCG))); A("s_add_u32 %s, %s, %s" % (s(gg.gCG), s(gg.gCG), s(sT)))
    A("s_mov_b32 %s, 20" % s(gg.gSTR)); A("s_mov_b32 %s, 6" % s(gg.gKVR))
    A("s_branch %s" % gs)
    A.label(lo)
    A("s_mov_b32 %s, 0" % s(gg.gTG)); A("s_mov_b32 %s, %s" % (s(gg.gCG), s(sRANK)))
    A("s_mov_b32 %s, 64" % s(gg.gSTR)); A("s_mov_b32 %s, 1" % s(gg.gKVR))
    A.label(gs)
    sKVO, sQO = 47, 48
    A("s_lshl_b32 %s, %s, 2" % (s(sKVO), s(gg.gTG))); A("s_add_u32 %s, %s, %d" % (s(sQO), s(sKVO), D_Q)); A("s_add_u32 %s, %s, %d" % (s(sKVO), s(sKVO), D_KV))
    if "gtrace" in opts:
        def gtr(A_, what):
            lab = A_.newlab("gtr")
            A_("s_cmp_eq_u32 %s, 0" % s(sWV)); A_("s_cbranch_scc0 %s" % lab)
            A_.c("lint-skip-begin")
            A_("s_memrealtime s[98:99]"); A_("s_waitcnt lgkmcnt(0)"); A_("s_sub_u32 s98, s98, s100")
            if what == "ln": A_("s_mov_b32 s99, 0")
            else:
                A_("s_lshl_b32 s99, %s, 1" % s(gg.gI)); A_("s_add_u32 s99, s99, %d" % (1 if what == "ready" else 2))
            A_("s_lshl_b32 s99, s99, 2"); A_("s_lshl_b32 s97, s2, 7"); A_("s_add_u32 s99, s99, s97"); A_("s_add_u32 s99, s99, 0x%x" % (FLG + 0x10000))
            A_("v_mov_b32 v56, s98"); A_("buffer_store_dword v56, off, %s, s99" % s(sWS, 4))
            A_.c("lint-skip-end")
            A_.label(lab)
        gg.GTRACE = gtr
    else: gg.GTRACE = None
    def ln_hook(A_, first):
        gg.emit_g_ln(A_, first)
        if gg.GTRACE: gg.GTRACE(A_, "ln")
    marks = gg.emit_g_gemm(A, kvflag=lambda A_: arrive(A_, sDBG, s(sKVO), sWV, 8), ln=ln_hook)
    arrive(A, sDBG, s(sQO), sWV, 8)
    A.label(nog)
    if timing: A("s_memrealtime s[96:97]"); A("s_waitcnt lgkmcnt(0)")
    NR3, NR8 = NRS
    roles = [("r12", 64, gp.emit_r12), ("r3", NR3, lambda A_, f_, hook=None: gp.emit_r3i(A_, f_, ncu=NR3, hook=hook)), ("r4", 18, gp.emit_r4), ("r5", 18, gp.emit_r5), ("r67", 72, gp.emit_r67),
             ("r8", NR8, lambda A_, f_, hook=None: gp.emit_r8i(A_, f_, ncu=NR8, hook=hook))]
    A("s_mov_b32 %s, 0" % s(gp.pPEND))
    if "nopipe" in opts:
        tstamp(1); A("s_endpgm")
    base = 0; labs = []
    for nm, cnt, fn in roles:
        lab = "L_role_" + nm; labs.append(lab)
        A("s_cmp_lt_u32 %s, %d" % (s(sRANK), base + cnt)); A("s_cbranch_scc1 %s" % lab)
        base += cnt
    A("s_endpgm")
    base = 0; rmarks = []
    for (nm, cnt, fn), lab in zip(roles, labs):
        A.label(lab)
        A("s_sub_u32 %s, %s, %d" % (s(gp.pID), s(sRANK), base))
        hv = {"r12": 232, "r67": 212}.get(nm, 232)
        kw = {}
        if nm == "r12":
            def gwait(A_, seg):
                A_("s_lshr_b32 %s, %s, 3" % (s(sT + 2), s(seg))); A_("s_cmp_eq_u32 %s, 0" % s(sT + 2)); A_("s_cselect_b32 %s, 64, 20" % s(sT + 3))
                A_("s_lshl_b32 %s, %s, 2" % (s(sT + 2), s(sT + 2))); A_("s_add_u32 %s, %s, %d" % (s(sT + 4), s(sT + 2), D_KV)); A_("s_add_u32 %s, %s, %d" % (s(sT + 5), s(sT + 2), D_Q))
                A_.c("lint-skip-begin")
                wait_counter(A_, sDBG, s(sT + 4), s(sT + 3), fail, 12, sT + 6)
                wait_counter(A_, sDBG, s(sT + 5), s(sT + 3), fail, 12, sT + 6)
                A_.c("lint-skip-end")
            kw["gwait"] = gwait
        rmarks.append((nm, fn(A, fail, hook=lambda A_, hv=hv: wait_counter(A_, sDBG, D_INIT, 33, fail, hv, sT), **kw)))
        tstamp(1, 3 if nm in ("r3", "r8") else 0)
        A("s_endpgm")
        base += cnt
    A.label(fail)
    A("s_mov_b64 exec, 1"); A("v_mov_b32 v1, 0"); A("v_mov_b32 v2, 0xdead"); A("s_mov_b32 s24, 0x%x" % (FLG + 0xfff0))
    A("buffer_store_dword v2, v1, %s, s24 offen sc1" % s(sWS, 4))
    A.label(end)
    A("s_endpgm")
    probs = []
    for (m0, m1), nm in ((mf, "rec-fast"), (ms, "rec-slow")): probs += lint(A.lines[m0:m1] * 2, nm, verbose=False)
    for m0, m1 in marks: probs += lint(A.lines[m0:m1] * 2, "g-loop", verbose=False)
    for nm, (m0, m1) in rmarks: probs += lint(A.lines[m0:m1] * 2, nm, verbose=False)
    lin = lint(A.lines, "linear", verbose=False)
    probs += [p for p in lin if "HAZARD" in p]
    for p in probs[:20]: print(p)
    hdr = open("cdna_kernels/%s.s.ref" % NAME[:-7]).read().split("; Override launch geometry")[0]
    hdr += "; @launch grid=(256,1,1) block=(256,1,1) lds=163840\n"
    txt = hdr + HDR + A.text() + '.section .rodata,"a"\n' + kdesc(NAME)
    return txt, probs

if __name__ == "__main__":
    import sys
    txt, probs = build(force_slow="slow" in sys.argv, timing="timing" in sys.argv)
    out = "cdna_kernels/%s.s" % NAME[:-7] if "final" in sys.argv else "mega.s"
    open(out, "w").write(txt)
    print("problems:", len(probs), "bytes:", len(txt), "->", out)
    import subprocess
    r = subprocess.run(["clang", "-x", "assembler", "-target", "amdgcn-amd-amdhsa", "-mcpu=gfx950", "-c", out, "-o", "mega_check.o"], capture_output=True, text=True)
    print("assemble:", "OK" if r.returncode == 0 else r.stderr[:1500])
```
